```python
import torch

def _softmax(x, axis=-1):
    return torch.softmax(x, dim=axis)
def _gelu(x):
    return torch.nn.functional.gelu(x, approximate="tanh")
def _silu(x):
    return torch.nn.functional.silu(x)
def _sigmoid(x):
    return torch.sigmoid(x)
def _layernorm(x, axis=-1, eps=1e-5):
    m = x.mean(dim=axis, keepdim=True)
    v = x.var(dim=axis, keepdim=True, unbiased=False)
    return (x - m) / torch.sqrt(v + eps)
def _scatter_add(tgt, idx, src, axis=0):
    return tgt.clone().index_add_(axis, idx, src)
def _segment_sum(src, seg, n):
    out = torch.zeros((n,) + src.shape[1:], dtype=src.dtype)
    return out.index_add_(0, seg, src)
def _pad(x, pw):
    flat = tuple(v for pair in reversed(pw) for v in pair)
    return torch.nn.functional.pad(x, flat)

kernel_name = 'standalone__w4a16_gemm_dequant__prompt'

def setup_inputs():

    _w = (lambda a: (lambda t: t.to(torch.bfloat16) if t.is_floating_point() else t)(torch.as_tensor(a)))
    B, S, D, F = 1, 2048, 1024, 3584
    G = 128 if 128 > 0 else D
    D = (D // G) * G
    ng = D // G
    qw = torch.randint(0, 16, (D, F)).to(torch.int32)
    return {
        "x": _w((lambda *s: torch.randn(*s, dtype=torch.bfloat16) * 0.05)(B, S, D)),
        "qw": _w(qw),
        "scales": _w(torch.abs((lambda *s: torch.randn(*s, dtype=torch.bfloat16) * 0.05)(ng, F)) + 0.01),
        "zeros": _w(torch.full((ng, F), 8.0, dtype=float)),
    }

def reference(x, qw, scales, zeros):
    B, S, D = x.shape
    ng, F = scales.shape
    G = D // ng
    s = (lambda x, n, axis: torch.repeat_interleave(x, n, dim=axis))(scales, G, axis=0)
    z = (lambda x, n, axis: torch.repeat_interleave(x, n, dim=axis))(zeros, G, axis=0)
    w = ((lambda x, dt: x.to(dt))(qw, x.dtype) - z) * s
    return x @ w
```

```python
import sys

M, N, K = 2048, 3584, 1024
BM, BN, BK = 256, 112, 64
NSTEP = K // BK
QROW = N * 4
XROW = K * 2
OROW = N * 2
WBUF = BN * BK * 2
NBUF = 4
LDS_FAST = NBUF * WBUF
LDS_SLOW = LDS_FAST + 8192
LDS_FLAG = LDS_SLOW + 8192
LDS_TOTAL = LDS_FLAG + 2048

def acc(t, m):
    b = (t * 4 + m) * 4
    return f"a[{b}:{b+3}]"
def acc1(t, m, r):
    return f"a{(t*4+m)*4+r}"
XA = 112
def xf(stage, s, m):
    b = XA + stage * 32 + s * 16 + m * 4
    return f"a[{b}:{b+3}]"
V_XOFF = 1
V_QOFF = 5
V_WR = 13
V_RD = 17
V_SC = 19
V_TMP = 20
V_S = 32
V_P = 40
V_WFA = 56
V_WFB = 84
V_Q = 128
def wfa(t): return f"v[{V_WFA+4*t}:{V_WFA+4*t+3}]"
def wfb(t): return f"v[{V_WFB+4*t}:{V_WFB+4*t+3}]"
def qreg(stage, i, c): return V_Q + stage * 32 + i * 4 + c

S_X, S_Q, S_O, S_SC, S_Z = 4, 8, 12, 16, 20
S_XCUR, S_XNEXT, S_QOFF, S_CNT, S_C24 = 30, 31, 32, 33, 34
S_M0, S_N0, S_W = 35, 36, 37


class Emit:
    def __init__(self):
        self.lines = []
        self.vm = []
    def __call__(self, s):
        self.lines.append("    " + s)
    def label(self, s):
        self.lines.append(s + ":")
    def comment(self, s):
        self.lines.append("    ; " + s)


def dequant_ops(stage, fast):
    ops = []
    if fast:
        for c in range(4):
            for i in range(8):
                r = qreg(stage, i, c)
                ops.append(f"v_fma_mix_f32 v{r}, v{r}, v{V_S+c}, v{V_S+4+c} op_sel_hi:[1,0,0]")
            for j in range(4):
                ops.append(f"v_cvt_pk_bf16_f32 v{V_P+4*c+j}, v{qreg(stage,2*j,c)}, v{qreg(stage,2*j+1,c)}")
            ops.append(("W", c))
    else:
        for c in range(4):
            for i in range(8):
                r = qreg(stage, i, c)
                ops.append(f"v_fma_mix_f32 v{r}, v{r}, s{S_C24}, v{V_S+4+c} op_sel_hi:[1,0,0]")
            for j in range(4):
                ops.append(f"v_cvt_pk_bf16_f32 v{V_P+4*c+j}, v{qreg(stage,2*j,c)}, v{qreg(stage,2*j+1,c)}")
            for j in range(4):
                ops.append(f"v_lshlrev_b32 v{qreg(stage,2*j,c)}, 16, v{V_P+4*c+j}")
                ops.append(f"v_and_b32 v{qreg(stage,2*j+1,c)}, 0xffff0000, v{V_P+4*c+j}")
            for i in range(8):
                r = qreg(stage, i, c)
                ops.append(f"v_mul_f32 v{r}, v{r}, v{V_S+c}")
            for j in range(4):
                ops.append(f"v_cvt_pk_bf16_f32 v{V_P+4*c+j}, v{qreg(stage,2*j,c)}, v{qreg(stage,2*j+1,c)}")
            ops.append(("W", c))
    return ops


def gen():
    e = Emit()
    hdr = open("standalone__w4a16_gemm_dequant__prompt.s.ref").read().split("\n")
    out = []
    for l in hdr:
        if l.startswith("; @launch"):
            out.append(f"; @launch grid=(256,1,1) block=(256,1,1) lds={LDS_TOTAL}")
            break
        out.append(l)
    out.append('.amdgcn_target "amdgcn-amd-amdhsa--gfx950"')
    out.append(".text")
    out.append(".globl standalone__w4a16_gemm_dequant__prompt_kernel")
    out.append(".p2align 8")
    out.append(".type standalone__w4a16_gemm_dequant__prompt_kernel,@function")
    out.append("standalone__w4a16_gemm_dequant__prompt_kernel:")

    e("s_cmp_ge_u32 s2, 256")
    e("s_cbranch_scc1 L_end")
    e("s_load_dwordx8 s[40:47], s[0:1], 0")
    e("s_load_dwordx2 s[48:49], s[0:1], 32")
    e("s_and_b32 s24, s2, 7")
    e("s_lshr_b32 s25, s2, 3")
    e("s_and_b32 s26, s25, 3")
    e("s_lshl_b32 s24, s24, 2")
    e("s_add_u32 s24, s24, s26")
    e("s_lshr_b32 s25, s25, 2")
    e(f"s_mul_i32 s{S_N0}, s24, {BN}")
    e(f"s_lshl_b32 s{S_M0}, s25, 8")
    e("v_lshrrev_b32 v20, 6, v0")
    e("v_and_b32 v21, 63, v0")
    e("v_and_b32 v22, 15, v0")
    e("v_bfe_u32 v23, v0, 4, 2")
    e(f"v_readfirstlane_b32 s{S_W}, v20")
    e("v_lshlrev_b32 v24, 6, v20")
    e("v_add_u32 v24, v24, v22")
    e(f"v_add_u32 v24, s{S_M0}, v24")
    e("v_lshlrev_b32 v24, 11, v24")
    e(f"v_lshl_add_u32 v{V_XOFF}, v23, 4, v24")
    for m in range(1, 4):
        e(f"v_add_u32 v{V_XOFF+m}, {m*16*XROW}, v{V_XOFF}")
    e("v_lshrrev_b32 v25, 5, v0")
    e("v_and_b32 v26, 31, v0")
    e("v_min_u32 v26, 27, v26")
    e(f"s_mov_b32 s27, {8*QROW}")
    e("v_mul_lo_u32 v27, v25, s27")
    e(f"s_lshl_b32 s28, s{S_N0}, 2")
    e("v_lshl_add_u32 v27, v26, 4, v27")
    e(f"v_add_u32 v{V_QOFF}, s28, v27")
    for i in range(1, 8):
        e(f"v_add_u32 v{V_QOFF+i}, {i*QROW}, v{V_QOFF}")
    e(f"s_mov_b32 s27, {N*2}")
    e("v_mul_lo_u32 v28, v25, s27")
    e(f"s_lshl_b32 s28, s{S_N0}, 1")
    e("v_lshl_add_u32 v28, v26, 3, v28")
    e("v_add_u32 v28, s28, v28")
    e("v_lshrrev_b32 v29, 2, v26")
    e("v_and_b32 v30, 3, v26")
    e("v_and_b32 v31, 1, v29")
    e("v_lshlrev_b32 v31, 1, v31")
    e("v_lshrrev_b32 v24, 1, v30")
    e("v_add_u32 v31, v31, v24")
    e("v_lshl_add_u32 v29, v29, 3, v25")
    e("v_lshlrev_b32 v29, 8, v29")
    e("v_lshl_add_u32 v29, v30, 6, v29")
    for c in range(4):
        e(f"v_xor_b32 v24, {c}, v31")
        e(f"v_lshl_add_u32 v{V_WR+c}, v24, 4, v29")
    e("v_lshrrev_b32 v24, 3, v22")
    e("v_xor_b32 v24, v24, v22")
    e("v_lshlrev_b32 v29, 8, v23")
    e(f"v_lshl_add_u32 v{V_RD}, v24, 4, v29")
    e("v_xor_b32 v24, 2, v24")
    e(f"v_lshl_add_u32 v{V_RD+1}, v24, 4, v29")
    e(f"v_lshlrev_b32 v{V_SC}, 5, v26")
    e(f"s_mov_b32 s{S_C24}, 0x4b800000")
    e("s_waitcnt lgkmcnt(0)")
    def srd(d, lo, nbytes):
        e(f"s_mov_b32 s{d}, s{lo}")
        e(f"s_and_b32 s{d+1}, s{lo+1}, 0xffff")
        e(f"s_mov_b32 s{d+2}, {nbytes}")
        e(f"s_mov_b32 s{d+3}, 0x00020000")
    srd(S_SC, 44, 8 * N * 2)
    srd(S_Z, 46, 8 * N * 2)
    e(f"buffer_load_dwordx2 v[40:41], v28, s[{S_SC}:{S_SC+3}], 0 offen")
    e(f"buffer_load_dwordx2 v[42:43], v28, s[{S_Z}:{S_Z+3}], 0 offen")
    vm = ["sc", "sc"]
    srd(S_Q, 42, K * N * 4)
    srd(S_X, 40, M * K * 2)
    srd(S_O, 48, M * N * 2)

    def qload(step, stage, soff):
        ins = []
        for i in range(8):
            r = qreg(stage, i, 0)
            ins.append((f"buffer_load_dwordx4 v[{r}:{r+3}], v{V_QOFF+i}, s[{S_Q}:{S_Q+3}], {soff} offen", f"q{step}"))
        return ins
    def xload(step, s, soff, imm):
        ins = []
        for m in range(4):
            ins.append((f"buffer_load_dwordx4 {xf(step%4, s, m)}, v{V_XOFF+m}, s[{S_X}:{S_X+3}], {soff} offen offset:{imm}", f"x{step}_{s}"))
        return ins
    def issue(lst):
        for ins, tag in lst:
            e(ins); vm.append(tag)
    def need(tag):
        idx = max(i for i, t in enumerate(vm) if t == tag)
        return len(vm) - 1 - idx

    for st in range(4):
        e(f"s_mov_b32 s{24+st}, {st*BK*QROW}")
    issue(qload(0, 0, "s24"))
    issue(qload(1, 1, "s25"))
    issue(xload(0, 0, "0", 0)); issue(xload(0, 1, "0", 64))
    issue(qload(2, 2, "s26"))
    issue(xload(1, 0, "0", 128)); issue(xload(1, 1, "0", 128 + 64))
    issue(qload(3, 3, "s27"))
    issue(xload(2, 0, "0", 256)); issue(xload(2, 1, "0", 256 + 64))
    for i in range(112):
        e(f"v_accvgpr_write_b32 a{i}, 0")
    e(f"s_waitcnt vmcnt({need('sc')})")
    e("v_lshlrev_b32 v44, 16, v40")
    e("v_and_b32 v45, 0xffff0000, v40")
    e("v_lshlrev_b32 v46, 16, v41")
    e("v_and_b32 v47, 0xffff0000, v41")
    e("v_lshlrev_b32 v48, 16, v42")
    e("v_and_b32 v49, 0xffff0000, v42")
    e("v_lshlrev_b32 v50, 16, v43")
    e("v_and_b32 v51, 0xffff0000, v43")
    e("s_mov_b64 s[50:51], exec")
    e("s_mov_b32 s29, 0x43000000")
    for c in range(4):
        e(f"v_rndne_f32 v52, v{48+c}")
        e(f"v_cmp_eq_f32 vcc, v52, v{48+c}")
        e("s_and_b64 s[50:51], s[50:51], vcc")
        e(f"v_cmp_ge_f32 vcc, s29, abs(v{48+c})")
        e("s_and_b64 s[50:51], s[50:51], vcc")
        e(f"v_bfe_u32 v52, v{44+c}, 23, 8")
        e("v_subrev_u32 v52, 27, v52")
        e("v_cmp_gt_u32 vcc, 200, v52")
        e("s_and_b64 s[50:51], s[50:51], vcc")
    for c in range(4):
        e(f"v_mul_f32 v{52+c}, s{S_C24}, v{44+c}")
        e(f"v_mul_f32 v{56+c}, v{48+c}, v{44+c}")
        e(f"v_xor_b32 v{56+c}, 0x80000000, v{56+c}")
        e(f"v_xor_b32 v{48+c}, 0x80000000, v{48+c}")
    e("v_lshlrev_b32 v24, 5, v0")
    e(f"ds_write_b128 v24, v[52:55] offset:{LDS_FAST}")
    e(f"ds_write_b128 v24, v[56:59] offset:{LDS_FAST+16}")
    e(f"v_add_u32 v25, {LDS_SLOW}, v24")
    e(f"ds_write_b128 v25, v[44:47]")
    e(f"ds_write_b128 v25, v[48:51] offset:16")
    e("s_cmp_eq_u64 s[50:51], exec")
    e("s_cselect_b32 s29, 1, 0")
    e("v_mov_b32 v26, s29")
    e("v_lshlrev_b32 v27, 2, v20")
    e(f"v_add_u32 v27, {LDS_FLAG}, v27")
    e("ds_write_b32 v27, v26")
    e("s_waitcnt lgkmcnt(0)")
    e("s_barrier")
    e(f"v_mov_b32 v27, {LDS_FLAG}")
    e("ds_read_b128 v[44:47], v27")
    e("s_waitcnt lgkmcnt(0)")
    e("v_and_b32 v44, v44, v45")
    e("v_and_b32 v46, v46, v47")
    e("v_and_b32 v44, v44, v46")
    e("s_nop 0")
    e("v_readfirstlane_b32 s29, v44")
    e("s_cmp_eq_u32 s29, 1")
    e("s_cbranch_scc0 L_slow")

    vm_at_branch = list(vm)

    for fast in (True, False):
        vm[:] = vm_at_branch
        sfx = "f" if fast else "s"
        tbl = LDS_FAST if fast else LDS_SLOW
        if not fast:
            e.label("L_slow")
            e(f"v_add_u32 v{V_SC}, {LDS_SLOW-LDS_FAST}, v{V_SC}")
        def scread(grp):
            return [f"ds_read_b128 v[{V_S}:{V_S+3}], v{V_SC} offset:{LDS_FAST+grp*1024}",
                    f"ds_read_b128 v[{V_S+4}:{V_S+7}], v{V_SC} offset:{LDS_FAST+grp*1024+16}"]
        def wwrite(c, buf):
            return f"ds_write_b128 v{V_WR+c}, v[{V_P+4*c}:{V_P+4*c+3}] offset:{buf*WBUF}"
        def wread(dst, t, s, buf):
            return f"ds_read_b128 {dst}, v{V_RD+(t&1)} offset:{buf*WBUF+t*2048+s*1024}"
        for ins in scread(0): e(ins)
        for st in range(2):
            e(f"s_waitcnt vmcnt({need(f'q{st}')}) lgkmcnt(0)")
            for op in dequant_ops(st, fast):
                if isinstance(op, tuple):
                    e(wwrite(op[1], st))
                else:
                    e(op)
            e(f"s_mov_b32 s24, {(4+st)*BK*QROW}")
            issue(qload(4 + st, st, "s24"))
        issue(xload(3, 0, "0", 384))
        for ins in scread(1): e(ins)
        e("s_waitcnt lgkmcnt(0)")
        e("s_barrier")
        for t in range(7):
            e(wread(wfa(t), t, 0, 0))
        e(f"s_mov_b32 s{S_XCUR}, 0")
        e(f"s_mov_b32 s{S_XNEXT}, 512")
        e(f"s_mov_b32 s{S_QOFF}, {6*BK*QROW}")
        e(f"s_mov_b32 s{S_CNT}, 0")
        e("s_waitcnt lgkmcnt(0)")

        waits = {}
        body_lines = None
        for trip in range(4):
            saved = e.lines
            e.lines = []
            for p in range(4):
                it = trip * 4 + p
                def W(site, tag):
                    n = need(tag)
                    key = (p, site)
                    waits.setdefault(key, []).append(n)
                    return key
                fill = []
                for t in range(7):
                    fill.append(wread(wfb(t), t, 1, it % 4))
                soff = f"s{S_XCUR}" if p == 0 else f"s{S_XNEXT}"
                fill += xload(it + 3, 1, soff, ((it + 3) % 4) * 128 + 64)
                dq = dequant_ops((it + 2) % 4, fast)
                half = len(dq) // 2
                fill.append(("WAITQ", f"q{it+2}"))
                for op in dq[:half]:
                    fill.append(("DW", op[1]) if isinstance(op, tuple) else op)
                mf = [f"v_mfma_f32_16x16x32_bf16 {acc(t,m)}, {wfa(t)}, {xf(it%4,0,m)}, {acc(t,m)}" for t in range(7) for m in range(4)]
                k = W("x0", f"x{it}_0")
                e(f"s_waitcnt vmcnt(@{k[0]}_{k[1]}@)")
                def interleave(mf, fill):
                    nf = len(fill); nm = len(mf)
                    j = 0
                    for i, m_ in enumerate(mf):
                        e(m_)
                        tgt = (i + 1) * nf // nm
                        while j < tgt:
                            f = fill[j]; j += 1
                            if isinstance(f, tuple):
                                if f[0] == "WAITQ":
                                    k = W("q", f[1])
                                    e(f"s_waitcnt vmcnt(@{k[0]}_{k[1]}@)")
                                elif f[0] == "DW":
                                    e(wwrite(f[1], (it + 2) % 4))
                                else:
                                    e(f[0]); vm.append(f[1])
                            else:
                                e(f)
                interleave(mf, fill)
                fill = []
                for op in dq[half:]:
                    fill.append(("DW", op[1]) if isinstance(op, tuple) else op)
                if it % 2 == 1:
                    fill += scread((p + 3) // 2)
                if p == 3:
                    fill.append(f"v_add_u32 v{V_SC}, 2048, v{V_SC}")
                for t in range(7):
                    fill.append(wread(wfa(t), t, 0, (it + 1) % 4))
                fill += qload(it + 6, (it + 2) % 4, f"s{S_QOFF}")
                fill.append(f"s_add_u32 s{S_QOFF}, s{S_QOFF}, {BK*QROW}")
                fill += xload(it + 4, 0, f"s{S_XNEXT}", (it % 4) * 128)
                mf = [f"v_mfma_f32_16x16x32_bf16 {acc(t,m)}, {wfb(t)}, {xf(it%4,1,m)}, {acc(t,m)}" for t in range(7) for m in range(4)]
                k = W("x1", f"x{it}_1")
                e(f"s_waitcnt vmcnt(@{k[0]}_{k[1]}@) lgkmcnt(0)")
                interleave(mf, fill)
                if p == 3:
                    e(f"s_mov_b32 s{S_XCUR}, s{S_XNEXT}")
                    e(f"s_add_u32 s{S_XNEXT}, s{S_XNEXT}, 512")
                    e(f"s_add_u32 s{S_CNT}, s{S_CNT}, 1")
                    e(f"s_cmp_eq_u32 s{S_CNT}, 3")
                    e(f"s_cselect_b32 s{S_XNEXT}, 0x40000000, s{S_XNEXT}")
                    e(f"s_cmp_lt_u32 s{S_CNT}, 4")
                e("s_waitcnt lgkmcnt(0)")
                e("s_barrier")
            if trip == 0:
                body_lines = e.lines
            e.lines = saved
        e.label(f"L_loop_{sfx}")
        for l in body_lines:
            if "@" in l:
                a, key, b = l.split("@")
                p, site = key.split("_", 1)
                vals = waits[(int(p), site)]
                n = min(vals)
                assert n <= 63
                l = f"{a}{n}{b}   ; {vals}"
            e.lines.append(l)
        e(f"s_cbranch_scc1 L_loop_{sfx}")
        if fast:
            e("s_branch L_epi")

    e.label("L_epi")
    e("s_nop 7")
    e("s_nop 7")
    e("v_lshrrev_b32 v20, 6, v0")
    e("v_and_b32 v22, 15, v0")
    e("v_bfe_u32 v23, v0, 4, 2")
    e("v_lshlrev_b32 v24, 6, v20")
    e("v_add_u32 v24, v24, v22")
    e(f"v_add_u32 v24, s{S_M0}, v24")
    e(f"s_mov_b32 s27, {OROW}")
    e("v_mul_lo_u32 v24, v24, s27")
    e(f"s_lshl_b32 s28, s{S_N0}, 1")
    e("v_add_u32 v24, s28, v24")
    e("v_and_b32 v25, 1, v23")
    e("v_lshrrev_b32 v26, 1, v23")
    e("v_lshlrev_b32 v25, 5, v25")
    e("v_lshl_add_u32 v25, v26, 4, v25")
    e("v_add_u32 v1, v24, v25")
    e("v_lshl_add_u32 v2, v23, 3, v24")
    for m in range(4):
        e(f"s_mov_b32 s{24+m}, {m*16*OROW}")
    tb = 64
    for m in range(4):
        base = tb + m * 48
        for t in range(7):
            for r in range(4):
                e(f"v_accvgpr_read_b32 v{base+16+ (t%4)*4 + r}, {acc1(t,m,r)}")
            x0 = base + 16 + (t % 4) * 4
            e(f"v_cvt_pk_bf16_f32 v{base+2*t}, v{x0}, v{x0+1}")
            e(f"v_cvt_pk_bf16_f32 v{base+2*t+1}, v{x0+2}, v{x0+3}")
        e("s_nop 1")
        for tp in range(3):
            b = base + 4 * tp
            e(f"v_permlane16_swap_b32 v{b}, v{b+2}")
            e(f"v_permlane16_swap_b32 v{b+1}, v{b+3}")
        for tp in range(3):
            b = base + 4 * tp
            e(f"buffer_store_dwordx4 v[{b}:{b+3}], v1, s[{S_O}:{S_O+3}], s{24+m} offen offset:{tp*64}")
        e(f"buffer_store_dwordx2 v[{base+12}:{base+13}], v2, s[{S_O}:{S_O+3}], s{24+m} offen offset:192")
    e.label("L_end")
    e("s_endpgm")

    out += e.lines
    out.append('.section .rodata,"a"')
    out.append(".p2align 6")
    out.append(".amdhsa_kernel standalone__w4a16_gemm_dequant__prompt_kernel")
    out.append("  .amdhsa_next_free_vgpr 512")
    out.append("  .amdhsa_next_free_sgpr 102")
    out.append("  .amdhsa_accum_offset 256")
    out.append("  .amdhsa_group_segment_fixed_size 0")
    out.append("  .amdhsa_kernarg_size 56")
    out.append("  .amdhsa_user_sgpr_count 2")
    out.append("  .amdhsa_user_sgpr_kernarg_segment_ptr 1")
    out.append("  .amdhsa_system_sgpr_workgroup_id_x 1")
    out.append("  .amdhsa_float_denorm_mode_32 3")
    out.append("  .amdhsa_float_denorm_mode_16_64 3")
    out.append(".end_amdhsa_kernel")
    return "\n".join(out) + "\n"


if __name__ == "__main__":
    dst = sys.argv[1] if len(sys.argv) > 1 else "standalone__w4a16_gemm_dequant__prompt.s"
    open(dst, "w").write(gen())
    print("wrote", dst)
```

```python
import sys, os
STAMP = bool(os.environ.get('STAMP'))
SKIP = os.environ.get('SKIP', '').split(',')
PRIO = int(os.environ.get('PRIO', '3'))
NOPF = bool(os.environ.get('NOPF'))
PFL = int(os.environ.get('PFL', '5'))
EMASK = int(os.environ.get('EMASK', '1'))

M, N, K = 2048, 3584, 1024
BM, BN, BK = 256, 112, 64
QROW = N * 4
XROW = K * 2
OROW = N * 2
XBUF = BM * BK * 2
WBUF = BN * BK * 2
LDS_W = 4 * XBUF
LDS_SC = LDS_W + 2 * WBUF
LDS_FLAG = LDS_SC + 3584
LDS_TOTAL = 163840
ESTRIDE = 240

C_RDW = 2
C_RDX = 4
C_ST = 8
C_T = 10
ACC = 16
def acc(t, m):
    b = ACC + (t * 4 + m) * 4
    return f"v[{b}:{b+3}]"
def acc1(t, m, r): return ACC + (t * 4 + m) * 4 + r
C_WF = 128
C_XF = 184
C_DUM = 216
C_E = 220
def wf(s, t): b = C_WF + s * 28 + t * 4; return f"v[{b}:{b+3}]"
def xf(s, m): b = C_XF + s * 16 + m * 4; return f"v[{b}:{b+3}]"
V_XOFF = 16
V_QOFF = 24
V_S = 32
V_P = 40
V_RAW = 56
V_WR = 60
V_SCA = 64
V_T = 70
V_Q = 128
def qreg(stage, i, c): return V_Q + stage * 32 + i * 4 + c

S_X, S_Q, S_O, S_SC, S_Z = 4, 8, 12, 16, 20
S_XK, S_QOFF, S_CNT, S_C24, S_M0B = 30, 32, 33, 34, 38
S_M0, S_N0, S_W, S_MT = 35, 36, 37, 39


class Emit:
    def __init__(self):
        self.lines = []
    def __call__(self, s):
        self.lines.append("    " + s)
    def label(self, s):
        self.lines.append(s + ":")


def stamp(e, real=False):
    if not STAMP: return
    e("s_memrealtime s[60:61]" if real else "s_memtime s[60:61]")
    e("s_waitcnt lgkmcnt(0)")
    e("s_mov_b32 m0, s58")
    e("s_nop 0")
    e(f"v_writelane_b32 v{C_ST}, s60, m0")
    e("s_add_u32 s58, s58, 1")


def dequant_ops(stage, fast):
    ops = []
    for c in range(4):
        if fast:
            for i in range(8):
                r = qreg(stage, i, c)
                ops.append(f"v_fma_mix_f32 v{r}, v{r}, v{V_S+c}, v{V_S+4+c} op_sel_hi:[1,0,0]")
            for j in range(4):
                ops.append(f"v_cvt_pk_bf16_f32 v{V_P+4*c+j}, v{qreg(stage,2*j,c)}, v{qreg(stage,2*j+1,c)}")
        else:
            for i in range(8):
                r = qreg(stage, i, c)
                ops.append(f"v_fma_mix_f32 v{r}, v{r}, s{S_C24}, v{V_S+4+c} op_sel_hi:[1,0,0]")
            for j in range(4):
                ops.append(f"v_cvt_pk_bf16_f32 v{V_P+4*c+j}, v{qreg(stage,2*j,c)}, v{qreg(stage,2*j+1,c)}")
            for j in range(4):
                ops.append(f"v_lshlrev_b32 v{qreg(stage,2*j,c)}, 16, v{V_P+4*c+j}")
                ops.append(f"v_and_b32 v{qreg(stage,2*j+1,c)}, 0xffff0000, v{V_P+4*c+j}")
            for i in range(8):
                r = qreg(stage, i, c)
                ops.append(f"v_mul_f32 v{r}, v{r}, v{V_S+c}")
            for j in range(4):
                ops.append(f"v_cvt_pk_bf16_f32 v{V_P+4*c+j}, v{qreg(stage,2*j,c)}, v{qreg(stage,2*j+1,c)}")
        ops.append(("W", c))
    return ops


def scale_ops(raw, fast):
    ops = []
    ops.append(f"v_lshlrev_b32 v{V_S}, 16, v{raw}")
    ops.append(f"v_and_b32 v{V_S+1}, 0xffff0000, v{raw}")
    ops.append(f"v_lshlrev_b32 v{V_S+2}, 16, v{raw+1}")
    ops.append(f"v_and_b32 v{V_S+3}, 0xffff0000, v{raw+1}")
    ops.append(f"v_lshlrev_b32 v{V_S+4}, 16, v{raw+2}")
    ops.append(f"v_and_b32 v{V_S+5}, 0xffff0000, v{raw+2}")
    ops.append(f"v_lshlrev_b32 v{V_S+6}, 16, v{raw+3}")
    ops.append(f"v_and_b32 v{V_S+7}, 0xffff0000, v{raw+3}")
    for c in range(4):
        if fast:
            ops.append(f"v_mul_f32 v{V_S+4+c}, -v{V_S+4+c}, v{V_S+c}")
            ops.append(f"v_mul_f32 v{V_S+c}, s{S_C24}, v{V_S+c}")
        else:
            ops.append(f"v_xor_b32 v{V_S+4+c}, 0x80000000, v{V_S+4+c}")
    return ops


def gen():
    e = Emit()
    hdr = open("standalone__w4a16_gemm_dequant__prompt.s.ref").read().split("\n")
    out = []
    for l in hdr:
        if l.startswith("; @launch"):
            out.append(f"; @launch grid=(256,1,1) block=(512,1,1) lds={LDS_TOTAL}")
            break
        out.append(l)
    out.append('.amdgcn_target "amdgcn-amd-amdhsa--gfx950"')
    out.append(".text")
    out.append(".globl standalone__w4a16_gemm_dequant__prompt_kernel")
    out.append(".p2align 8")
    out.append(".type standalone__w4a16_gemm_dequant__prompt_kernel,@function")
    out.append("standalone__w4a16_gemm_dequant__prompt_kernel:")

    def srd(d, lo, nbytes):
        e(f"s_mov_b32 s{d}, s{lo}")
        e(f"s_and_b32 s{d+1}, s{lo+1}, 0xffff")
        e(f"s_mov_b32 s{d+2}, {nbytes}")
        e(f"s_mov_b32 s{d+3}, 0x00020000")

    e("s_cmp_ge_u32 s2, 256")
    e("s_cbranch_scc1 L_end")
    e("s_load_dwordx8 s[40:47], s[0:1], 0")
    e("s_load_dwordx2 s[48:49], s[0:1], 32")
    if STAMP:
        e("s_mov_b32 s58, 0")
        e(f"v_mov_b32 v{C_ST}, 0")
        stamp(e, True)
        stamp(e)
        e("s_load_dwordx2 s[62:63], s[0:1], 48")
    e("s_and_b32 s24, s2, 7")
    e("s_lshr_b32 s25, s2, 3")
    e("s_and_b32 s26, s25, 3")
    e("s_lshl_b32 s24, s24, 2")
    e("s_add_u32 s24, s24, s26")
    e(f"s_lshr_b32 s{S_MT}, s25, 2")
    e(f"s_mul_i32 s{S_N0}, s24, {BN}")
    e(f"s_lshl_b32 s{S_M0}, s{S_MT}, 8")
    e("v_lshrrev_b32 v1, 6, v0")
    e("v_and_b32 v10, 255, v0")
    e(f"v_readfirstlane_b32 s{S_W}, v1")
    e("v_lshrrev_b32 v11, 5, v10")
    e("v_and_b32 v12, 31, v10")
    e("v_min_u32 v12, 27, v12")
    e(f"s_mov_b32 s27, {8*QROW}")
    e("v_mul_lo_u32 v13, v11, s27")
    e(f"s_lshl_b32 s28, s{S_N0}, 2")
    e("v_lshl_add_u32 v13, v12, 4, v13")
    e("v_add_u32 v13, s28, v13")
    e(f"s_cmp_ge_u32 s{S_W}, 4")
    e("s_cbranch_scc1 L_prod")

    e(f"s_setprio {PRIO}")
    e(f"s_mul_i32 s27, s{S_MT}, {QROW}")
    e("v_add_u32 v13, s27, v13")
    e("v_bfe_u32 v10, v0, 3, 3")
    e("s_lshl_b32 s24, s2, 3")
    e("v_add_u32 v10, s24, v10")
    e("v_lshlrev_b32 v10, 11, v10")
    e("v_and_b32 v11, 7, v0")
    e("v_lshl_add_u32 v10, v11, 4, v10")
    e("v_lshl_add_u32 v12, v1, 7, v10")
    e("v_and_b32 v14, 15, v0")
    e("v_bfe_u32 v15, v0, 4, 2")
    e("v_lshrrev_b32 v10, 3, v14")
    e("v_xor_b32 v10, v10, v14")
    e("v_lshlrev_b32 v11, 8, v15")
    e(f"v_add_u32 v11, {LDS_W}, v11")
    e(f"v_lshl_add_u32 v{C_RDW}, v10, 4, v11")
    e("v_xor_b32 v10, 2, v10")
    e(f"v_lshl_add_u32 v{C_RDW+1}, v10, 4, v11")
    e("v_lshrrev_b32 v10, 1, v14")
    e("v_xor_b32 v10, v10, v15")
    e("v_lshlrev_b32 v11, 13, v1")
    e("v_lshl_add_u32 v11, v14, 7, v11")
    e(f"v_lshl_add_u32 v{C_RDX}, v10, 4, v11")
    e(f"v_xor_b32 v{C_RDX+1}, 64, v{C_RDX}")
    e(f"v_add_u32 v{C_RDX+2}, {2*XBUF}, v{C_RDX}")
    e(f"v_add_u32 v{C_RDX+3}, {2*XBUF}, v{C_RDX+1}")
    for i in range(0, 112, 2):
        e(f"v_mov_b64 v[{ACC+i}:{ACC+i+1}], 0")
    for i in range(0, 28, 2):
        e(f"v_mov_b64 v[{C_WF+28+i}:{C_WF+28+i+1}], 0")
    for i in range(0, 16, 2):
        e(f"v_mov_b64 v[{C_XF+16+i}:{C_XF+16+i+1}], 0")
    e("s_waitcnt lgkmcnt(0)")
    if os.environ.get('STAMP2'): stamp(e)
    srd(S_Q, 42, K * N * 4)
    srd(S_X, 40, M * K * 2)
    srd(S_O, 48, M * N * 2)
    if not NOPF:
        for st in range(1, PFL + 1):
            if st in (1, 5):
                e(f"s_mov_b32 s24, {st*128}")
                e(f"buffer_load_dwordx4 v[{C_DUM}:{C_DUM+3}], v12, s[{S_X}:{S_X+3}], s24 offen")
            e(f"s_mov_b32 s25, {st*BK*QROW}")
            e(f"buffer_load_dwordx4 v[{C_DUM}:{C_DUM+3}], v13, s[{S_Q}:{S_Q+3}], s25 offen")
    if os.environ.get('STAMP2'): stamp(e)
    e(f"s_mov_b32 s{S_QOFF}, {(PFL+1)*BK*QROW}")
    e(f"s_mov_b32 s{S_XK}, {9*128}")
    if os.environ.get('STAMP2'): stamp(e)
    e(f"s_mov_b32 s{S_CNT}, 0")
    e("s_barrier")
    stamp(e)
    e("s_barrier")
    stamp(e)
    def wread(s_set, t, s, buf):
        return f"ds_read_b128 {wf(s_set,t)}, v{C_RDW+(t&1)} offset:{buf*WBUF+t*2048+s*1024}"
    def xread(s_set, m, s, stage):
        return f"ds_read_b128 {xf(s_set,m)}, v{C_RDX+(stage>>1)*2+s} offset:{(stage&1)*XBUF+m*2048}"
    def mfmas(s_set, ts):
        if 'mfma' in SKIP: return ['s_nop 0' for t in ts for m in range(4)]
        return [f"v_mfma_f32_16x16x32_bf16 {acc(t,m)}, {wf(s_set,t)}, {xf(s_set,m)}, {acc(t,m)}" for t in ts for m in range(4)]
    def interleave(mf, fill, per=1):
        j = 0
        for i, m_ in enumerate(mf):
            e(m_)
            for _ in range(per):
                if j < len(fill):
                    e(fill[j]); j += 1
        while j < len(fill):
            e(fill[j]); j += 1
    e.label("L_cloop")
    for p in range(4):
        fill = [xread(0, m, 0, p) for m in range(4)] + [wread(0, t, 0, p % 2) for t in range(7)]
        for f in fill[:3]: e(f)
        interleave(mfmas(1, [4, 5, 6]), fill[3:])
        e("s_waitcnt lgkmcnt(0)")
        fill = [xread(1, m, 1, p) for m in range(4)] + [wread(1, t, 1, p % 2) for t in range(7)]
        interleave(mfmas(0, range(7)), fill)
        e("s_waitcnt lgkmcnt(0)")
        pf = [] if NOPF else [f"buffer_load_dwordx4 v[{C_DUM}:{C_DUM+3}], v13, s[{S_Q}:{S_Q+3}], s{S_QOFF} offen",
                              f"s_add_u32 s{S_QOFF}, s{S_QOFF}, {BK*QROW}"]
        if p == 2 and not NOPF:
            pf += [f"s_cmp_lt_u32 s{S_CNT}, 2",
                   f"s_cselect_b32 s24, s{S_XK}, 0x40000000",
                   f"buffer_load_dwordx4 v[{C_DUM}:{C_DUM+3}], v12, s[{S_X}:{S_X+3}], s24 offen",
                   f"s_add_u32 s{S_XK}, s{S_XK}, 512"]
        interleave(mfmas(1, [0, 1, 2, 3]), pf)
        stamp(e)
        if p == 3:
            e(f"s_add_u32 s{S_CNT}, s{S_CNT}, 1")
            e(f"s_cmp_lt_u32 s{S_CNT}, 4")
        e("s_barrier")
    e("s_cbranch_scc1 L_cloop")
    for m_ in mfmas(1, [4, 5, 6]): e(m_)
    e(f"s_mov_b32 s27, {ESTRIDE}")
    e("v_lshl_add_u32 v10, v1, 6, v14")
    e("v_mul_lo_u32 v10, v10, s27")
    e("v_lshl_add_u32 v10, v15, 3, v10")
    e("s_barrier")
    for m in range(4):
        for t in range(7):
            b = C_E + ((m * 7 + t) % 8) * 2
            e(f"v_cvt_pk_bf16_f32 v{b}, v{acc1(t,m,0)}, v{acc1(t,m,1)}")
            e(f"v_cvt_pk_bf16_f32 v{b+1}, v{acc1(t,m,2)}, v{acc1(t,m,3)}")
            e(f"ds_write_b64 v10, v[{b}:{b+1}] offset:{m*16*ESTRIDE + t*32}")
    e("s_waitcnt lgkmcnt(0)")
    e("s_branch L_store")

    e.label("L_prod")
    T = V_T
    vm = []
    def issue(lst):
        for f in lst:
            if isinstance(f, tuple):
                e(f[0])
                if f[1] is not None: vm.append(f[1])
            else:
                e(f)
    def need(tag):
        c = [i for i, t in enumerate(vm) if t == tag]
        if not c: return 63
        return min(63, len(vm) - 1 - max(c))
    def qload(step, stage, soff):
        if 'ldq' in SKIP: return []
        ins = []
        for i in range(8):
            r = qreg(stage, i, 0)
            ins.append((f"buffer_load_dwordx4 v[{r}:{r+3}], v{V_QOFF+i}, s[{S_Q}:{S_Q+3}], {soff} offen", f"q{step}"))
        return ins
    def xdma(step, soff):
        if 'ldx' in SKIP: return []
        ins = []
        for a in range(8):
            if a % 4 == 0:
                ins.append(f"s_add_u32 m0, s{S_M0B}, {(step%4)*XBUF + (a//4)*4096}")
                ins.append("s_nop 0")
            if EMASK: ins.append("s_mov_b64 exec, -1")
            ins.append((f"buffer_load_dwordx4 v{V_XOFF+a}, s[{S_X}:{S_X+3}], {soff} offen offset:{(a%4)*1024} lds", f"x{step}"))
            if EMASK: ins.append(("s_mov_b64 exec, s[56:57]", None))
        return ins
    e(f"v_mov_b32 v{V_QOFF}, v13")
    for i in range(1, 8):
        e(f"v_add_u32 v{V_QOFF+i}, {i*QROW}, v13")
    e(f"s_mov_b32 s27, {N*2}")
    e(f"v_mul_lo_u32 v{T}, v11, s27")
    e(f"s_lshl_b32 s28, s{S_N0}, 1")
    e(f"v_lshl_add_u32 v{T}, v12, 3, v{T}")
    e(f"v_add_u32 v{T}, s28, v{T}")
    e(f"v_and_b32 v{T+1}, 63, v0")
    e(f"v_bfe_u32 v{T+3}, v0, 4, 2")
    e(f"v_and_b32 v{T+2}, 3, v1")
    e(f"v_lshrrev_b32 v{T+8}, 3, v{T+1}")
    e(f"v_lshl_add_u32 v{T+8}, v{T+2}, 6, v{T+8}")
    e(f"v_add_u32 v{T+8}, s{S_M0}, v{T+8}")
    e(f"v_lshlrev_b32 v{T+8}, 11, v{T+8}")
    e(f"v_and_b32 v{T+9}, 7, v{T+1}")
    e(f"v_xor_b32 v{T+9}, v{T+9}, v{T+3}")
    e(f"v_xor_b32 v{T+10}, 4, v{T+9}")
    e(f"v_lshl_add_u32 v{T+9}, v{T+9}, 4, v{T+8}")
    e(f"v_lshl_add_u32 v{T+10}, v{T+10}, 4, v{T+8}")
    for a in range(8):
        e(f"v_add_u32 v{V_XOFF+a}, {a*8*XROW - (a%4)*1024}, v{T+9+(a&1)}")
    e(f"s_and_b32 s{S_M0B}, s{S_W}, 3")
    e(f"s_lshl_b32 s{S_M0B}, s{S_M0B}, 13")
    e("s_waitcnt lgkmcnt(0)")
    if os.environ.get('STAMP2'): stamp(e)
    srd(S_SC, 44, 8 * N * 2)
    srd(S_Z, 46, 8 * N * 2)
    issue([(f"buffer_load_dwordx2 v[{V_RAW}:{V_RAW+1}], v{T}, s[{S_SC}:{S_SC+3}], 0 offen", "sc"),
           (f"buffer_load_dwordx2 v[{V_RAW+2}:{V_RAW+3}], v{T}, s[{S_Z}:{S_Z+3}], 0 offen", "sc")])
    srd(S_Q, 42, K * N * 4)
    if EMASK:
        e("s_mov_b32 s56, 0x0fffffff")
        e("s_mov_b32 s57, 0x0fffffff")
        e("s_mov_b64 exec, s[56:57]")
    issue(qload(0, 0, "0"))
    srd(S_X, 40, M * K * 2)
    srd(S_O, 48, M * N * 2)
    issue(xdma(0, "0"))
    e(f"s_mov_b32 s24, {1*BK*QROW}")
    issue(qload(1, 1, "s24"))
    if os.environ.get('STAMP2'): stamp(e)
    e(f"v_lshrrev_b32 v{T+8}, 2, v12")
    e(f"v_and_b32 v{T+9}, 3, v12")
    e(f"v_and_b32 v{T+10}, 1, v{T+8}")
    e(f"v_lshlrev_b32 v{T+10}, 1, v{T+10}")
    e(f"v_lshrrev_b32 v{T+11}, 1, v{T+9}")
    e(f"v_add_u32 v{T+10}, v{T+10}, v{T+11}")
    e(f"v_lshl_add_u32 v{T+8}, v{T+8}, 3, v11")
    e(f"v_lshlrev_b32 v{T+8}, 8, v{T+8}")
    e(f"v_lshl_add_u32 v{T+8}, v{T+9}, 6, v{T+8}")
    e(f"v_add_u32 v{T+8}, {LDS_W}, v{T+8}")
    for c in range(4):
        e(f"v_xor_b32 v{T+11}, {c}, v{T+10}")
        e(f"v_lshl_add_u32 v{V_WR+c}, v{T+11}, 4, v{T+8}")
    e(f"v_lshlrev_b32 v{V_SCA}, 4, v12")
    e(f"v_add_u32 v{V_SCA}, {LDS_SC}, v{V_SCA}")
    e(f"v_mul_u32_u24 v{T+4}, 448, v11")
    e(f"v_add_u32 v{T+4}, v{T+4}, v{V_SCA}")
    e(f"s_mov_b32 s{S_C24}, 0x4b800000")
    e("s_mov_b32 s29, 0x43000000")
    e(f"v_lshlrev_b32 v{T+5}, 2, v{T+2}")
    e(f"v_add_u32 v{T+5}, {LDS_FLAG}, v{T+5}")
    e(f"s_waitcnt vmcnt({need('sc')})")
    if os.environ.get('STAMP2'): stamp(e)
    e(f"ds_write_b128 v{T+4}, v[{V_RAW}:{V_RAW+3}]")
    e("s_mov_b64 s[50:51], exec")
    r = V_RAW
    for h in range(2):
        e(f"v_lshlrev_b32 v{T+8}, 16, v{r+2+h}")
        e(f"v_and_b32 v{T+9}, 0xffff0000, v{r+2+h}")
        for x_ in (T+8, T+9):
            e(f"v_rndne_f32 v{T+10}, v{x_}")
            e(f"v_cmp_eq_f32 vcc, v{T+10}, v{x_}")
            e("s_and_b64 s[50:51], s[50:51], vcc")
            e(f"v_cmp_ge_f32 vcc, s29, abs(v{x_})")
            e("s_and_b64 s[50:51], s[50:51], vcc")
        e(f"v_bfe_u32 v{T+10}, v{r+h}, 7, 8")
        e(f"v_bfe_u32 v{T+11}, v{r+h}, 23, 8")
        e(f"v_subrev_u32 v{T+10}, 27, v{T+10}")
        e(f"v_subrev_u32 v{T+11}, 27, v{T+11}")
        e(f"v_max_u32 v{T+10}, v{T+10}, v{T+11}")
        e(f"v_cmp_gt_u32 vcc, 200, v{T+10}")
        e("s_and_b64 s[50:51], s[50:51], vcc")
    e("s_cmp_eq_u64 s[50:51], exec")
    e("s_cselect_b32 s29, 1, 0")
    e(f"v_mov_b32 v{T+6}, s29")
    e(f"ds_write_b32 v{T+5}, v{T+6}")
    e("s_waitcnt lgkmcnt(0)")
    e("s_barrier")
    stamp(e)
    e(f"v_mov_b32 v{T+5}, {LDS_FLAG}")
    e(f"ds_read_b128 v[{T+8}:{T+11}], v{T+5}")
    e(f"ds_read_b128 v[{V_RAW}:{V_RAW+3}], v{V_SCA}")
    e("s_waitcnt lgkmcnt(0)")
    e(f"v_and_b32 v{T+8}, v{T+8}, v{T+9}")
    e(f"v_and_b32 v{T+10}, v{T+10}, v{T+11}")
    e(f"v_and_b32 v{T+8}, v{T+8}, v{T+10}")
    e("s_nop 0")
    e(f"v_readfirstlane_b32 s29, v{T+8}")
    e(f"s_mov_b32 s{S_XK}, {3*128}")
    e(f"s_mov_b32 s{S_QOFF}, {4*BK*QROW}")
    e(f"s_mov_b32 s{S_CNT}, 0")
    e("s_cmp_eq_u32 s29, 1")
    e("s_cbranch_scc0 L_slow")
    vm_at_branch = list(vm)
    for fast in (True, False):
        vm[:] = vm_at_branch
        sfx = "f" if fast else "s"
        if not fast:
            e.label("L_slow")
        def wwrite(c, buf):
            return f"ds_write_b128 v{V_WR+c}, v[{V_P+4*c}:{V_P+4*c+3}] offset:{buf*WBUF}"
        def dequant(stage, buf):
            for op in dequant_ops(stage, fast):
                if isinstance(op, tuple):
                    if 'dsw' not in SKIP: e(wwrite(op[1], buf))
                elif 'valu' not in SKIP: e(op)
        for op in scale_ops(V_RAW, fast): e(op)
        e(f"s_mov_b32 s25, 128")
        e(f"s_mov_b32 s24, {2*BK*QROW}")
        e(f"s_mov_b32 s26, 256")
        e(f"s_mov_b32 s27, {3*BK*QROW}")
        def groups(lst):
            g_ = []; cur = []
            for f in lst:
                cur.append(f)
                if isinstance(f, tuple) and not (EMASK and f[1] is not None and f[1][0] == 'x'):
                    g_.append(cur); cur = []
            return g_
        seq = groups(xdma(1, "s25")) + groups(qload(2, 2, "s24")) + groups(xdma(2, "s26")) + groups(qload(3, 3, "s27"))
        e(f"s_waitcnt vmcnt({need('q0')})")
        ops = dequant_ops(0, fast)
        n = len(ops); k = 16; gi = 0
        for i, op in enumerate(ops):
            while gi < k and gi * n <= i * k:
                issue(seq[gi]); gi += 1
            if isinstance(op, tuple): e(wwrite(op[1], 0))
            else: e(op)
        e(f"s_waitcnt vmcnt({need('x0')}) lgkmcnt(0)")
        e("s_barrier")
        while gi < len(seq):
            issue(seq[gi]); gi += 1
        stamp(e)
        waits = {}
        body_lines = None
        for trip in range(4):
            saved = e.lines
            e.lines = []
            for p in range(4):
                it = trip * 4 + p
                def W(site, tag):
                    waits.setdefault((p, site), []).append(need(tag))
                    return f"@{p}_{site}@"
                if p % 2 == 1:
                    e(f"ds_read_b128 v[{V_RAW}:{V_RAW+3}], v{V_SCA} offset:{((p+1)//2)*448}")
                vq = [[f] for f in qload(it + 4, it % 4, f"s{S_QOFF}")]
                vx = []
                cur = []
                for f in xdma(it + 3, f"s{S_XK}"):
                    cur.append(f)
                    if isinstance(f, tuple) and not (EMASK and f[1] is not None):
                        vx.append(cur); cur = []
                seq = []
                for i in range(8):
                    if i < len(vx): seq.append(vx[i])
                    if i < len(vq): seq.append(vq[i])
                for g_ in seq[:2]: issue(g_)
                seq = seq[2:]
                if p % 2 == 1:
                    e("s_waitcnt lgkmcnt(0)")
                    for op in scale_ops(V_RAW, fast): e(op)
                e(f"s_waitcnt vmcnt({W('q', f'q{it+1}')})")
                ops = dequant_ops((it + 1) % 4, fast)
                n = len(ops); k = len(seq); gi = 0
                for i, op in enumerate(ops):
                    while gi < k and gi * n <= i * k:
                        issue(seq[gi]); gi += 1
                    if isinstance(op, tuple):
                        if 'dsw' not in SKIP: e(wwrite(op[1], (it + 1) % 2))
                    elif 'valu' not in SKIP: e(op)
                while gi < k:
                    issue(seq[gi]); gi += 1
                e(f"s_add_u32 s{S_QOFF}, s{S_QOFF}, {BK*QROW}")
                e(f"s_add_u32 s{S_XK}, s{S_XK}, 128")
                if p == 0:
                    e(f"s_cmp_eq_u32 s{S_CNT}, 3")
                    e(f"s_cselect_b32 s{S_XK}, 0x40000000, s{S_XK}")
                stamp(e)
                if p == 3:
                    e(f"v_add_u32 v{V_SCA}, 896, v{V_SCA}")
                    e(f"s_add_u32 s{S_CNT}, s{S_CNT}, 1")
                    e(f"s_cmp_lt_u32 s{S_CNT}, 4")
                e(f"s_waitcnt vmcnt({W('x', f'x{it+1}')}) lgkmcnt(0)")
                e("s_barrier")
            if trip == 0:
                body_lines = e.lines
            e.lines = saved
        e.label(f"L_ploop_{sfx}")
        for l in body_lines:
            if "@" in l:
                a, key, b = l.split("@")
                p, site = key.split("_", 1)
                vals = waits[(int(p), site)]
                n = min(vals)
                l = f"{a}{n}{b}   ; {vals}"
            e.lines.append(l)
        e(f"s_cbranch_scc1 L_ploop_{sfx}")
        if fast:
            e("s_branch L_pdone")
    e.label("L_pdone")
    e("s_mov_b64 exec, -1")
    e("s_waitcnt vmcnt(0)")
    e("s_barrier")

    e.label("L_store")
    e("v_and_b32 v10, 63, v0")
    e("v_mul_u32_u24 v11, 0x1250, v10")
    e("v_lshrrev_b32 v11, 16, v11")
    e("v_mul_u32_u24 v12, 14, v11")
    e("v_sub_u32 v12, v10, v12")
    e("v_lshl_add_u32 v13, v1, 5, v11")
    e(f"s_mov_b32 s27, {ESTRIDE}")
    e("v_mul_lo_u32 v14, v13, s27")
    e("v_lshl_add_u32 v14, v12, 4, v14")
    e(f"v_add_u32 v13, s{S_M0}, v13")
    e(f"s_mov_b32 s27, {OROW}")
    e("v_mul_lo_u32 v13, v13, s27")
    e(f"s_lshl_b32 s28, s{S_N0}, 1")
    e("v_lshl_add_u32 v13, v12, 4, v13")
    e("v_add_u32 v13, s28, v13")
    e("v_cmp_gt_u32 vcc, 56, v10")
    e("s_barrier")
    e("s_and_saveexec_b64 s[50:51], vcc")
    for i in range(8):
        b = 224 + i * 4
        e(f"ds_read_b128 v[{b}:{b+3}], v14 offset:{i*4*ESTRIDE}")
    for i in range(8):
        b = 224 + i * 4
        e(f"s_mov_b32 s24, {i*4*OROW}")
        e(f"s_waitcnt lgkmcnt({7-i})")
        e(f"buffer_store_dwordx4 v[{b}:{b+3}], v13, s[{S_O}:{S_O+3}], s24 offen")
    e("s_mov_b64 exec, s[50:51]")
    if STAMP:
        stamp(e)
        e("s_waitcnt vmcnt(0)")
        stamp(e)
        stamp(e, True)
        e("s_mov_b32 s64, s62")
        e("s_and_b32 s65, s63, 0xffff")
        e("s_mov_b32 s66, 0x10000000")
        e("s_mov_b32 s67, 0x00020000")
        e("v_lshlrev_b32 v1, 2, v0")
        e("s_lshl_b32 s24, s2, 11")
        e(f"buffer_store_dword v{C_ST}, v1, s[64:67], s24 offen")
    e.label("L_end")
    e("s_endpgm")

    out += e.lines
    out.append('.section .rodata,"a"')
    out.append(".p2align 6")
    out.append(".amdhsa_kernel standalone__w4a16_gemm_dequant__prompt_kernel")
    out.append("  .amdhsa_next_free_vgpr 256")
    out.append("  .amdhsa_next_free_sgpr 102")
    out.append("  .amdhsa_accum_offset 256")
    out.append("  .amdhsa_group_segment_fixed_size 0")
    out.append("  .amdhsa_kernarg_size 56")
    out.append("  .amdhsa_user_sgpr_count 2")
    out.append("  .amdhsa_user_sgpr_kernarg_segment_ptr 1")
    out.append("  .amdhsa_system_sgpr_workgroup_id_x 1")
    out.append("  .amdhsa_float_denorm_mode_32 3")
    out.append("  .amdhsa_float_denorm_mode_16_64 3")
    out.append(".end_amdhsa_kernel")
    return "\n".join(out) + "\n"


if __name__ == "__main__":
    dst = sys.argv[1] if len(sys.argv) > 1 else "standalone__w4a16_gemm_dequant__prompt.s"
    open(dst, "w").write(gen())
    print("wrote", dst)
```

```python
import sys, os
STAMP = bool(os.environ.get('STAMP'))
SKIP = os.environ.get('SKIP', '').split(',')
PRIO = int(os.environ.get('PRIO', '3'))
NOPF = bool(os.environ.get('NOPF'))
PFL = int(os.environ.get('PFL', '4'))
PPI = int(os.environ.get('PPI', '2'))
EMASK = int(os.environ.get('EMASK', '0'))
B0 = int(os.environ.get('B0', '0'))
PF0 = int(os.environ.get('PF0', '2'))
PF1 = int(os.environ.get('PF1', '3'))
ALT = int(os.environ.get('ALT', '1'))
DQ0 = int(os.environ.get('DQ0', '16'))

M, N, K = 2048, 3584, 1024
BM, BN, BK = 256, 112, 64
QROW = N * 4
XROW = K * 2
OROW = N * 2
XBUF = BM * BK * 2
WBUF = BN * BK * 2
LDS_W = 4 * XBUF
LDS_SC = LDS_W + 2 * WBUF
LDS_FLAG = LDS_SC + 3584
LDS_TOTAL = 163840
ESTRIDE = 240

C_RDW = 2
C_RDX = 4
C_ST = 8
C_T = 10
ACC = 16
def acc(t, m):
    b = ACC + (t * 4 + m) * 4
    return f"v[{b}:{b+3}]"
def acc1(t, m, r): return ACC + (t * 4 + m) * 4 + r
C_WF = 128
C_XF = 184
C_DUM = 216
C_E = 220
def wf(s, t): b = C_WF + s * 28 + t * 4; return f"v[{b}:{b+3}]"
def xf(s, m): b = C_XF + s * 16 + m * 4; return f"v[{b}:{b+3}]"
V_XOFF = 16
V_QOFF = 24
V_S = 32
V_P = 40
V_RAW = 56
V_WR = 60
V_SCA = 64
V_T = 70
V_Q = 128
def qreg(stage, i, c): return V_Q + stage * 32 + i * 4 + c

S_X, S_Q, S_O, S_SC, S_Z = 4, 8, 12, 16, 20
S_XK, S_QOFF, S_CNT, S_C24, S_M0B = 30, 32, 33, 34, 38
S_M0, S_N0, S_W, S_MT = 35, 36, 37, 39


class Emit:
    def __init__(self):
        self.lines = []
    def __call__(self, s):
        self.lines.append("    " + s)
    def label(self, s):
        self.lines.append(s + ":")


def stamp(e, real=False):
    if not STAMP: return
    e("s_memrealtime s[60:61]" if real else "s_memtime s[60:61]")
    e("s_waitcnt lgkmcnt(0)")
    e("s_mov_b32 m0, s58")
    e("s_nop 0")
    e(f"v_writelane_b32 v{C_ST}, s60, m0")
    e("s_add_u32 s58, s58, 1")


def dequant_ops(stage, fast):
    ops = []
    for c in range(4):
        if fast:
            for i in range(8):
                r = qreg(stage, i, c)
                ops.append(f"v_fma_mix_f32 v{r}, v{r}, v{V_S+c}, v{V_S+4+c} op_sel_hi:[1,0,0]")
            for j in range(4):
                ops.append(f"v_cvt_pk_bf16_f32 v{V_P+4*c+j}, v{qreg(stage,2*j,c)}, v{qreg(stage,2*j+1,c)}")
        else:
            for i in range(8):
                r = qreg(stage, i, c)
                ops.append(f"v_fma_mix_f32 v{r}, v{r}, s{S_C24}, v{V_S+4+c} op_sel_hi:[1,0,0]")
            for j in range(4):
                ops.append(f"v_cvt_pk_bf16_f32 v{V_P+4*c+j}, v{qreg(stage,2*j,c)}, v{qreg(stage,2*j+1,c)}")
            for j in range(4):
                ops.append(f"v_lshlrev_b32 v{qreg(stage,2*j,c)}, 16, v{V_P+4*c+j}")
                ops.append(f"v_and_b32 v{qreg(stage,2*j+1,c)}, 0xffff0000, v{V_P+4*c+j}")
            for i in range(8):
                r = qreg(stage, i, c)
                ops.append(f"v_mul_f32 v{r}, v{r}, v{V_S+c}")
            for j in range(4):
                ops.append(f"v_cvt_pk_bf16_f32 v{V_P+4*c+j}, v{qreg(stage,2*j,c)}, v{qreg(stage,2*j+1,c)}")
        ops.append(("W", c))
    return ops


def scale_ops(raw, fast):
    ops = []
    ops.append(f"v_lshlrev_b32 v{V_S}, 16, v{raw}")
    ops.append(f"v_and_b32 v{V_S+1}, 0xffff0000, v{raw}")
    ops.append(f"v_lshlrev_b32 v{V_S+2}, 16, v{raw+1}")
    ops.append(f"v_and_b32 v{V_S+3}, 0xffff0000, v{raw+1}")
    ops.append(f"v_lshlrev_b32 v{V_S+4}, 16, v{raw+2}")
    ops.append(f"v_and_b32 v{V_S+5}, 0xffff0000, v{raw+2}")
    ops.append(f"v_lshlrev_b32 v{V_S+6}, 16, v{raw+3}")
    ops.append(f"v_and_b32 v{V_S+7}, 0xffff0000, v{raw+3}")
    for c in range(4):
        if fast:
            ops.append(f"v_mul_f32 v{V_S+4+c}, -v{V_S+4+c}, v{V_S+c}")
            ops.append(f"v_mul_f32 v{V_S+c}, s{S_C24}, v{V_S+c}")
        else:
            ops.append(f"v_xor_b32 v{V_S+4+c}, 0x80000000, v{V_S+4+c}")
    return ops


def gen():
    e = Emit()
    hdr = open("standalone__w4a16_gemm_dequant__prompt.s.ref").read().split("\n")
    out = []
    for l in hdr:
        if l.startswith("; @launch"):
            out.append(f"; @launch grid=(256,1,1) block=(512,1,1) lds={LDS_TOTAL}")
            break
        out.append(l)
    out.append('.amdgcn_target "amdgcn-amd-amdhsa--gfx950"')
    out.append(".text")
    out.append(".globl standalone__w4a16_gemm_dequant__prompt_kernel")
    out.append(".p2align 8")
    out.append(".type standalone__w4a16_gemm_dequant__prompt_kernel,@function")
    out.append("standalone__w4a16_gemm_dequant__prompt_kernel:")

    def srd(d, lo, nbytes):
        e(f"s_mov_b32 s{d}, s{lo}")
        e(f"s_and_b32 s{d+1}, s{lo+1}, 0xffff")
        e(f"s_mov_b32 s{d+2}, {nbytes}")
        e(f"s_mov_b32 s{d+3}, 0x00020000")

    e("s_cmp_ge_u32 s2, 256")
    e("s_cbranch_scc1 L_end")
    e("s_load_dwordx8 s[40:47], s[0:1], 0")
    e("s_load_dwordx2 s[48:49], s[0:1], 32")
    if STAMP:
        e("s_mov_b32 s58, 0")
        e(f"v_mov_b32 v{C_ST}, 0")
        stamp(e, True)
        stamp(e)
        e("s_load_dwordx2 s[62:63], s[0:1], 48")
    e("s_and_b32 s24, s2, 7")
    e("s_lshr_b32 s25, s2, 3")
    e("s_and_b32 s26, s25, 3")
    e("s_lshl_b32 s24, s24, 2")
    e("s_add_u32 s24, s24, s26")
    e(f"s_lshr_b32 s{S_MT}, s25, 2")
    e(f"s_mul_i32 s{S_N0}, s24, {BN}")
    e(f"s_lshl_b32 s{S_M0}, s{S_MT}, 8")
    e("v_lshrrev_b32 v1, 6, v0")
    e("v_and_b32 v10, 255, v0")
    e(f"v_readfirstlane_b32 s{S_W}, v1")
    e("v_lshrrev_b32 v11, 5, v10")
    e("v_and_b32 v12, 31, v10")
    e("v_min_u32 v12, 27, v12")
    e(f"s_mov_b32 s27, {8*QROW}")
    e("v_mul_lo_u32 v13, v11, s27")
    e(f"s_lshl_b32 s28, s{S_N0}, 2")
    e("v_lshl_add_u32 v13, v12, 4, v13")
    e("v_add_u32 v13, s28, v13")
    e(f"s_cmp_ge_u32 s{S_W}, 4")
    e("s_cbranch_scc1 L_prod")

    e(f"s_setprio {PRIO}")
    e(f"s_mul_i32 s27, s{S_MT}, {QROW}")
    e("v_add_u32 v13, s27, v13")
    e("v_bfe_u32 v10, v0, 3, 3")
    e("s_lshl_b32 s24, s2, 3")
    e("v_add_u32 v10, s24, v10")
    e("v_lshlrev_b32 v10, 11, v10")
    e("v_and_b32 v11, 7, v0")
    e("v_lshl_add_u32 v10, v11, 4, v10")
    e("v_lshl_add_u32 v12, v1, 7, v10")
    e("v_and_b32 v14, 15, v0")
    e("v_bfe_u32 v15, v0, 4, 2")
    e("v_lshrrev_b32 v10, 3, v14")
    e("v_xor_b32 v10, v10, v14")
    e("v_lshlrev_b32 v11, 8, v15")
    e(f"v_add_u32 v11, {LDS_W}, v11")
    e(f"v_lshl_add_u32 v{C_RDW}, v10, 4, v11")
    e("v_xor_b32 v10, 2, v10")
    e(f"v_lshl_add_u32 v{C_RDW+1}, v10, 4, v11")
    e("v_lshrrev_b32 v10, 1, v14")
    e("v_xor_b32 v10, v10, v15")
    e("v_lshlrev_b32 v11, 13, v1")
    e("v_lshl_add_u32 v11, v14, 7, v11")
    e(f"v_lshl_add_u32 v{C_RDX}, v10, 4, v11")
    e(f"v_xor_b32 v{C_RDX+1}, 64, v{C_RDX}")
    e(f"v_add_u32 v{C_RDX+2}, {2*XBUF}, v{C_RDX}")
    e(f"v_add_u32 v{C_RDX+3}, {2*XBUF}, v{C_RDX+1}")
    for i in range(0, 112, 2):
        e(f"v_mov_b64 v[{ACC+i}:{ACC+i+1}], 0")
    for i in range(0, 28, 2):
        e(f"v_mov_b64 v[{C_WF+28+i}:{C_WF+28+i+1}], 0")
    for i in range(0, 16, 2):
        e(f"v_mov_b64 v[{C_XF+16+i}:{C_XF+16+i+1}], 0")
    e("s_waitcnt lgkmcnt(0)")
    if os.environ.get('STAMP2'): stamp(e)
    srd(S_Q, 42, K * N * 4)
    srd(S_X, 40, M * K * 2)
    srd(S_O, 48, M * N * 2)
    if B0: e("s_barrier")
    def cpf(st):
        if st % 4 == 1:
            e(f"s_mov_b32 s24, {st*128}")
            e(f"buffer_load_dwordx4 v[{C_DUM}:{C_DUM+3}], v12, s[{S_X}:{S_X+3}], s24 offen")
        e(f"s_mov_b32 s25, {st*BK*QROW}")
        e(f"buffer_load_dwordx4 v[{C_DUM}:{C_DUM+3}], v13, s[{S_Q}:{S_Q+3}], s25 offen")
    for st in range(1, PF0 + 1): cpf(st)
    if os.environ.get('STAMP2'): stamp(e)
    if os.environ.get('STAMP2'): stamp(e)
    e(f"s_mov_b32 s{S_CNT}, 0")
    e("s_barrier")
    stamp(e)
    for st in range(PF0 + 1, PF0 + PF1 + 1): cpf(st)
    nxt = PF0 + PF1 + 1
    e(f"s_mov_b32 s{S_QOFF}, {nxt*BK*QROW}")
    e(f"s_mov_b32 s{S_XK}, {((nxt + 2)//4*4 + 1)*128}")
    e("s_barrier")
    stamp(e)
    def wread(s_set, t, s, buf):
        return f"ds_read_b128 {wf(s_set,t)}, v{C_RDW+(t&1)} offset:{buf*WBUF+t*2048+s*1024}"
    def xread(s_set, m, s, stage):
        return f"ds_read_b128 {xf(s_set,m)}, v{C_RDX+(stage>>1)*2+s} offset:{(stage&1)*XBUF+m*2048}"
    def mfmas(s_set, ts):
        if 'mfma' in SKIP: return ['s_nop 0' for t in ts for m in range(4)]
        return [f"v_mfma_f32_16x16x32_bf16 {acc(t,m)}, {wf(s_set,t)}, {xf(s_set,m)}, {acc(t,m)}" for t in ts for m in range(4)]
    def interleave(mf, fill, per=1):
        j = 0
        for i, m_ in enumerate(mf):
            e(m_)
            for _ in range(per):
                if j < len(fill):
                    e(fill[j]); j += 1
        while j < len(fill):
            e(fill[j]); j += 1
    e.label("L_cloop")
    for p in range(4):
        fill = [xread(0, m, 0, p) for m in range(4)] + [wread(0, t, 0, p % 2) for t in range(7)]
        for f in fill[:3]: e(f)
        interleave(mfmas(1, [4, 5, 6]), fill[3:])
        e("s_waitcnt lgkmcnt(0)")
        fill = [xread(1, m, 1, p) for m in range(4)] + [wread(1, t, 1, p % 2) for t in range(7)]
        interleave(mfmas(0, range(7)), fill)
        e("s_waitcnt lgkmcnt(0)")
        mf = mfmas(1, [0, 1, 2, 3])
        for m_ in mf[:2]: e(m_)
        if not NOPF:
            e(f"s_cmp_ge_u32 s{S_QOFF}, {16*BK*QROW}")
            e(f"s_cbranch_scc1 L_nopf{p}")
            for i in range(PPI):
                e(f"buffer_load_dwordx4 v[{C_DUM}:{C_DUM+3}], v13, s[{S_Q}:{S_Q+3}], s{S_QOFF} offen")
                e(f"s_add_u32 s{S_QOFF}, s{S_QOFF}, {BK*QROW}")
            if p % 2 == 0:
                e(f"buffer_load_dwordx4 v[{C_DUM}:{C_DUM+3}], v12, s[{S_X}:{S_X+3}], s{S_XK} offen")
                e(f"s_add_u32 s{S_XK}, s{S_XK}, 512")
            e.label(f"L_nopf{p}")
        for m_ in mf[2:]: e(m_)
        stamp(e)
        if p == 3:
            e(f"s_add_u32 s{S_CNT}, s{S_CNT}, 1")
            e(f"s_cmp_lt_u32 s{S_CNT}, 4")
        e("s_barrier")
    e("s_cbranch_scc1 L_cloop")
    for m_ in mfmas(1, [4, 5, 6]): e(m_)
    e(f"s_mov_b32 s27, {ESTRIDE}")
    e("v_lshl_add_u32 v10, v1, 6, v14")
    e("v_mul_lo_u32 v10, v10, s27")
    e("v_lshl_add_u32 v10, v15, 3, v10")
    e("s_barrier")
    for m in range(4):
        for t in range(7):
            b = C_E + ((m * 7 + t) % 8) * 2
            e(f"v_cvt_pk_bf16_f32 v{b}, v{acc1(t,m,0)}, v{acc1(t,m,1)}")
            e(f"v_cvt_pk_bf16_f32 v{b+1}, v{acc1(t,m,2)}, v{acc1(t,m,3)}")
            e(f"ds_write_b64 v10, v[{b}:{b+1}] offset:{m*16*ESTRIDE + t*32}")
    e("s_waitcnt lgkmcnt(0)")
    e("s_branch L_store")

    e.label("L_prod")
    T = V_T
    vm = []
    def issue(lst):
        for f in lst:
            if isinstance(f, tuple):
                e(f[0])
                if f[1] is not None: vm.append(f[1])
            else:
                e(f)
    def need(tag):
        c = [i for i, t in enumerate(vm) if t == tag]
        if not c: return 63
        return min(63, len(vm) - 1 - max(c))
    def qload(step, stage, soff):
        if 'ldq' in SKIP: return []
        ins = []
        for i in range(8):
            r = qreg(stage, i, 0)
            ins.append((f"buffer_load_dwordx4 v[{r}:{r+3}], v{V_QOFF+i}, s[{S_Q}:{S_Q+3}], {soff} offen", f"q{step}"))
        return ins
    def xdma(step, soff):
        if 'ldx' in SKIP: return []
        ins = []
        for a in range(8):
            if a % 4 == 0:
                ins.append(f"s_add_u32 m0, s{S_M0B}, {(step%4)*XBUF + (a//4)*4096}")
                ins.append("s_nop 0")
            if EMASK: ins.append("s_mov_b64 exec, -1")
            ins.append((f"buffer_load_dwordx4 v{V_XOFF+a}, s[{S_X}:{S_X+3}], {soff} offen offset:{(a%4)*1024} lds", f"x{step}"))
            if EMASK: ins.append(("s_mov_b64 exec, s[56:57]", None))
        return ins
    e(f"v_mov_b32 v{V_QOFF}, v13")
    for i in range(1, 8):
        e(f"v_add_u32 v{V_QOFF+i}, {i*QROW}, v13")
    e(f"s_mov_b32 s27, {N*2}")
    e(f"v_mul_lo_u32 v{T}, v11, s27")
    e(f"s_lshl_b32 s28, s{S_N0}, 1")
    e(f"v_lshl_add_u32 v{T}, v12, 3, v{T}")
    e(f"v_add_u32 v{T}, s28, v{T}")
    e(f"v_and_b32 v{T+1}, 63, v0")
    e(f"v_bfe_u32 v{T+3}, v0, 4, 2")
    e(f"v_and_b32 v{T+2}, 3, v1")
    e(f"v_lshrrev_b32 v{T+8}, 3, v{T+1}")
    e(f"v_lshl_add_u32 v{T+8}, v{T+2}, 6, v{T+8}")
    e(f"v_add_u32 v{T+8}, s{S_M0}, v{T+8}")
    e(f"v_lshlrev_b32 v{T+8}, 11, v{T+8}")
    e(f"v_and_b32 v{T+9}, 7, v{T+1}")
    e(f"v_xor_b32 v{T+9}, v{T+9}, v{T+3}")
    e(f"v_xor_b32 v{T+10}, 4, v{T+9}")
    e(f"v_lshl_add_u32 v{T+9}, v{T+9}, 4, v{T+8}")
    e(f"v_lshl_add_u32 v{T+10}, v{T+10}, 4, v{T+8}")
    for a in range(8):
        e(f"v_add_u32 v{V_XOFF+a}, {a*8*XROW - (a%4)*1024}, v{T+9+(a&1)}")
    e(f"s_and_b32 s{S_M0B}, s{S_W}, 3")
    e(f"s_lshl_b32 s{S_M0B}, s{S_M0B}, 13")
    e("s_waitcnt lgkmcnt(0)")
    if os.environ.get('STAMP2'): stamp(e)
    srd(S_SC, 44, 8 * N * 2)
    srd(S_Z, 46, 8 * N * 2)
    issue([(f"buffer_load_dwordx2 v[{V_RAW}:{V_RAW+1}], v{T}, s[{S_SC}:{S_SC+3}], 0 offen", "sc"),
           (f"buffer_load_dwordx2 v[{V_RAW+2}:{V_RAW+3}], v{T}, s[{S_Z}:{S_Z+3}], 0 offen", "sc")])
    srd(S_Q, 42, K * N * 4)
    if EMASK:
        e("s_mov_b32 s56, 0x0fffffff")
        e("s_mov_b32 s57, 0x0fffffff")
        e("s_mov_b64 exec, s[56:57]")
    issue(qload(0, 0, "0"))
    srd(S_X, 40, M * K * 2)
    srd(S_O, 48, M * N * 2)
    issue(xdma(0, "0"))
    if B0: e("s_barrier")
    if os.environ.get('STAMP2'): stamp(e)
    e(f"v_lshrrev_b32 v{T+8}, 2, v12")
    e(f"v_and_b32 v{T+9}, 3, v12")
    e(f"v_and_b32 v{T+10}, 1, v{T+8}")
    e(f"v_lshlrev_b32 v{T+10}, 1, v{T+10}")
    e(f"v_lshrrev_b32 v{T+11}, 1, v{T+9}")
    e(f"v_add_u32 v{T+10}, v{T+10}, v{T+11}")
    e(f"v_lshl_add_u32 v{T+8}, v{T+8}, 3, v11")
    e(f"v_lshlrev_b32 v{T+8}, 8, v{T+8}")
    e(f"v_lshl_add_u32 v{T+8}, v{T+9}, 6, v{T+8}")
    e(f"v_add_u32 v{T+8}, {LDS_W}, v{T+8}")
    for c in range(4):
        e(f"v_xor_b32 v{T+11}, {c}, v{T+10}")
        e(f"v_lshl_add_u32 v{V_WR+c}, v{T+11}, 4, v{T+8}")
    e(f"v_lshlrev_b32 v{V_SCA}, 4, v12")
    e(f"v_add_u32 v{V_SCA}, {LDS_SC}, v{V_SCA}")
    e(f"v_mul_u32_u24 v{T+4}, 448, v11")
    e(f"v_add_u32 v{T+4}, v{T+4}, v{V_SCA}")
    e(f"s_mov_b32 s{S_C24}, 0x4b800000")
    e("s_mov_b32 s29, 0x43000000")
    e(f"v_lshlrev_b32 v{T+5}, 2, v{T+2}")
    e(f"v_add_u32 v{T+5}, {LDS_FLAG}, v{T+5}")
    e(f"s_waitcnt vmcnt({need('sc')})")
    if os.environ.get('STAMP2'): stamp(e)
    e(f"ds_write_b128 v{T+4}, v[{V_RAW}:{V_RAW+3}]")
    e("s_mov_b64 s[50:51], exec")
    r = V_RAW
    for h in range(2):
        e(f"v_lshlrev_b32 v{T+8}, 16, v{r+2+h}")
        e(f"v_and_b32 v{T+9}, 0xffff0000, v{r+2+h}")
        for x_ in (T+8, T+9):
            e(f"v_rndne_f32 v{T+10}, v{x_}")
            e(f"v_cmp_eq_f32 vcc, v{T+10}, v{x_}")
            e("s_and_b64 s[50:51], s[50:51], vcc")
            e(f"v_cmp_ge_f32 vcc, s29, abs(v{x_})")
            e("s_and_b64 s[50:51], s[50:51], vcc")
        e(f"v_bfe_u32 v{T+10}, v{r+h}, 7, 8")
        e(f"v_bfe_u32 v{T+11}, v{r+h}, 23, 8")
        e(f"v_subrev_u32 v{T+10}, 27, v{T+10}")
        e(f"v_subrev_u32 v{T+11}, 27, v{T+11}")
        e(f"v_max_u32 v{T+10}, v{T+10}, v{T+11}")
        e(f"v_cmp_gt_u32 vcc, 200, v{T+10}")
        e("s_and_b64 s[50:51], s[50:51], vcc")
    e("s_cmp_eq_u64 s[50:51], exec")
    e("s_cselect_b32 s29, 1, 0")
    e(f"v_mov_b32 v{T+6}, s29")
    e(f"ds_write_b32 v{T+5}, v{T+6}")
    e("s_waitcnt lgkmcnt(0)")
    e("s_barrier")
    stamp(e)
    e(f"v_mov_b32 v{T+5}, {LDS_FLAG}")
    e(f"ds_read_b128 v[{T+8}:{T+11}], v{T+5}")
    e(f"ds_read_b128 v[{V_RAW}:{V_RAW+3}], v{V_SCA}")
    e("s_waitcnt lgkmcnt(0)")
    e(f"v_and_b32 v{T+8}, v{T+8}, v{T+9}")
    e(f"v_and_b32 v{T+10}, v{T+10}, v{T+11}")
    e(f"v_and_b32 v{T+8}, v{T+8}, v{T+10}")
    e("s_nop 0")
    e(f"v_readfirstlane_b32 s29, v{T+8}")
    e(f"s_mov_b32 s{S_XK}, {3*128}")
    e(f"s_mov_b32 s{S_QOFF}, {4*BK*QROW}")
    e(f"s_mov_b32 s{S_CNT}, 0")
    e("s_cmp_eq_u32 s29, 1")
    e("s_cbranch_scc0 L_slow")
    vm_at_branch = list(vm)
    for fast in (True, False):
        vm[:] = vm_at_branch
        sfx = "f" if fast else "s"
        if not fast:
            e.label("L_slow")
        def wwrite(c, buf):
            return f"ds_write_b128 v{V_WR+c}, v[{V_P+4*c}:{V_P+4*c+3}] offset:{buf*WBUF}"
        def dequant(stage, buf):
            for op in dequant_ops(stage, fast):
                if isinstance(op, tuple):
                    if 'dsw' not in SKIP: e(wwrite(op[1], buf))
                elif 'valu' not in SKIP: e(op)
        for op in scale_ops(V_RAW, fast): e(op)
        def groups(lst):
            g_ = []; cur = []
            for f in lst:
                cur.append(f)
                if isinstance(f, tuple) and not (EMASK and f[1] is not None and f[1][0] == 'x'):
                    g_.append(cur); cur = []
            return g_
        def Q(st):
            return groups([f"s_mov_b32 s24, {st*BK*QROW}"] + qload(st, st % 4, "s24")) if st < 16 else []
        def X(st):
            return groups([f"s_mov_b32 s25, {st*128}"] + xdma(st, "s25")) if st < 16 else []
        def dq_with(stage, buf, seq):
            ops = dequant_ops(stage, fast)
            n = len(ops); k = len(seq); gi = 0
            for i, op in enumerate(ops):
                while gi < k and gi * n <= i * k:
                    issue(seq[gi]); gi += 1
                if isinstance(op, tuple):
                    if 'dsw' not in SKIP: e(wwrite(op[1], buf))
                elif 'valu' not in SKIP: e(op)
            while gi < k:
                issue(seq[gi]); gi += 1
        e(f"s_waitcnt vmcnt({need('q0')})")
        s1 = Q(1) + X(1)
        dq_with(0, 0, s1[:DQ0])
        e(f"s_waitcnt vmcnt({need('x0')}) lgkmcnt(0)")
        e("s_barrier")
        stamp(e)
        for g_ in s1[DQ0:]: issue(g_)
        sched = {0: Q(2) + X(2) + Q(3), 1: X(3) + Q(4) + X(4), 2: Q(5) + X(5) + Q(6), 3: X(6) + Q(7)}
        for it in range(16):
            def alt(a, b):
                if not ALT: return a + b
                o = []
                for i in range(max(len(a), len(b))):
                    if i < len(a): o.append(a[i])
                    if i < len(b): o.append(b[i])
                return o
            seq = sched[it] if it in sched else alt(X(it + 3), Q(it + 4))
            if it < 15:
                if it % 2 == 1:
                    e(f"ds_read_b128 v[{V_RAW}:{V_RAW+3}], v{V_SCA} offset:{((it+1)//2)*448}")
                for g_ in seq[:2]: issue(g_)
                seq = seq[2:]
                if it % 2 == 1:
                    e("s_waitcnt lgkmcnt(0)")
                    for op in scale_ops(V_RAW, fast): e(op)
                e(f"s_waitcnt vmcnt({need(f'q{it+1}')})")
                dq_with((it + 1) % 4, (it + 1) % 2, seq)
                stamp(e)
                e(f"s_waitcnt vmcnt({need(f'x{it+1}')}) lgkmcnt(0)")
            else:
                stamp(e)
            e("s_barrier")
        if fast:
            e("s_branch L_pdone")
    e.label("L_pdone")
    e("s_mov_b64 exec, -1")
    e("s_waitcnt vmcnt(0)")
    e("s_barrier")

    e.label("L_store")
    e("v_and_b32 v10, 63, v0")
    e("v_mul_u32_u24 v11, 0x1250, v10")
    e("v_lshrrev_b32 v11, 16, v11")
    e("v_mul_u32_u24 v12, 14, v11")
    e("v_sub_u32 v12, v10, v12")
    e("v_lshl_add_u32 v13, v1, 5, v11")
    e(f"s_mov_b32 s27, {ESTRIDE}")
    e("v_mul_lo_u32 v14, v13, s27")
    e("v_lshl_add_u32 v14, v12, 4, v14")
    e(f"v_add_u32 v13, s{S_M0}, v13")
    e(f"s_mov_b32 s27, {OROW}")
    e("v_mul_lo_u32 v13, v13, s27")
    e(f"s_lshl_b32 s28, s{S_N0}, 1")
    e("v_lshl_add_u32 v13, v12, 4, v13")
    e("v_add_u32 v13, s28, v13")
    e("v_cmp_gt_u32 vcc, 56, v10")
    e("s_barrier")
    e("s_and_saveexec_b64 s[50:51], vcc")
    for i in range(8):
        b = 224 + i * 4
        e(f"ds_read_b128 v[{b}:{b+3}], v14 offset:{i*4*ESTRIDE}")
    for i in range(8):
        b = 224 + i * 4
        e(f"s_mov_b32 s24, {i*4*OROW}")
        e(f"s_waitcnt lgkmcnt({7-i})")
        e(f"buffer_store_dwordx4 v[{b}:{b+3}], v13, s[{S_O}:{S_O+3}], s24 offen")
    e("s_mov_b64 exec, s[50:51]")
    if STAMP:
        stamp(e)
        e("s_waitcnt vmcnt(0)")
        stamp(e)
        stamp(e, True)
        e("s_mov_b32 s64, s62")
        e("s_and_b32 s65, s63, 0xffff")
        e("s_mov_b32 s66, 0x10000000")
        e("s_mov_b32 s67, 0x00020000")
        e("v_lshlrev_b32 v1, 2, v0")
        e("s_lshl_b32 s24, s2, 11")
        e(f"buffer_store_dword v{C_ST}, v1, s[64:67], s24 offen")
    e.label("L_end")
    e("s_endpgm")

    out += e.lines
    out.append('.section .rodata,"a"')
    out.append(".p2align 6")
    out.append(".amdhsa_kernel standalone__w4a16_gemm_dequant__prompt_kernel")
    out.append("  .amdhsa_next_free_vgpr 256")
    out.append("  .amdhsa_next_free_sgpr 102")
    out.append("  .amdhsa_accum_offset 256")
    out.append("  .amdhsa_group_segment_fixed_size 0")
    out.append("  .amdhsa_kernarg_size 56")
    out.append("  .amdhsa_user_sgpr_count 2")
    out.append("  .amdhsa_user_sgpr_kernarg_segment_ptr 1")
    out.append("  .amdhsa_system_sgpr_workgroup_id_x 1")
    out.append("  .amdhsa_float_denorm_mode_32 3")
    out.append("  .amdhsa_float_denorm_mode_16_64 3")
    out.append(".end_amdhsa_kernel")
    return "\n".join(out) + "\n"


if __name__ == "__main__":
    dst = sys.argv[1] if len(sys.argv) > 1 else "standalone__w4a16_gemm_dequant__prompt.s"
    open(dst, "w").write(gen())
    print("wrote", dst)
```

```python
import sys, os
STAMP = bool(os.environ.get('STAMP'))
DBG = bool(os.environ.get('DBG'))
SKIP = os.environ.get('SKIP', '').split(',')
PRIO = int(os.environ.get('PRIO', '3'))
NOPF = bool(os.environ.get('NOPF'))
PFL = int(os.environ.get('PFL', '4'))
PPI = int(os.environ.get('PPI', '2'))
EMASK = int(os.environ.get('EMASK', '0'))
B0 = int(os.environ.get('B0', '0'))
PF0 = int(os.environ.get('PF0', '2'))
PF1 = int(os.environ.get('PF1', '3'))
ALT = int(os.environ.get('ALT', '1'))
DQ0 = int(os.environ.get('DQ0', '16'))

M, N, K = 2048, 3584, 1024
BM, BN, BK = 256, 112, 64
QROW = N * 4
XROW = K * 2
OROW = N * 2
XBUF = BM * BK * 2
WBUF = BN * BK * 2
LDS_W = 4 * XBUF
LDS_SC = LDS_W + 2 * WBUF
LDS_FLAG = LDS_SC + 3584
LDS_TOTAL = 163840
ESTRIDE = 240

C_RDW = 2
C_RDX = 4
C_ST = 8
C_T = 10
ACC = 16
def acc(t, m):
    b = ACC + (t * 4 + m) * 4
    return f"v[{b}:{b+3}]"
def acc1(t, m, r): return ACC + (t * 4 + m) * 4 + r
C_WF = 128
C_XF = 184
C_DUM = 216
C_E = 220
def wf(s, t): b = C_WF + s * 28 + t * 4; return f"v[{b}:{b+3}]"
def xf(s, m): b = C_XF + s * 16 + m * 4; return f"v[{b}:{b+3}]"
V_XOFF = 16
V_QOFF = 24
V_S = 32
V_P = 40
V_RAW = 56
V_WR = 60
V_SCA = 64
V_T = 70
V_Q = 128
def qreg(stage, i, c): return V_Q + stage * 32 + i * 4 + c

S_X, S_Q, S_O, S_SC, S_Z = 4, 8, 12, 16, 20
S_XK, S_QOFF, S_CNT, S_C24, S_M0B = 30, 32, 33, 34, 38
S_M0, S_N0, S_W, S_MT = 35, 36, 37, 39


class Emit:
    def __init__(self):
        self.lines = []
    def __call__(self, s):
        self.lines.append("    " + s)
    def label(self, s):
        self.lines.append(s + ":")


def stamp(e, real=False):
    if not STAMP: return
    e("s_memrealtime s[60:61]" if real else "s_memtime s[60:61]")
    e("s_waitcnt lgkmcnt(0)")
    e("s_mov_b32 m0, s58")
    e("s_nop 0")
    e(f"v_writelane_b32 v{C_ST}, s60, m0")
    e("s_add_u32 s58, s58, 1")


def dequant_ops(stage, fast):
    ops = []
    for c in range(4):
        if fast:
            for i in range(8):
                r = qreg(stage, i, c)
                ops.append(f"v_fma_mix_f32 v{r}, v{r}, v{V_S+c}, v{V_S+4+c} op_sel_hi:[1,0,0]")
            for j in range(4):
                ops.append(f"v_cvt_pk_bf16_f32 v{V_P+4*c+j}, v{qreg(stage,2*j,c)}, v{qreg(stage,2*j+1,c)}")
        else:
            for i in range(8):
                r = qreg(stage, i, c)
                ops.append(f"v_fma_mix_f32 v{r}, v{r}, s{S_C24}, v{V_S+4+c} op_sel_hi:[1,0,0]")
            for j in range(4):
                ops.append(f"v_cvt_pk_bf16_f32 v{V_P+4*c+j}, v{qreg(stage,2*j,c)}, v{qreg(stage,2*j+1,c)}")
            for j in range(4):
                ops.append(f"v_lshlrev_b32 v{qreg(stage,2*j,c)}, 16, v{V_P+4*c+j}")
                ops.append(f"v_and_b32 v{qreg(stage,2*j+1,c)}, 0xffff0000, v{V_P+4*c+j}")
            for i in range(8):
                r = qreg(stage, i, c)
                ops.append(f"v_mul_f32 v{r}, v{r}, v{V_S+c}")
            for j in range(4):
                ops.append(f"v_cvt_pk_bf16_f32 v{V_P+4*c+j}, v{qreg(stage,2*j,c)}, v{qreg(stage,2*j+1,c)}")
        ops.append(("W", c))
    return ops


def scale_ops(raw, fast):
    ops = []
    ops.append(f"v_lshlrev_b32 v{V_S}, 16, v{raw}")
    ops.append(f"v_and_b32 v{V_S+1}, 0xffff0000, v{raw}")
    ops.append(f"v_lshlrev_b32 v{V_S+2}, 16, v{raw+1}")
    ops.append(f"v_and_b32 v{V_S+3}, 0xffff0000, v{raw+1}")
    ops.append(f"v_lshlrev_b32 v{V_S+4}, 16, v{raw+2}")
    ops.append(f"v_and_b32 v{V_S+5}, 0xffff0000, v{raw+2}")
    ops.append(f"v_lshlrev_b32 v{V_S+6}, 16, v{raw+3}")
    ops.append(f"v_and_b32 v{V_S+7}, 0xffff0000, v{raw+3}")
    for c in range(4):
        if fast:
            ops.append(f"v_mul_f32 v{V_S+4+c}, -v{V_S+4+c}, v{V_S+c}")
            ops.append(f"v_mul_f32 v{V_S+c}, s{S_C24}, v{V_S+c}")
        else:
            ops.append(f"v_xor_b32 v{V_S+4+c}, 0x80000000, v{V_S+4+c}")
    return ops


def gen():
    e = Emit()
    hdr = open("standalone__w4a16_gemm_dequant__prompt.s.ref").read().split("\n")
    out = []
    for l in hdr:
        if l.startswith("; @launch"):
            out.append(f"; @launch grid=(256,1,1) block=(512,1,1) lds={LDS_TOTAL}")
            break
        out.append(l)
    out.append('.amdgcn_target "amdgcn-amd-amdhsa--gfx950"')
    out.append(".text")
    out.append(".globl standalone__w4a16_gemm_dequant__prompt_kernel")
    out.append(".p2align 8")
    out.append(".type standalone__w4a16_gemm_dequant__prompt_kernel,@function")
    out.append("standalone__w4a16_gemm_dequant__prompt_kernel:")

    def srd(d, lo, nbytes):
        e(f"s_mov_b32 s{d}, s{lo}")
        e(f"s_and_b32 s{d+1}, s{lo+1}, 0xffff")
        e(f"s_mov_b32 s{d+2}, {nbytes}")
        e(f"s_mov_b32 s{d+3}, 0x00020000")

    e("s_cmp_ge_u32 s2, 256")
    e("s_cbranch_scc1 L_end")
    e("s_load_dwordx8 s[40:47], s[0:1], 0")
    e("s_load_dwordx2 s[48:49], s[0:1], 32")
    if STAMP:
        e("s_mov_b32 s58, 0")
        e(f"v_mov_b32 v{C_ST}, 0")
        stamp(e, True)
        stamp(e)
        e(f"s_load_dwordx2 s[62:63], s[0:1], {40 if DBG else 48}")
    e("s_and_b32 s24, s2, 7")
    e("s_lshr_b32 s25, s2, 3")
    e("s_and_b32 s26, s25, 3")
    e("s_lshl_b32 s24, s24, 2")
    e("s_add_u32 s24, s24, s26")
    e(f"s_lshr_b32 s{S_MT}, s25, 2")
    e(f"s_mul_i32 s{S_N0}, s24, {BN}")
    e(f"s_lshl_b32 s{S_M0}, s{S_MT}, 8")
    e("v_lshrrev_b32 v1, 6, v0")
    e("v_and_b32 v10, 255, v0")
    e(f"v_readfirstlane_b32 s{S_W}, v1")
    e("v_lshrrev_b32 v11, 5, v10")
    e("v_and_b32 v12, 31, v10")
    e("v_min_u32 v12, 27, v12")
    e(f"s_mov_b32 s27, {8*QROW}")
    e("v_mul_lo_u32 v13, v11, s27")
    e(f"s_lshl_b32 s28, s{S_N0}, 2")
    e("v_lshl_add_u32 v13, v12, 4, v13")
    e("v_add_u32 v13, s28, v13")
    e(f"s_cmp_ge_u32 s{S_W}, 4")
    e("s_cbranch_scc1 L_prod")

    e(f"s_setprio {PRIO}")
    e(f"s_mul_i32 s27, s{S_MT}, {QROW}")
    e("v_add_u32 v13, s27, v13")
    e("v_bfe_u32 v10, v0, 3, 3")
    e("s_lshl_b32 s24, s2, 3")
    e("v_add_u32 v10, s24, v10")
    e("v_lshlrev_b32 v10, 11, v10")
    e("v_and_b32 v11, 7, v0")
    e("v_lshl_add_u32 v10, v11, 4, v10")
    e("v_lshl_add_u32 v12, v1, 7, v10")
    e("v_and_b32 v14, 15, v0")
    e("v_bfe_u32 v15, v0, 4, 2")
    e("v_lshrrev_b32 v10, 3, v14")
    e("v_xor_b32 v10, v10, v14")
    e("v_lshlrev_b32 v11, 8, v15")
    e(f"v_add_u32 v11, {LDS_W}, v11")
    e(f"v_lshl_add_u32 v{C_RDW}, v10, 4, v11")
    e("v_xor_b32 v10, 2, v10")
    e(f"v_lshl_add_u32 v{C_RDW+1}, v10, 4, v11")
    e("v_lshrrev_b32 v10, 1, v14")
    e("v_xor_b32 v10, v10, v15")
    e("v_lshlrev_b32 v11, 13, v1")
    e("v_lshl_add_u32 v11, v14, 7, v11")
    e(f"v_lshl_add_u32 v{C_RDX}, v10, 4, v11")
    e(f"v_xor_b32 v{C_RDX+1}, 64, v{C_RDX}")
    e(f"v_add_u32 v{C_RDX+2}, {2*XBUF}, v{C_RDX}")
    e(f"v_add_u32 v{C_RDX+3}, {2*XBUF}, v{C_RDX+1}")
    for i in range(0, 112, 2):
        e(f"v_mov_b64 v[{ACC+i}:{ACC+i+1}], 0")
    for i in range(0, 28, 2):
        e(f"v_mov_b64 v[{C_WF+28+i}:{C_WF+28+i+1}], 0")
    for i in range(0, 16, 2):
        e(f"v_mov_b64 v[{C_XF+16+i}:{C_XF+16+i+1}], 0")
    e("s_waitcnt lgkmcnt(0)")
    if os.environ.get('STAMP2'): stamp(e)
    srd(S_Q, 42, K * N * 4)
    srd(S_X, 40, M * K * 2)
    srd(S_O, 48, M * N * 2)
    if B0: e("s_barrier")
    def cpf(st):
        if st % 4 == 1:
            e(f"s_mov_b32 s24, {st*128}")
            e(f"buffer_load_dwordx4 v[{C_DUM}:{C_DUM+3}], v12, s[{S_X}:{S_X+3}], s24 offen")
        e(f"s_mov_b32 s25, {st*BK*QROW}")
        e(f"buffer_load_dwordx4 v[{C_DUM}:{C_DUM+3}], v13, s[{S_Q}:{S_Q+3}], s25 offen")
    for st in range(1, PF0 + 1): cpf(st)
    if os.environ.get('STAMP2'): stamp(e)
    if os.environ.get('STAMP2'): stamp(e)
    e(f"s_mov_b32 s{S_CNT}, 0")
    e("s_barrier")
    stamp(e)
    for st in range(PF0 + 1, PF0 + PF1 + 1): cpf(st)
    nxt = PF0 + PF1 + 1
    e(f"s_mov_b32 s{S_QOFF}, {nxt*BK*QROW}")
    e(f"s_mov_b32 s{S_XK}, {((nxt + 2)//4*4 + 1)*128}")
    e("s_barrier")
    stamp(e)
    def wread(s_set, t, s, buf):
        return f"ds_read_b128 {wf(s_set,t)}, v{C_RDW+(t&1)} offset:{buf*WBUF+t*2048+s*1024}"
    def xread(s_set, m, s, stage):
        return f"ds_read_b128 {xf(s_set,m)}, v{C_RDX+(stage>>1)*2+s} offset:{(stage&1)*XBUF+m*2048}"
    def mfmas(s_set, ts):
        if 'mfma' in SKIP: return ['s_nop 0' for t in ts for m in range(4)]
        return [f"v_mfma_f32_16x16x32_bf16 {acc(t,m)}, {wf(s_set,t)}, {xf(s_set,m)}, {acc(t,m)}" for t in ts for m in range(4)]
    def interleave(mf, fill, per=1):
        j = 0
        for i, m_ in enumerate(mf):
            e(m_)
            for _ in range(per):
                if j < len(fill):
                    e(fill[j]); j += 1
        while j < len(fill):
            e(fill[j]); j += 1
    e.label("L_cloop")
    for p in range(4):
        fill = [xread(0, m, 0, p) for m in range(4)] + [wread(0, t, 0, p % 2) for t in range(7)]
        for f in fill[:3]: e(f)
        interleave(mfmas(1, [4, 5, 6]), fill[3:])
        e("s_waitcnt lgkmcnt(0)")
        fill = [xread(1, m, 1, p) for m in range(4)] + [wread(1, t, 1, p % 2) for t in range(7)]
        interleave(mfmas(0, range(7)), fill)
        e("s_waitcnt lgkmcnt(0)")
        mf = mfmas(1, [0, 1, 2, 3])
        for m_ in mf[:2]: e(m_)
        if not NOPF:
            e(f"s_cmp_ge_u32 s{S_QOFF}, {16*BK*QROW}")
            e(f"s_cbranch_scc1 L_nopf{p}")
            for i in range(PPI):
                e(f"buffer_load_dwordx4 v[{C_DUM}:{C_DUM+3}], v13, s[{S_Q}:{S_Q+3}], s{S_QOFF} offen")
                e(f"s_add_u32 s{S_QOFF}, s{S_QOFF}, {BK*QROW}")
            if p % 2 == 0:
                e(f"buffer_load_dwordx4 v[{C_DUM}:{C_DUM+3}], v12, s[{S_X}:{S_X+3}], s{S_XK} offen")
                e(f"s_add_u32 s{S_XK}, s{S_XK}, 512")
            e.label(f"L_nopf{p}")
        for m_ in mf[2:]: e(m_)
        if not DBG or p == 3: stamp(e)
        if p == 3:
            e(f"s_add_u32 s{S_CNT}, s{S_CNT}, 1")
            e(f"s_cmp_lt_u32 s{S_CNT}, 4")
        e("s_barrier")
    e("s_cbranch_scc1 L_cloop")
    for m_ in mfmas(1, [4, 5, 6]): e(m_)
    e(f"s_mov_b32 s27, {ESTRIDE}")
    e("v_lshl_add_u32 v10, v1, 6, v14")
    e("v_mul_lo_u32 v10, v10, s27")
    e("v_lshl_add_u32 v10, v15, 3, v10")
    e("s_barrier")
    for m in range(4):
        for t in range(7):
            b = C_E + ((m * 7 + t) % 8) * 2
            e(f"v_cvt_pk_bf16_f32 v{b}, v{acc1(t,m,0)}, v{acc1(t,m,1)}")
            e(f"v_cvt_pk_bf16_f32 v{b+1}, v{acc1(t,m,2)}, v{acc1(t,m,3)}")
            e(f"ds_write_b64 v10, v[{b}:{b+1}] offset:{m*16*ESTRIDE + t*32}")
    e("s_waitcnt lgkmcnt(0)")
    e("s_branch L_store")

    e.label("L_prod")
    T = V_T
    vm = []
    def issue(lst):
        for f in lst:
            if isinstance(f, tuple):
                e(f[0])
                if f[1] is not None: vm.append(f[1])
            else:
                e(f)
    def need(tag):
        c = [i for i, t in enumerate(vm) if t == tag]
        if not c: return 63
        return min(63, len(vm) - 1 - max(c))
    def qload(step, stage, soff):
        if 'ldq' in SKIP: return []
        ins = []
        for i in range(8):
            r = qreg(stage, i, 0)
            ins.append((f"buffer_load_dwordx4 v[{r}:{r+3}], v{V_QOFF+i}, s[{S_Q}:{S_Q+3}], {soff} offen", f"q{step}"))
        return ins
    def xdma(step, soff):
        if 'ldx' in SKIP: return []
        ins = []
        for a in range(8):
            if a % 4 == 0:
                ins.append(f"s_add_u32 m0, s{S_M0B}, {(step%4)*XBUF + (a//4)*4096}")
                ins.append("s_nop 0")
            if EMASK: ins.append("s_mov_b64 exec, -1")
            ins.append((f"buffer_load_dwordx4 v{V_XOFF+a}, s[{S_X}:{S_X+3}], {soff} offen offset:{(a%4)*1024} lds", f"x{step}"))
            if EMASK: ins.append(("s_mov_b64 exec, s[56:57]", None))
        return ins
    e(f"v_mov_b32 v{V_QOFF}, v13")
    for i in range(1, 8):
        e(f"v_add_u32 v{V_QOFF+i}, {i*QROW}, v13")
    e(f"s_mov_b32 s27, {N*2}")
    e(f"v_mul_lo_u32 v{T}, v11, s27")
    e(f"s_lshl_b32 s28, s{S_N0}, 1")
    e(f"v_lshl_add_u32 v{T}, v12, 3, v{T}")
    e(f"v_add_u32 v{T}, s28, v{T}")
    e(f"v_and_b32 v{T+1}, 63, v0")
    e(f"v_bfe_u32 v{T+3}, v0, 4, 2")
    e(f"v_and_b32 v{T+2}, 3, v1")
    e(f"v_lshrrev_b32 v{T+8}, 3, v{T+1}")
    e(f"v_lshl_add_u32 v{T+8}, v{T+2}, 6, v{T+8}")
    e(f"v_add_u32 v{T+8}, s{S_M0}, v{T+8}")
    e(f"v_lshlrev_b32 v{T+8}, 11, v{T+8}")
    e(f"v_and_b32 v{T+9}, 7, v{T+1}")
    e(f"v_xor_b32 v{T+9}, v{T+9}, v{T+3}")
    e(f"v_xor_b32 v{T+10}, 4, v{T+9}")
    e(f"v_lshl_add_u32 v{T+9}, v{T+9}, 4, v{T+8}")
    e(f"v_lshl_add_u32 v{T+10}, v{T+10}, 4, v{T+8}")
    for a in range(8):
        e(f"v_add_u32 v{V_XOFF+a}, {a*8*XROW - (a%4)*1024}, v{T+9+(a&1)}")
    e(f"s_and_b32 s{S_M0B}, s{S_W}, 3")
    e(f"s_lshl_b32 s{S_M0B}, s{S_M0B}, 13")
    e("s_waitcnt lgkmcnt(0)")
    if os.environ.get('STAMP2'): stamp(e)
    srd(S_SC, 44, 8 * N * 2)
    srd(S_Z, 46, 8 * N * 2)
    issue([(f"buffer_load_dwordx2 v[{V_RAW}:{V_RAW+1}], v{T}, s[{S_SC}:{S_SC+3}], 0 offen", "sc"),
           (f"buffer_load_dwordx2 v[{V_RAW+2}:{V_RAW+3}], v{T}, s[{S_Z}:{S_Z+3}], 0 offen", "sc")])
    srd(S_Q, 42, K * N * 4)
    if EMASK:
        e("s_mov_b32 s56, 0x0fffffff")
        e("s_mov_b32 s57, 0x0fffffff")
        e("s_mov_b64 exec, s[56:57]")
    issue(qload(0, 0, "0"))
    srd(S_X, 40, M * K * 2)
    srd(S_O, 48, M * N * 2)
    issue(xdma(0, "0"))
    if B0: e("s_barrier")
    if os.environ.get('STAMP2'): stamp(e)
    e(f"v_lshrrev_b32 v{T+8}, 2, v12")
    e(f"v_and_b32 v{T+9}, 3, v12")
    e(f"v_and_b32 v{T+10}, 1, v{T+8}")
    e(f"v_lshlrev_b32 v{T+10}, 1, v{T+10}")
    e(f"v_lshrrev_b32 v{T+11}, 1, v{T+9}")
    e(f"v_add_u32 v{T+10}, v{T+10}, v{T+11}")
    e(f"v_lshl_add_u32 v{T+8}, v{T+8}, 3, v11")
    e(f"v_lshlrev_b32 v{T+8}, 8, v{T+8}")
    e(f"v_lshl_add_u32 v{T+8}, v{T+9}, 6, v{T+8}")
    e(f"v_add_u32 v{T+8}, {LDS_W}, v{T+8}")
    for c in range(4):
        e(f"v_xor_b32 v{T+11}, {c}, v{T+10}")
        e(f"v_lshl_add_u32 v{V_WR+c}, v{T+11}, 4, v{T+8}")
    e(f"v_lshlrev_b32 v{V_SCA}, 4, v12")
    e(f"v_add_u32 v{V_SCA}, {LDS_SC}, v{V_SCA}")
    e(f"v_mul_u32_u24 v{T+4}, 448, v11")
    e(f"v_add_u32 v{T+4}, v{T+4}, v{V_SCA}")
    e(f"s_mov_b32 s{S_C24}, 0x4b800000")
    e("s_mov_b32 s29, 0x43000000")
    e(f"v_lshlrev_b32 v{T+5}, 2, v{T+2}")
    e(f"v_add_u32 v{T+5}, {LDS_FLAG}, v{T+5}")
    e(f"s_waitcnt vmcnt({need('sc')})")
    if os.environ.get('STAMP2'): stamp(e)
    e(f"ds_write_b128 v{T+4}, v[{V_RAW}:{V_RAW+3}]")
    e("s_mov_b64 s[50:51], exec")
    r = V_RAW
    for h in range(2):
        e(f"v_lshlrev_b32 v{T+8}, 16, v{r+2+h}")
        e(f"v_and_b32 v{T+9}, 0xffff0000, v{r+2+h}")
        for x_ in (T+8, T+9):
            e(f"v_rndne_f32 v{T+10}, v{x_}")
            e(f"v_cmp_eq_f32 vcc, v{T+10}, v{x_}")
            e("s_and_b64 s[50:51], s[50:51], vcc")
            e(f"v_cmp_ge_f32 vcc, s29, abs(v{x_})")
            e("s_and_b64 s[50:51], s[50:51], vcc")
        e(f"v_bfe_u32 v{T+10}, v{r+h}, 7, 8")
        e(f"v_bfe_u32 v{T+11}, v{r+h}, 23, 8")
        e(f"v_subrev_u32 v{T+10}, 27, v{T+10}")
        e(f"v_subrev_u32 v{T+11}, 27, v{T+11}")
        e(f"v_max_u32 v{T+10}, v{T+10}, v{T+11}")
        e(f"v_cmp_gt_u32 vcc, 200, v{T+10}")
        e("s_and_b64 s[50:51], s[50:51], vcc")
    e("s_cmp_eq_u64 s[50:51], exec")
    e("s_cselect_b32 s29, 1, 0")
    e(f"v_mov_b32 v{T+6}, s29")
    e(f"ds_write_b32 v{T+5}, v{T+6}")
    e("s_waitcnt lgkmcnt(0)")
    e("s_barrier")
    stamp(e)
    e(f"v_mov_b32 v{T+5}, {LDS_FLAG}")
    e(f"ds_read_b128 v[{T+8}:{T+11}], v{T+5}")
    e(f"ds_read_b128 v[{V_RAW}:{V_RAW+3}], v{V_SCA}")
    e("s_waitcnt lgkmcnt(0)")
    e(f"v_and_b32 v{T+8}, v{T+8}, v{T+9}")
    e(f"v_and_b32 v{T+10}, v{T+10}, v{T+11}")
    e(f"v_and_b32 v{T+8}, v{T+8}, v{T+10}")
    e("s_nop 0")
    e(f"v_readfirstlane_b32 s29, v{T+8}")
    e(f"s_mov_b32 s{S_XK}, {3*128}")
    e(f"s_mov_b32 s{S_QOFF}, {4*BK*QROW}")
    e(f"s_mov_b32 s{S_CNT}, 0")
    e("s_cmp_eq_u32 s29, 1")
    e("s_cbranch_scc0 L_slow")
    vm_at_branch = list(vm)
    for fast in (True, False):
        vm[:] = vm_at_branch
        sfx = "f" if fast else "s"
        if not fast:
            e.label("L_slow")
        def wwrite(c, buf):
            return f"ds_write_b128 v{V_WR+c}, v[{V_P+4*c}:{V_P+4*c+3}] offset:{buf*WBUF}"
        def dequant(stage, buf):
            for op in dequant_ops(stage, fast):
                if isinstance(op, tuple):
                    if 'dsw' not in SKIP: e(wwrite(op[1], buf))
                elif 'valu' not in SKIP: e(op)
        for op in scale_ops(V_RAW, fast): e(op)
        def groups(lst):
            g_ = []; cur = []
            for f in lst:
                cur.append(f)
                if isinstance(f, tuple) and not (EMASK and f[1] is not None and f[1][0] == 'x'):
                    g_.append(cur); cur = []
            return g_
        def Q(st):
            return groups([f"s_mov_b32 s24, {st*BK*QROW}"] + qload(st, st % 4, "s24")) if st < 16 else []
        def X(st):
            return groups([f"s_mov_b32 s25, {st*128}"] + xdma(st, "s25")) if st < 16 else []
        def dq_with(stage, buf, seq):
            ops = dequant_ops(stage, fast)
            n = len(ops); k = len(seq); gi = 0
            for i, op in enumerate(ops):
                while gi < k and gi * n <= i * k:
                    issue(seq[gi]); gi += 1
                if isinstance(op, tuple):
                    if 'dsw' not in SKIP: e(wwrite(op[1], buf))
                elif 'valu' not in SKIP: e(op)
            while gi < k:
                issue(seq[gi]); gi += 1
        e(f"s_waitcnt vmcnt({need('q0')})")
        s1 = Q(1) + X(1)
        dq_with(0, 0, s1[:DQ0])
        e(f"s_waitcnt vmcnt({need('x0')}) lgkmcnt(0)")
        e("s_barrier")
        stamp(e)
        for g_ in s1[DQ0:]: issue(g_)
        sched = {0: Q(2) + X(2) + Q(3), 1: X(3) + Q(4) + X(4), 2: Q(5) + X(5) + Q(6), 3: X(6) + Q(7)}
        for it in range(16):
            def alt(a, b):
                if not ALT: return a + b
                o = []
                for i in range(max(len(a), len(b))):
                    if i < len(a): o.append(a[i])
                    if i < len(b): o.append(b[i])
                return o
            seq = sched[it] if it in sched else alt(X(it + 3), Q(it + 4))
            if it < 15:
                if it % 2 == 1:
                    e(f"ds_read_b128 v[{V_RAW}:{V_RAW+3}], v{V_SCA} offset:{((it+1)//2)*448}")
                for g_ in seq[:2]: issue(g_)
                seq = seq[2:]
                if it % 2 == 1:
                    e("s_waitcnt lgkmcnt(0)")
                    for op in scale_ops(V_RAW, fast): e(op)
                e(f"s_waitcnt vmcnt({need(f'q{it+1}')})")
                dq_with((it + 1) % 4, (it + 1) % 2, seq)
                if not DBG: stamp(e)
                e(f"s_waitcnt vmcnt({need(f'x{it+1}')}) lgkmcnt(0)")
            else:
                if not DBG: stamp(e)
            e("s_barrier")
        if fast:
            e("s_branch L_pdone")
    e.label("L_pdone")
    e("s_mov_b64 exec, -1")
    e("s_waitcnt vmcnt(0)")
    e("s_barrier")

    e.label("L_store")
    e("v_and_b32 v10, 63, v0")
    e("v_mul_u32_u24 v11, 0x1250, v10")
    e("v_lshrrev_b32 v11, 16, v11")
    e("v_mul_u32_u24 v12, 14, v11")
    e("v_sub_u32 v12, v10, v12")
    e("v_lshl_add_u32 v13, v1, 5, v11")
    e(f"s_mov_b32 s27, {ESTRIDE}")
    e("v_mul_lo_u32 v14, v13, s27")
    e("v_lshl_add_u32 v14, v12, 4, v14")
    e(f"v_add_u32 v13, s{S_M0}, v13")
    e(f"s_mov_b32 s27, {OROW}")
    e("v_mul_lo_u32 v13, v13, s27")
    e(f"s_lshl_b32 s28, s{S_N0}, 1")
    e("v_lshl_add_u32 v13, v12, 4, v13")
    e("v_add_u32 v13, s28, v13")
    e("v_cmp_gt_u32 vcc, 56, v10")
    e("s_barrier")
    e("s_and_saveexec_b64 s[50:51], vcc")
    for i in range(8):
        b = 224 + i * 4
        e(f"ds_read_b128 v[{b}:{b+3}], v14 offset:{i*4*ESTRIDE}")
    for i in range(8):
        b = 224 + i * 4
        e(f"s_mov_b32 s24, {i*4*OROW}")
        e(f"s_waitcnt lgkmcnt({7-i})")
        e(f"buffer_store_dwordx4 v[{b}:{b+3}], v13, s[{S_O}:{S_O+3}], s24 offen {os.environ.get('STF','').replace('_',' ')}")
    e("s_mov_b64 exec, s[50:51]")
    if STAMP:
        stamp(e)
        e("s_waitcnt vmcnt(0)")
        stamp(e)
        stamp(e, True)
        e("s_mov_b32 s64, s62")
        e("s_and_b32 s65, s63, 0xffff")
        e(f"s_mov_b32 s66, {64 if DBG else 0x10000000}")
        e("s_mov_b32 s67, 0x00020000")
        e("v_lshlrev_b32 v1, 2, v0")
        e("s_lshl_b32 s24, s2, 11")
        e(f"buffer_store_dword v{C_ST}, v1, s[64:67], s24 offen")
    e.label("L_end")
    e("s_endpgm")

    out += e.lines
    out.append('.section .rodata,"a"')
    out.append(".p2align 6")
    out.append(".amdhsa_kernel standalone__w4a16_gemm_dequant__prompt_kernel")
    out.append("  .amdhsa_next_free_vgpr 256")
    out.append("  .amdhsa_next_free_sgpr 102")
    out.append("  .amdhsa_accum_offset 256")
    out.append("  .amdhsa_group_segment_fixed_size 0")
    out.append("  .amdhsa_kernarg_size 56")
    out.append("  .amdhsa_user_sgpr_count 2")
    out.append("  .amdhsa_user_sgpr_kernarg_segment_ptr 1")
    out.append("  .amdhsa_system_sgpr_workgroup_id_x 1")
    out.append("  .amdhsa_float_denorm_mode_32 3")
    out.append("  .amdhsa_float_denorm_mode_16_64 3")
    out.append(".end_amdhsa_kernel")
    return "\n".join(out) + "\n"


if __name__ == "__main__":
    dst = sys.argv[1] if len(sys.argv) > 1 else "standalone__w4a16_gemm_dequant__prompt.s"
    open(dst, "w").write(gen())
    print("wrote", dst)
```

```python
import sys, os
STAMP = bool(os.environ.get('STAMP'))
S2 = bool(os.environ.get('STAMP2'))
PRIO = int(os.environ.get('PRIO', '3'))
H = int(os.environ.get('H', '2'))
SPIN = int(os.environ.get('SPIN', '64'))
FORCEFB = int(os.environ.get('FORCEFB', '0'))
WLEAD = int(os.environ.get('WLEAD', '2'))
WSTART = int(os.environ.get('WSTART', '1'))
STAG = 1
SHNT = ' nt' if int(os.environ.get('SHNT', '1')) else ''
QNT = ' nt' if int(os.environ.get('QNT', '1')) else ''
SH1AT = int(os.environ.get('SH1AT', '-1'))
XPF = int(os.environ.get('XPF', '1'))
R1 = int(os.environ.get('R1', '0'))
PUB1 = int(os.environ.get('PUB1', '1'))
assert H in (2,)

M, N, K = 2048, 3584, 1024
BM, BN, BK = 256, 112, 64
QROW = N * 4
XROW = K * 2
OROW = N * 2
XBUF = BM * BK * 2
WBUF = BN * BK * 2
XR, WR = 3, 4
LDS_W = XR * XBUF
LDS_TOTAL = LDS_W + WR * WBUF
ESTRIDE = 240
NPAIR = (16 - H) // 2
WS_FLAG = 8 << 20
WS_BYTES = WS_FLAG + 256 * 8 * 128
WS_STAMP = 16 << 20

C_RDW = 2
C_RDX = 4
C_ST = 8
ACC = 16
def acc(t, m):
    b = ACC + (t * 4 + m) * 4
    return f"v[{b}:{b+3}]"
def acc1(t, m, r): return ACC + (t * 4 + m) * 4 + r
C_WF = 128
C_XF = 184
C_E = 220
def wf(s, t): b = C_WF + s * 28 + t * 4; return f"v[{b}:{b+3}]"
def xf(s, m): b = C_XF + s * 16 + m * 4; return f"v[{b}:{b+3}]"
V_XOFF = 16
V_QOFF = 24
V_S = 32
V_P = 40
V_WR = 60
V_SOFF = 64
V_GW = 72
V_T = 76
V_SCO = 92
V_RAW = 96
V_Q = 116
V_DUM = 244
V_L16, V_FADDR, V_NONCE, V_FLAG, V_Z, V_NADDR = 2, 3, 4, 5, 6, 7
FB_STAGE = 3
def qreg(stage, i, c): return V_Q + stage * 32 + i * 4 + c
def raw(stage): return V_RAW + 4 * stage

S_X, S_Q, S_O, S_SC, S_Z, S_WS, S_DBG = 4, 8, 12, 16, 20, 64, 84
S_C24, S_M0B = 34, 38
S_M0, S_N0, S_W, S_MT, S_NT = 35, 36, 37, 39, 33
S_READY, S_FBK, S_IMGB, S_WM0, S_SHQ, S_SHW, S_FLG, S_SHS = 68, 69, 70, 71, 72, 73, 74, 75
S_RET = 76
S_FBQ, S_FBL, S_FBG = 78, 79, 80
S_CNT, S_NON = 81, 82


class Emit:
    def __init__(self):
        self.lines = []
    def __call__(self, s):
        self.lines.append("    " + s)
    def label(self, s):
        self.lines.append(s + ":")


def stamp(e, real=False):
    if not STAMP: return
    e("s_memrealtime s[60:61]" if real else "s_memtime s[60:61]")
    e("s_waitcnt lgkmcnt(0)")
    e("s_mov_b32 m0, s58")
    e("s_nop 0")
    e(f"v_writelane_b32 v{C_ST}, s60, m0")
    e("s_add_u32 s58, s58, 1")
def stamp2(e):
    if S2: stamp(e)


def dequant_ops(stage):
    ops = []
    r0 = raw(stage)
    ops.append(f"v_lshlrev_b32 v{V_S}, 16, v{r0}")
    ops.append(f"v_and_b32 v{V_S+1}, 0xffff0000, v{r0}")
    ops.append(f"v_lshlrev_b32 v{V_S+2}, 16, v{r0+1}")
    ops.append(f"v_and_b32 v{V_S+3}, 0xffff0000, v{r0+1}")
    ops.append(f"v_lshlrev_b32 v{V_S+4}, 16, v{r0+2}")
    ops.append(f"v_and_b32 v{V_S+5}, 0xffff0000, v{r0+2}")
    ops.append(f"v_lshlrev_b32 v{V_S+6}, 16, v{r0+3}")
    ops.append(f"v_and_b32 v{V_S+7}, 0xffff0000, v{r0+3}")
    for c in range(4):
        for i in range(8):
            r = qreg(stage, i, c)
            ops.append(f"v_fma_mix_f32 v{r}, v{r}, s{S_C24}, -v{V_S+4+c} op_sel_hi:[1,0,0]")
        for j in range(4):
            ops.append(f"v_cvt_pk_bf16_f32 v{V_P+4*c+j}, v{qreg(stage,2*j,c)}, v{qreg(stage,2*j+1,c)}")
        for j in range(4):
            ops.append(f"v_lshlrev_b32 v{qreg(stage,2*j,c)}, 16, v{V_P+4*c+j}")
            ops.append(f"v_and_b32 v{qreg(stage,2*j+1,c)}, 0xffff0000, v{V_P+4*c+j}")
        for i in range(8):
            r = qreg(stage, i, c)
            ops.append(f"v_mul_f32 v{r}, v{r}, v{V_S+c}")
        for j in range(4):
            ops.append(f"v_cvt_pk_bf16_f32 v{V_P+4*c+j}, v{qreg(stage,2*j,c)}, v{qreg(stage,2*j+1,c)}")
        ops.append(("W", c))
    return ops


def gen():
    e = Emit()
    hdr = open("standalone__w4a16_gemm_dequant__prompt.s.ref").read().split("\n")
    out = []
    for l in hdr:
        if l.startswith("; @launch"):
            out.append(f"; @launch grid=(256,1,1) block=(512,1,1) lds={LDS_TOTAL}")
            break
        out.append(l)
    out.append('.amdgcn_target "amdgcn-amd-amdhsa--gfx950"')
    out.append(".text")
    out.append(".globl standalone__w4a16_gemm_dequant__prompt_kernel")
    out.append(".p2align 8")
    out.append(".type standalone__w4a16_gemm_dequant__prompt_kernel,@function")
    out.append("standalone__w4a16_gemm_dequant__prompt_kernel:")

    def srd(d, lo, nbytes):
        e(f"s_mov_b32 s{d}, s{lo}")
        e(f"s_and_b32 s{d+1}, s{lo+1}, 0xffff")
        e(f"s_mov_b32 s{d+2}, {nbytes}")
        e(f"s_mov_b32 s{d+3}, 0x00020000")

    vm = []
    def issue(lst):
        for f in lst:
            if isinstance(f, tuple):
                e(f[0])
                if f[1] is not None: vm.append(f[1])
            else:
                e(f)
    def need(tag):
        c = [i for i, t in enumerate(vm) if t.rstrip('!') == tag]
        assert c, tag
        return min(63, sum(1 for t in vm[max(c) + 1:] if not t.endswith('!')))
    def groups(lst):
        g_ = []; cur = []
        for f in lst:
            cur.append(f)
            if isinstance(f, tuple) and f[1] is not None:
                g_.append(cur); cur = []
        if cur:
            g_[-1] += cur
        return g_
    def work(ops, seq):
        n = len(ops); k = len(seq); gi = 0
        for i, op in enumerate(ops):
            while gi < k and gi * n <= i * k:
                issue(seq[gi]); gi += 1
            issue([op])
        while gi < k:
            issue(seq[gi]); gi += 1
    def dq_lds(stage, slot):
        return [f"ds_write_b128 v{V_WR+op[1]}, v[{V_P+4*op[1]}:{V_P+4*op[1]+3}] offset:{slot*WBUF}" if isinstance(op, tuple) else op
                for op in dequant_ops(stage)]
    def SC(stage, soff, tag):
        r0 = raw(stage)
        return [(f"buffer_load_dwordx2 v[{r0}:{r0+1}], v{V_SCO}, s[{S_SC}:{S_SC+3}], {soff} offen", tag),
                (f"buffer_load_dwordx2 v[{r0+2}:{r0+3}], v{V_SCO}, s[{S_Z}:{S_Z+3}], {soff} offen", tag)]

    T = V_T
    e("s_cmp_ge_u32 s2, 256")
    e("s_cbranch_scc1 L_end")
    e("s_load_dwordx8 s[40:47], s[0:1], 0")
    e("s_load_dwordx4 s[48:51], s[0:1], 32")
    e("s_load_dwordx2 s[52:53], s[0:1], 48")
    e("s_memrealtime s[54:55]")
    if STAMP:
        e("s_mov_b32 s58, 0")
        e(f"v_mov_b32 v{C_ST}, 0")
        stamp(e, True)
        stamp(e)
    e("s_and_b32 s24, s2, 7")
    e("s_lshr_b32 s25, s2, 3")
    e("s_and_b32 s26, s25, 3")
    e("s_lshl_b32 s24, s24, 2")
    e(f"s_add_u32 s{S_NT}, s24, s26")
    e(f"s_lshr_b32 s{S_MT}, s25, 2")
    e(f"s_mul_i32 s{S_N0}, s{S_NT}, {BN}")
    e(f"s_lshl_b32 s{S_M0}, s{S_MT}, 8")
    e("v_lshrrev_b32 v1, 6, v0")
    e("v_and_b32 v10, 255, v0")
    e(f"v_readfirstlane_b32 s{S_W}, v1")
    e("v_lshrrev_b32 v11, 5, v10")
    e("v_and_b32 v12, 31, v10")
    e("v_min_u32 v12, 27, v12")
    e(f"s_lshl_b32 s28, s{S_N0}, 2")
    e("v_lshl_add_u32 v14, v12, 4, s28")
    e(f"v_lshrrev_b32 v{V_SCO}, 1, v14")
    e(f"s_mov_b32 s{S_C24}, 0x4b800000")
    e(f"s_cmp_ge_u32 s{S_W}, 4")
    e("s_cbranch_scc1 L_prod")

    def qoff_wr_setup():
        e(f"s_mov_b32 s27, {8*QROW}")
        e(f"v_mul_lo_u32 v13, v11, s27")
        e(f"v_add_u32 v{V_QOFF}, v14, v13")
        for i in range(1, 8):
            e(f"v_add_u32 v{V_QOFF+i}, {i*QROW}, v{V_QOFF}")
    def wr_setup():
        e(f"v_lshrrev_b32 v{T+8}, 2, v12")
        e(f"v_and_b32 v{T+9}, 3, v12")
        e(f"v_and_b32 v{T+10}, 1, v{T+8}")
        e(f"v_lshlrev_b32 v{T+10}, 1, v{T+10}")
        e(f"v_lshrrev_b32 v{T+11}, 1, v{T+9}")
        e(f"v_add_u32 v{T+10}, v{T+10}, v{T+11}")
        e(f"v_lshlrev_b32 v{T+8}, 8, v{T+8}")
        e(f"v_lshl_add_u32 v{T+8}, v{T+9}, 6, v{T+8}")
        e(f"v_mul_u32_u24 v{T+12}, 1792, v11")
        e(f"v_add_u32 v{T+12}, v{T+12}, v{T+8}")
        e(f"v_add_u32 v{T+12}, {LDS_W}, v{T+12}")
        for c in range(4):
            e(f"v_xor_b32 v{T+11}, {c}, v{T+10}")
            e(f"v_lshl_add_u32 v{V_WR+c}, v{T+11}, 4, v{T+12}")
    def Q(st, stage):
        ins = [f"s_mov_b32 s24, {st*BK*QROW}"]
        for i in range(8):
            r = qreg(stage, i, 0)
            ins.append((f"buffer_load_dwordx4 v[{r}:{r+3}], v{V_QOFF+i}, s[{S_Q}:{S_Q+3}], s24 offen{QNT}", f"q{st}"))
        return groups(ins)

    qoff_wr_setup()
    e("s_waitcnt lgkmcnt(0)")
    srd(S_SC, 44, 8 * N * 2)
    srd(S_Z, 46, 8 * N * 2)
    srd(S_Q, 42, K * N * 4)
    issue(SC(0, "0", "q0"))
    for g_ in Q(0, 0): issue(g_)
    for g_ in Q(1, 1): issue(g_)
    srd(S_O, 48, M * N * 2)
    wr_setup()
    e("v_and_b32 v14, 15, v0")
    e("v_bfe_u32 v15, v0, 4, 2")
    e("v_lshrrev_b32 v10, 3, v14")
    e("v_xor_b32 v10, v10, v14")
    e("v_mul_u32_u24 v11, 1792, v15")
    e(f"v_add_u32 v11, {LDS_W}, v11")
    e(f"v_lshl_add_u32 v{C_RDW}, v10, 4, v11")
    e("v_xor_b32 v10, 2, v10")
    e(f"v_lshl_add_u32 v{C_RDW+1}, v10, 4, v11")
    e("v_lshrrev_b32 v10, 1, v14")
    e("v_xor_b32 v10, v10, v15")
    e("v_lshlrev_b32 v11, 13, v1")
    e("v_lshl_add_u32 v11, v14, 7, v11")
    e(f"v_lshl_add_u32 v{C_RDX}, v10, 4, v11")
    e(f"v_xor_b32 v{C_RDX+1}, 64, v{C_RDX}")
    e(f"v_add_u32 v{C_RDX+2}, {2*XBUF}, v{C_RDX}")
    e(f"v_add_u32 v{C_RDX+3}, {2*XBUF}, v{C_RDX+1}")
    stamp(e)
    e(f"s_waitcnt vmcnt({need('q0')})")
    for r in range(4):
        e(f"v_mov_b32 v{raw(1)+r}, v{raw(0)+r}")
    work(dq_lds(0, 0), [])
    e(f"s_waitcnt vmcnt({need('q1')})")
    work(dq_lds(1, 1), [])
    e("s_waitcnt lgkmcnt(0)")
    for i in range(0, 112, 2):
        e(f"v_mov_b64 v[{ACC+i}:{ACC+i+1}], 0")
    for i in range(0, 28, 2):
        e(f"v_mov_b64 v[{C_WF+28+i}:{C_WF+28+i+1}], 0")
    for i in range(0, 16, 2):
        e(f"v_mov_b64 v[{C_XF+16+i}:{C_XF+16+i+1}], 0")
    e(f"s_setprio {PRIO}")
    e("s_barrier")
    stamp(e)
    def wread(s_set, t, s, slot):
        return f"ds_read_b128 {wf(s_set,t)}, v{C_RDW+(t&1)} offset:{slot*WBUF+s*7168+t*256}"
    def xread(s_set, m, s, slot):
        return f"ds_read_b128 {xf(s_set,m)}, v{C_RDX+(slot>>1)*2+s} offset:{(slot&1)*XBUF+m*2048}"
    def mfmas(s_set, ts):
        return [f"v_mfma_f32_16x16x32_bf16 {acc(t,m)}, {wf(s_set,t)}, {xf(s_set,m)}, {acc(t,m)}" for t in ts for m in range(4)]
    def interleave(mf, fill):
        j = 0
        for m_ in mf:
            e(m_)
            if j < len(fill):
                e(fill[j]); j += 1
        while j < len(fill):
            e(fill[j]); j += 1
    for it in range(16):
        fill = [xread(0, m, 0, it % XR) for m in range(4)] + [wread(0, t, 0, it % WR) for t in range(7)]
        for f in fill[:3]: e(f)
        interleave(mfmas(1, [4, 5, 6]), fill[3:])
        e("s_waitcnt lgkmcnt(0)")
        fill = [xread(1, m, 1, it % XR) for m in range(4)] + [wread(1, t, 1, it % WR) for t in range(7)]
        interleave(mfmas(0, range(7)), fill)
        e("s_waitcnt lgkmcnt(0)")
        interleave(mfmas(1, [0, 1, 2, 3]), [])
        stamp(e)
        e("s_barrier")
    for m_ in mfmas(1, [4, 5, 6]): e(m_)
    e(f"s_mov_b32 s27, {ESTRIDE}")
    e("v_lshl_add_u32 v10, v1, 6, v14")
    e("v_mul_lo_u32 v10, v10, s27")
    e("v_lshl_add_u32 v10, v15, 3, v10")
    for m in range(4):
        for t in range(7):
            b = C_E + ((m * 7 + t) % 8) * 2
            e(f"v_cvt_pk_bf16_f32 v{b}, v{acc1(t,m,0)}, v{acc1(t,m,1)}")
            e(f"v_cvt_pk_bf16_f32 v{b+1}, v{acc1(t,m,2)}, v{acc1(t,m,3)}")
            e(f"ds_write_b64 v10, v[{b}:{b+1}] offset:{m*16*ESTRIDE + t*32}")
    e("s_waitcnt lgkmcnt(0)")
    e("s_branch L_store")

    e.label("L_prod")
    vm.clear()
    def SH(rnd, stage):
        ins = [f"s_add_u32 s27, s{S_SHS}, {rnd*4*N*2}"] + SC(stage, "s27", f"sh{rnd}")
        ins.append(f"s_add_u32 s26, s{S_SHQ}, {rnd*8*BK*QROW}")
        for i in range(8):
            r = qreg(stage, i, 0)
            ins.append((f"buffer_load_dwordx4 v[{r}:{r+3}], v{V_SOFF+i}, s[{S_Q}:{S_Q+3}], s26 offen{SHNT}", f"sh{rnd}"))
        return groups(ins)
    def X(st):
        if st >= 16: return []
        ins = [f"s_mov_b32 s25, {st*128}"]
        for a in range(8):
            if a % 4 == 0:
                ins.append(f"s_add_u32 m0, s{S_M0B}, {(st%XR)*XBUF + (a//4)*4096}")
                ins.append("s_nop 0")
            ins.append((f"buffer_load_dwordx4 v{V_XOFF+a}, s[{S_X}:{S_X+3}], s25 offen offset:{(a%4)*1024} lds", f"x{st}"))
        return groups(ins)
    e(f"v_and_b32 v{T+1}, 63, v0")
    e(f"s_and_b32 s{S_W}, s{S_W}, 3")
    e(f"v_lshrrev_b32 v{T+4}, 5, v{T+1}")
    e(f"s_mov_b32 s27, {64*QROW}")
    e(f"v_mul_lo_u32 v{T+5}, v{T+4}, s27")
    e(f"s_mul_i32 s27, s{S_MT}, {8*QROW}")
    e(f"v_add3_u32 v{V_SOFF}, v{T+5}, s27, v14")
    for i in range(1, 8):
        e(f"v_add_u32 v{V_SOFF+i}, {i*QROW}, v{V_SOFF}")
    e(f"s_mul_i32 s{S_SHQ}, s{S_W}, {2*BK*QROW}")
    e(f"s_add_u32 s{S_SHQ}, s{S_SHQ}, {H*BK*QROW}")
    e(f"s_mul_i32 s{S_SHS}, s{S_W}, {N*2}")
    e(f"s_add_u32 s{S_SHS}, s{S_SHS}, {(H//2)*N*2}")
    e(f"s_lshl_b32 s24, s{S_NT}, 2")
    e(f"v_mov_b32 v{V_NADDR}, s24")
    e(f"s_or_b32 s25, s{S_W}, s{S_MT}")
    e(f"s_cmp_eq_u32 s25, 0")
    e("s_cselect_b32 s24, s24, 0x1000")
    e(f"v_mov_b32 v{T+6}, s24")
    e("s_waitcnt lgkmcnt(0)")
    stamp2(e)
    srd(S_DBG, 50, 256)
    e("s_or_b32 s54, s54, 1")
    e(f"v_mov_b32 v{T+7}, s54")
    e("s_mov_b64 exec, 1")
    issue([(f"buffer_store_dword v{T+7}, v{T+6}, s[{S_DBG}:{S_DBG+3}], 0 offen sc1", "ns")])
    e("s_mov_b64 exec, -1")
    srd(S_SC, 44, 8 * N * 2)
    srd(S_Z, 46, 8 * N * 2)
    srd(S_Q, 42, K * N * 4)
    srd(S_X, 40, M * K * 2)
    if STAG:
        e(f"s_cmp_ge_u32 s{S_W}, 2")
        e("s_cbranch_scc1 L_late_sh")
    for g_ in SH(0, 0): issue(g_)
    if STAG: e.label("L_late_sh")
    e(f"v_bfe_u32 v{T+3}, v0, 4, 2")
    e(f"v_and_b32 v{T+2}, 3, v1")
    e(f"v_lshrrev_b32 v{T+8}, 3, v{T+1}")
    e(f"v_lshl_add_u32 v{T+8}, v{T+2}, 6, v{T+8}")
    e(f"v_add_u32 v{T+8}, s{S_M0}, v{T+8}")
    e(f"v_lshlrev_b32 v{T+8}, 11, v{T+8}")
    e(f"v_and_b32 v{T+9}, 7, v{T+1}")
    e(f"v_xor_b32 v{T+9}, v{T+9}, v{T+3}")
    e(f"v_xor_b32 v{T+10}, 4, v{T+9}")
    e(f"v_lshl_add_u32 v{T+9}, v{T+9}, 4, v{T+8}")
    e(f"v_lshl_add_u32 v{T+10}, v{T+10}, 4, v{T+8}")
    for a in range(8):
        e(f"v_add_u32 v{V_XOFF+a}, {a*8*XROW - (a%4)*1024}, v{T+9+(a&1)}")
    e(f"s_lshl_b32 s{S_M0B}, s{S_W}, 13")
    e(f"v_lshrrev_b32 v{T+8}, 3, v{T+1}")
    e("s_lshl_b32 s24, s2, 3")
    e(f"v_add_u32 v{T+8}, s24, v{T+8}")
    e(f"v_lshlrev_b32 v{T+8}, 11, v{T+8}")
    e(f"v_and_b32 v{T+9}, 7, v{T+1}")
    e(f"v_lshl_add_u32 v{T+8}, v{T+9}, 4, v{T+8}")
    e(f"v_lshl_add_u32 v{T+15}, v{T+2}, 7, v{T+8}")
    def xpf(st):
        return [[f"s_mov_b32 s24, {st*128}",
                 (f"buffer_load_dwordx4 v[{V_DUM}:{V_DUM+3}], v{T+15}, s[{S_X}:{S_X+3}], s24 offen", "pf")]]
    if STAG:
        e(f"s_cmp_lt_u32 s{S_W}, 2")
        e("s_cbranch_scc1 L_early_sh")
        sv = list(vm)
        for g_ in X(0) + SH(0, 0): issue(g_)
        vm[:] = sv
        e.label("L_early_sh")
    stamp2(e)
    srd(S_O, 48, M * N * 2)
    srd(S_WS, 52, WS_BYTES)
    qoff_wr_setup()
    wr_setup()
    for pc in range(4):
        e(f"v_add_u32 v{T+11}, {pc*64}, v{T+1}")
        e(f"v_lshlrev_b32 v{V_GW+pc}, 4, v{T+11}")
        e(f"v_add_u32 v{T+13}, {WBUF-1792}, v{V_GW+pc}")
        e(f"v_cmp_le_u32 vcc, 112, v{T+11}")
        e("s_nop 1")
        e(f"v_cndmask_b32 v{V_GW+pc}, v{V_GW+pc}, v{T+13}, vcc")
    e(f"v_lshlrev_b32 v{V_L16}, 4, v{T+1}")
    e(f"s_mul_i32 s{S_IMGB}, s{S_NT}, {16*WBUF}")
    e(f"s_mul_i32 s24, s{S_MT}, 1792")
    e(f"s_add_u32 s{S_SHW}, s{S_IMGB}, s24")
    e(f"s_mul_i32 s24, s{S_W}, {2*WBUF}")
    e(f"s_add_u32 s{S_SHW}, s{S_SHW}, s24")
    e(f"s_add_u32 s{S_SHW}, s{S_SHW}, {H*WBUF}")
    e(f"s_mul_i32 s24, s{S_W}, 3584")
    e(f"s_add_u32 s{S_IMGB}, s{S_IMGB}, s24")
    e(f"s_add_u32 s{S_WM0}, s24, {LDS_W}")
    e(f"v_add_u32 v{T+14}, s{S_WM0}, v{V_L16}")
    e(f"s_lshl_b32 s24, s{S_NT}, 3")
    e(f"s_add_u32 s25, s24, s{S_MT}")
    e(f"s_lshl_b32 s25, s25, 3")
    e(f"s_add_u32 s25, s25, s{S_W}")
    e(f"s_lshl_b32 s25, s25, 7")
    e(f"s_add_u32 s{S_FLG}, s25, {WS_FLAG}")
    e(f"v_and_b32 v{T+8}, 1, v{T+1}")
    e(f"v_lshl_add_u32 v{T+8}, v{T+2}, 1, v{T+8}")
    e(f"v_add_u32 v{T+8}, s24, v{T+8}")
    e(f"v_lshrrev_b32 v{T+9}, 1, v{T+1}")
    e(f"v_min_u32 v{T+9}, {NPAIR-1}, v{T+9}")
    e(f"v_lshl_add_u32 v{T+8}, v{T+8}, 3, v{T+9}")
    e(f"v_lshlrev_b32 v{T+8}, 7, v{T+8}")
    e(f"v_add_u32 v{V_FADDR}, {WS_FLAG}, v{T+8}")
    e(f"v_mov_b32 v{V_Z}, 0")
    e(f"s_mov_b32 s{S_READY}, 0")
    e(f"s_mov_b32 s{S_FBK}, 0")
    uid = [0]
    def share_out(rnd, slot):
        e("s_waitcnt lgkmcnt(0)")
        for pc in range(4):
            e(f"ds_read_b128 v[{V_P+4*pc}:{V_P+4*pc+3}], v{T+14} offset:{slot*WBUF+pc*1024}")
        e(f"s_add_u32 s27, s{S_SHW}, {rnd*8*WBUF}")
        for pc in range(4):
            e(f"s_waitcnt lgkmcnt({3-pc})")
            if pc == 3: e("s_mov_b32 exec_hi, 0")
            issue([(f"buffer_store_dwordx4 v[{V_P+4*pc}:{V_P+4*pc+3}], v{V_GW+pc}, s[{S_WS}:{S_WS+3}], s27 offen sc1", f"st{rnd}")])
            if pc == 3: e("s_mov_b32 exec_hi, -1")
    def has_round(rnd):
        return max(0, min(4, NPAIR - 4 * rnd))
    def publish(rnd):
        nw = has_round(rnd)
        e(f"s_waitcnt vmcnt({need(f'st{rnd}')})")
        e(f"s_add_u32 s27, s{S_FLG}, {rnd*4*128}")
        if nw < 4:
            e(f"s_cmp_lt_u32 s{S_W}, {nw}")
            e(f"s_cselect_b32 s27, s27, 0x40000000")
        if FORCEFB:
            e(f"s_cmp_eq_u32 s{S_MT}, {FORCEFB-1}")
            e(f"s_cselect_b32 s27, 0x40000000, s27")
        e("s_mov_b64 exec, 1")
        issue([(f"buffer_store_dword v{V_NONCE}, v{V_Z}, s[{S_WS}:{S_WS+3}], s27 offen sc1", "fl")])
        e("s_mov_b64 exec, -1")
    def Wd(st):
        if st >= 16: return
        j = (st - H) // 2
        mask = 3 << (2 * j)
        uid[0] += 1
        u = uid[0]
        e(f"s_and_b32 s24, s{S_READY}, {mask}")
        e(f"s_cmp_eq_u32 s24, {mask}")
        e(f"s_cbranch_scc1 L_rdy{u}")
        e(f"s_cmp_eq_u32 s{S_NON}, 0")
        e(f"s_cbranch_scc1 L_fb{u}")
        e(f"s_mov_b32 s{S_CNT}, s{S_FBK}")
        e.label(f"L_poll{u}")
        e(f"buffer_load_dword v{V_FLAG}, v{V_FADDR}, s[{S_WS}:{S_WS+3}], 0 offen sc1")
        e("s_waitcnt vmcnt(0)")
        e(f"v_cmp_eq_u32 vcc, v{V_FLAG}, v{V_NONCE}")
        e(f"s_mov_b32 s{S_READY}, vcc_lo")
        e(f"s_and_b32 s24, s{S_READY}, {mask}")
        e(f"s_cmp_eq_u32 s24, {mask}")
        e(f"s_cbranch_scc1 L_rdy{u}")
        e("s_sleep 2")
        e(f"s_add_u32 s{S_CNT}, s{S_CNT}, 1")
        e(f"s_cmp_lt_u32 s{S_CNT}, {SPIN}")
        e(f"s_cbranch_scc1 L_poll{u}")
        e.label(f"L_fb{u}")
        e(f"s_mov_b32 s{S_FBK}, {SPIN}")
        e(f"s_mov_b32 s{S_FBQ}, {st*BK*QROW}")
        e(f"s_mov_b32 s{S_FBL}, {(st%WR)*WBUF}")
        e(f"s_mov_b32 s{S_FBG}, {(st//2)*N*2}")
        e(f"s_call_b64 s[{S_RET}:{S_RET+1}], L_fallback")
        e(f"s_branch L_done{u}")
        e.label(f"L_rdy{u}")
        e(f"s_add_u32 s27, s{S_IMGB}, {st*WBUF}")
        e(f"s_add_u32 m0, s{S_WM0}, {(st%WR)*WBUF}")
        e("s_nop 0")
        for pce in range(3):
            e(f"buffer_load_dwordx4 v{V_L16}, s[{S_WS}:{S_WS+3}], s27 offen offset:{pce*1024} sc1 lds")
        e("s_mov_b32 exec_hi, 0")
        e(f"buffer_load_dwordx4 v{V_L16}, s[{S_WS}:{S_WS+3}], s27 offen offset:3072 sc1 lds")
        e("s_mov_b32 exec_hi, -1")
        e.label(f"L_done{u}")
        for _ in range(4): vm.append(f"w{st}")

    e("s_waitcnt vmcnt(0)")
    stamp2(e)
    nl = [[(f"buffer_load_dword v{V_NONCE}, v{V_NADDR}, s[{S_DBG}:{S_DBG+3}], 0 offen sc1", "nl")]]
    issue(nl[0])
    work(dq_lds(0, 3), [])
    stamp2(e)
    share_out(0, 3)
    stamp2(e)
    e(f"s_cmp_ge_u32 s{S_W}, 2")
    e("s_cbranch_scc1 L_xb")
    sv = list(vm)
    for g_ in X(0): issue(g_)
    vm[:] = sv
    e("s_branch L_xc")
    e.label("L_xb")
    for g_ in X(1): issue(g_)
    e.label("L_xc")
    nsh = 0
    if SH1AT < 0:
        for g_ in SH(1, 1) + (xpf(3) + xpf(7) + xpf(11) + xpf(15) if XPF else []): issue(g_)
        nsh = 10 + (4 if XPF else 0)
    e(f"s_waitcnt vmcnt({8 + nsh})")
    e(f"v_readfirstlane_b32 s{S_NON}, v{V_NONCE}")
    e(f"s_cmp_lg_u32 s{S_NON}, 0")
    e("s_cbranch_scc1 L_n_got")
    e(f"s_mov_b32 s{S_CNT}, 0")
    e.label("L_n_poll")
    e(f"buffer_load_dword v{V_NONCE}, v{V_NADDR}, s[{S_DBG}:{S_DBG+3}], 0 offen sc1")
    e("s_waitcnt vmcnt(0)")
    e(f"v_readfirstlane_b32 s{S_NON}, v{V_NONCE}")
    e(f"s_cmp_lg_u32 s{S_NON}, 0")
    e("s_cbranch_scc1 L_n_got")
    e("s_sleep 2")
    e(f"s_add_u32 s{S_CNT}, s{S_CNT}, 1")
    e(f"s_cmp_lt_u32 s{S_CNT}, {SPIN}")
    e("s_cbranch_scc1 L_n_poll")
    e.label("L_n_got")
    publish(0)
    e(f"s_cmp_ge_u32 s{S_W}, 2")
    e("s_cbranch_scc1 L_xd")
    sv = list(vm)
    for g_ in X(1): issue(g_)
    vm[:] = sv + ['x1!'] * 8
    e(f"s_waitcnt vmcnt({9 + nsh})")
    e.label("L_xd")
    stamp(e)
    e("s_barrier")
    stamp(e)
    for it in range(16):
        xs = X(it + 2)
        todo = [st for st in range(H, 16) if min(max(st - WLEAD, WSTART), st - 1) == it]
        if it == 0:
            for g_ in xs + (xpf(3) if (XPF and SH1AT >= 0) else []): issue(g_)
            xs = []
        for st in todo:
            if st < it + 3: Wd(st)
        for g_ in xs: issue(g_)
        if it == R1 and has_round(1):
            e(f"s_waitcnt vmcnt({need('sh1')})")
            work(dq_lds(1, (it + 3) % WR), [])
            share_out(1, (it + 3) % WR)
        if it == PUB1 and has_round(1):
            publish(1)
        for st in todo:
            if st >= it + 3: Wd(st)
        if it == SH1AT:
            for g_ in SH(1, 1) + (xpf(7) + xpf(11) + xpf(15) if XPF else []): issue(g_)
        stamp(e)
        if it < 15:
            tags = [f"x{it+1}"] + ([f"w{it+1}"] if it + 1 >= H else [])
            e(f"s_waitcnt vmcnt({min(need(t) for t in tags)}) lgkmcnt(0)")
        e("s_barrier")
    e("s_branch L_store")

    e.label("L_fallback")
    r0 = raw(FB_STAGE)
    e(f"buffer_load_dwordx2 v[{r0}:{r0+1}], v{V_SCO}, s[{S_SC}:{S_SC+3}], s{S_FBG} offen")
    e(f"buffer_load_dwordx2 v[{r0+2}:{r0+3}], v{V_SCO}, s[{S_Z}:{S_Z+3}], s{S_FBG} offen")
    for i in range(8):
        r = qreg(FB_STAGE, i, 0)
        e(f"buffer_load_dwordx4 v[{r}:{r+3}], v{V_QOFF+i}, s[{S_Q}:{S_Q+3}], s{S_FBQ} offen")
    for c in range(4):
        e(f"v_add_u32 v{T+8+c}, s{S_FBL}, v{V_WR+c}")
    e("s_waitcnt vmcnt(0)")
    for op in dequant_ops(FB_STAGE):
        if isinstance(op, tuple):
            e(f"ds_write_b128 v{T+8+op[1]}, v[{V_P+4*op[1]}:{V_P+4*op[1]+3}]")
        else:
            e(op)
    e("s_waitcnt lgkmcnt(0)")
    e(f"s_setpc_b64 s[{S_RET}:{S_RET+1}]")

    e.label("L_store")
    e("v_and_b32 v10, 63, v0")
    e("v_mul_u32_u24 v11, 0x1250, v10")
    e("v_lshrrev_b32 v11, 16, v11")
    e("v_mul_u32_u24 v12, 14, v11")
    e("v_sub_u32 v12, v10, v12")
    e("v_lshl_add_u32 v13, v1, 5, v11")
    e(f"s_mov_b32 s27, {ESTRIDE}")
    e("v_mul_lo_u32 v14, v13, s27")
    e("v_lshl_add_u32 v14, v12, 4, v14")
    e(f"v_add_u32 v13, s{S_M0}, v13")
    e(f"s_mov_b32 s27, {OROW}")
    e("v_mul_lo_u32 v13, v13, s27")
    e(f"s_lshl_b32 s28, s{S_N0}, 1")
    e("v_lshl_add_u32 v13, v12, 4, v13")
    e("v_add_u32 v13, s28, v13")
    e("v_cmp_gt_u32 vcc, 56, v10")
    e("s_barrier")
    e("s_and_saveexec_b64 s[56:57], vcc")
    for i in range(8):
        b = 128 + i * 4
        e(f"ds_read_b128 v[{b}:{b+3}], v14 offset:{i*4*ESTRIDE}")
    for i in range(8):
        b = 128 + i * 4
        e(f"s_mov_b32 s24, {i*4*OROW}")
        e(f"s_waitcnt lgkmcnt({7-i})")
        e(f"buffer_store_dwordx4 v[{b}:{b+3}], v13, s[{S_O}:{S_O+3}], s24 offen")
    e("s_mov_b64 exec, s[56:57]")
    if STAMP:
        stamp(e)
        e("s_waitcnt vmcnt(0)")
        stamp(e)
        stamp(e, True)
        e("s_mov_b32 s64, s52")
        e("s_and_b32 s65, s53, 0xffff")
        e("s_mov_b32 s66, 0x10000000")
        e("s_mov_b32 s67, 0x00020000")
        e("v_lshlrev_b32 v1, 2, v0")
        e("s_lshl_b32 s24, s2, 11")
        e(f"s_add_u32 s24, s24, {WS_STAMP}")
        e(f"buffer_store_dword v{C_ST}, v1, s[64:67], s24 offen")
    e.label("L_end")
    e("s_endpgm")

    out += e.lines
    out.append('.section .rodata,"a"')
    out.append(".p2align 6")
    out.append(".amdhsa_kernel standalone__w4a16_gemm_dequant__prompt_kernel")
    out.append("  .amdhsa_next_free_vgpr 256")
    out.append("  .amdhsa_next_free_sgpr 102")
    out.append("  .amdhsa_accum_offset 256")
    out.append("  .amdhsa_group_segment_fixed_size 0")
    out.append("  .amdhsa_kernarg_size 56")
    out.append("  .amdhsa_user_sgpr_count 2")
    out.append("  .amdhsa_user_sgpr_kernarg_segment_ptr 1")
    out.append("  .amdhsa_system_sgpr_workgroup_id_x 1")
    out.append("  .amdhsa_float_denorm_mode_32 3")
    out.append("  .amdhsa_float_denorm_mode_16_64 3")
    out.append(".end_amdhsa_kernel")
    return "\n".join(out) + "\n"


if __name__ == "__main__":
    dst = sys.argv[1] if len(sys.argv) > 1 else "standalone__w4a16_gemm_dequant__prompt.s"
    open(dst, "w").write(gen())
    print("wrote", dst)
```

```python
import sys, os
STAMP = bool(os.environ.get('STAMP'))
DBG = bool(os.environ.get('DBG'))
SKIP = os.environ.get('SKIP', '').split(',')
PRIO = int(os.environ.get('PRIO', '3'))
NOPF = bool(os.environ.get('NOPF'))
PFL = int(os.environ.get('PFL', '4'))
PPI = int(os.environ.get('PPI', '2'))
EMASK = int(os.environ.get('EMASK', '0'))
B0 = int(os.environ.get('B0', '0'))
PF0 = int(os.environ.get('PF0', '1'))
PF1 = int(os.environ.get('PF1', '3'))
ALT = int(os.environ.get('ALT', '1'))
CUNR = int(os.environ.get('CUNR', '0'))
TLBT = int(os.environ.get('TLBT', '0'))
QPNT = ' nt' if int(os.environ.get('QPNT', '1')) else ''
QDNT = int(os.environ.get('QDNT', '0'))
XPNT = ' nt' if int(os.environ.get('XPNT', '0')) else ''
XDNT = ' nt' if int(os.environ.get('XDNT', '0')) else ''
DQ0 = int(os.environ.get('DQ0', '8'))

M, N, K = 2048, 3584, 1024
BM, BN, BK = 256, 112, 64
QROW = N * 4
XROW = K * 2
OROW = N * 2
XBUF = BM * BK * 2
WBUF = BN * BK * 2
LDS_W = 4 * XBUF
LDS_SC = LDS_W + 2 * WBUF
LDS_FLAG = LDS_SC + 3584
LDS_TOTAL = 163840
ESTRIDE = 240

C_RDW = 2
C_RDX = 4
C_ST = 8
C_T = 10
ACC = 16
def acc(t, m):
    b = ACC + (t * 4 + m) * 4
    return f"v[{b}:{b+3}]"
def acc1(t, m, r): return ACC + (t * 4 + m) * 4 + r
C_WF = 128
C_XF = 184
C_DUM = 216
C_E = 220
def wf(s, t): b = C_WF + s * 28 + t * 4; return f"v[{b}:{b+3}]"
def xf(s, m): b = C_XF + s * 16 + m * 4; return f"v[{b}:{b+3}]"
V_XOFF = 16
V_QOFF = 24
V_S = 32
V_P = 40
V_RAW = 56
V_WR = 60
V_SCA = 64
V_T = 70
V_Q = 128
def qreg(stage, i, c): return V_Q + stage * 32 + i * 4 + c

S_X, S_Q, S_O, S_SC, S_Z = 4, 8, 12, 16, 20
S_XK, S_QOFF, S_CNT, S_C24, S_M0B = 30, 32, 33, 34, 38
S_M0, S_N0, S_W, S_MT = 35, 36, 37, 39


class Emit:
    def __init__(self):
        self.lines = []
    def __call__(self, s):
        self.lines.append("    " + s)
    def label(self, s):
        self.lines.append(s + ":")


def stamp(e, real=False):
    if not STAMP: return
    e("s_memrealtime s[60:61]" if real else "s_memtime s[60:61]")
    e("s_waitcnt lgkmcnt(0)")
    e("s_mov_b32 m0, s58")
    e("s_nop 0")
    e(f"v_writelane_b32 v{C_ST}, s60, m0")
    e("s_add_u32 s58, s58, 1")


def dequant_ops(stage, fast):
    ops = []
    for c in range(4):
        if fast:
            for i in range(8):
                r = qreg(stage, i, c)
                ops.append(f"v_fma_mix_f32 v{r}, v{r}, v{V_S+c}, v{V_S+4+c} op_sel_hi:[1,0,0]")
            for j in range(4):
                ops.append(f"v_cvt_pk_bf16_f32 v{V_P+4*c+j}, v{qreg(stage,2*j,c)}, v{qreg(stage,2*j+1,c)}")
        else:
            for i in range(8):
                r = qreg(stage, i, c)
                ops.append(f"v_fma_mix_f32 v{r}, v{r}, s{S_C24}, v{V_S+4+c} op_sel_hi:[1,0,0]")
            for j in range(4):
                ops.append(f"v_cvt_pk_bf16_f32 v{V_P+4*c+j}, v{qreg(stage,2*j,c)}, v{qreg(stage,2*j+1,c)}")
            for j in range(4):
                ops.append(f"v_lshlrev_b32 v{qreg(stage,2*j,c)}, 16, v{V_P+4*c+j}")
                ops.append(f"v_and_b32 v{qreg(stage,2*j+1,c)}, 0xffff0000, v{V_P+4*c+j}")
            for i in range(8):
                r = qreg(stage, i, c)
                ops.append(f"v_mul_f32 v{r}, v{r}, v{V_S+c}")
            for j in range(4):
                ops.append(f"v_cvt_pk_bf16_f32 v{V_P+4*c+j}, v{qreg(stage,2*j,c)}, v{qreg(stage,2*j+1,c)}")
        ops.append(("W", c))
    return ops


def scale_ops(raw, fast):
    ops = []
    ops.append(f"v_lshlrev_b32 v{V_S}, 16, v{raw}")
    ops.append(f"v_and_b32 v{V_S+1}, 0xffff0000, v{raw}")
    ops.append(f"v_lshlrev_b32 v{V_S+2}, 16, v{raw+1}")
    ops.append(f"v_and_b32 v{V_S+3}, 0xffff0000, v{raw+1}")
    ops.append(f"v_lshlrev_b32 v{V_S+4}, 16, v{raw+2}")
    ops.append(f"v_and_b32 v{V_S+5}, 0xffff0000, v{raw+2}")
    ops.append(f"v_lshlrev_b32 v{V_S+6}, 16, v{raw+3}")
    ops.append(f"v_and_b32 v{V_S+7}, 0xffff0000, v{raw+3}")
    for c in range(4):
        if fast:
            ops.append(f"v_mul_f32 v{V_S+4+c}, -v{V_S+4+c}, v{V_S+c}")
            ops.append(f"v_mul_f32 v{V_S+c}, s{S_C24}, v{V_S+c}")
        else:
            ops.append(f"v_xor_b32 v{V_S+4+c}, 0x80000000, v{V_S+4+c}")
    return ops


def gen():
    e = Emit()
    hdr = open("standalone__w4a16_gemm_dequant__prompt.s.ref").read().split("\n")
    out = []
    for l in hdr:
        if l.startswith("; @launch"):
            out.append(f"; @launch grid=(256,1,1) block=(512,1,1) lds={LDS_TOTAL}")
            break
        out.append(l)
    out.append('.amdgcn_target "amdgcn-amd-amdhsa--gfx950"')
    out.append(".text")
    out.append(".globl standalone__w4a16_gemm_dequant__prompt_kernel")
    out.append(".p2align 8")
    out.append(".type standalone__w4a16_gemm_dequant__prompt_kernel,@function")
    out.append("standalone__w4a16_gemm_dequant__prompt_kernel:")

    def srd(d, lo, nbytes):
        e(f"s_mov_b32 s{d}, s{lo}")
        e(f"s_and_b32 s{d+1}, s{lo+1}, 0xffff")
        e(f"s_mov_b32 s{d+2}, {nbytes}")
        e(f"s_mov_b32 s{d+3}, 0x00020000")

    e("s_cmp_ge_u32 s2, 256")
    e("s_cbranch_scc1 L_end")
    e("s_load_dwordx8 s[40:47], s[0:1], 0")
    e("s_load_dwordx2 s[48:49], s[0:1], 32")
    if STAMP:
        e("s_mov_b32 s58, 0")
        e(f"v_mov_b32 v{C_ST}, 0")
        stamp(e, True)
        stamp(e)
        e(f"s_load_dwordx2 s[62:63], s[0:1], {40 if DBG else 48}")
    e("s_and_b32 s24, s2, 7")
    e("s_lshr_b32 s25, s2, 3")
    e("s_and_b32 s26, s25, 3")
    e("s_lshl_b32 s24, s24, 2")
    e("s_add_u32 s24, s24, s26")
    e(f"s_lshr_b32 s{S_MT}, s25, 2")
    e(f"s_mul_i32 s{S_N0}, s24, {BN}")
    e(f"s_lshl_b32 s{S_M0}, s{S_MT}, 8")
    e("v_lshrrev_b32 v1, 6, v0")
    e("v_and_b32 v10, 255, v0")
    e(f"v_readfirstlane_b32 s{S_W}, v1")
    e("v_lshrrev_b32 v11, 5, v10")
    e("v_and_b32 v12, 31, v10")
    e("v_min_u32 v12, 27, v12")
    e(f"s_mov_b32 s27, {8*QROW}")
    e("v_mul_lo_u32 v13, v11, s27")
    e(f"s_lshl_b32 s28, s{S_N0}, 2")
    e("v_lshl_add_u32 v13, v12, 4, v13")
    e("v_add_u32 v13, s28, v13")
    e(f"s_cmp_ge_u32 s{S_W}, 4")
    e("s_cbranch_scc1 L_prod")

    e(f"s_setprio {PRIO}")
    e(f"s_mul_i32 s27, s{S_MT}, {QROW}")
    e("v_add_u32 v13, s27, v13")
    e("v_bfe_u32 v10, v0, 3, 3")
    e("s_lshl_b32 s24, s2, 3")
    e("v_add_u32 v10, s24, v10")
    e("v_lshlrev_b32 v10, 11, v10")
    e("v_and_b32 v11, 7, v0")
    e("v_lshl_add_u32 v10, v11, 4, v10")
    e("v_lshl_add_u32 v12, v1, 7, v10")
    e("v_and_b32 v14, 15, v0")
    e("v_bfe_u32 v15, v0, 4, 2")
    e("v_lshrrev_b32 v10, 3, v14")
    e("v_xor_b32 v10, v10, v14")
    e("v_lshlrev_b32 v11, 8, v15")
    e(f"v_add_u32 v11, {LDS_W}, v11")
    e(f"v_lshl_add_u32 v{C_RDW}, v10, 4, v11")
    e("v_xor_b32 v10, 2, v10")
    e(f"v_lshl_add_u32 v{C_RDW+1}, v10, 4, v11")
    e("v_lshrrev_b32 v10, 1, v14")
    e("v_xor_b32 v10, v10, v15")
    e("v_lshlrev_b32 v11, 13, v1")
    e("v_lshl_add_u32 v11, v14, 7, v11")
    e(f"v_lshl_add_u32 v{C_RDX}, v10, 4, v11")
    e(f"v_xor_b32 v{C_RDX+1}, 64, v{C_RDX}")
    e(f"v_add_u32 v{C_RDX+2}, {2*XBUF}, v{C_RDX}")
    e(f"v_add_u32 v{C_RDX+3}, {2*XBUF}, v{C_RDX+1}")
    for i in range(0, 112, 2):
        e(f"v_mov_b64 v[{ACC+i}:{ACC+i+1}], 0")
    for i in range(0, 28, 2):
        e(f"v_mov_b64 v[{C_WF+28+i}:{C_WF+28+i+1}], 0")
    for i in range(0, 16, 2):
        e(f"v_mov_b64 v[{C_XF+16+i}:{C_XF+16+i+1}], 0")
    e("s_waitcnt lgkmcnt(0)")
    if os.environ.get('STAMP2'): stamp(e)
    srd(S_Q, 42, K * N * 4)
    srd(S_X, 40, M * K * 2)
    srd(S_O, 48, M * N * 2)
    if TLBT:
        e("v_and_b32 v10, 63, v0")
        e("v_lshl_add_u32 v10, v1, 6, v10")
        e(f"v_add_u32 v10, s{S_M0}, v10")
        e(f"s_mov_b32 s27, {OROW}")
        e("v_mul_lo_u32 v10, v10, s27")
        e(f"s_lshl_b32 s27, s{S_N0}, 1")
        e("s_mov_b64 exec, 1")
        e(f"buffer_load_dword v{C_DUM}, v10, s[{S_O}:{S_O+3}], s27 offen")
        e("s_mov_b64 exec, -1")
    if B0: e("s_barrier")
    def cpf(st):
        if st % 4 == 1:
            e(f"s_mov_b32 s24, {st*128}")
            e(f"buffer_load_dwordx4 v[{C_DUM}:{C_DUM+3}], v12, s[{S_X}:{S_X+3}], s24 offen{XPNT}")
        e(f"s_mov_b32 s25, {st*BK*QROW}")
        e(f"buffer_load_dwordx4 v[{C_DUM}:{C_DUM+3}], v13, s[{S_Q}:{S_Q+3}], s25 offen{QPNT}")
    for st in range(1, PF0 + 1): cpf(st)
    if os.environ.get('STAMP2'): stamp(e)
    if os.environ.get('STAMP2'): stamp(e)
    e(f"s_mov_b32 s{S_CNT}, 0")
    e("s_barrier")
    stamp(e)
    for st in range(PF0 + 1, PF0 + PF1 + 1): cpf(st)
    nxt = PF0 + PF1 + 1
    e(f"s_mov_b32 s{S_QOFF}, {nxt*BK*QROW}")
    e(f"s_mov_b32 s{S_XK}, {((nxt + 2)//4*4 + 1)*128}")
    e("s_barrier")
    stamp(e)
    def wread(s_set, t, s, buf):
        return f"ds_read_b128 {wf(s_set,t)}, v{C_RDW+(t&1)} offset:{buf*WBUF+t*2048+s*1024}"
    def xread(s_set, m, s, stage):
        return f"ds_read_b128 {xf(s_set,m)}, v{C_RDX+(stage>>1)*2+s} offset:{(stage&1)*XBUF+m*2048}"
    def mfmas(s_set, ts):
        if 'mfma' in SKIP: return ['s_nop 0' for t in ts for m in range(4)]
        return [f"v_mfma_f32_16x16x32_bf16 {acc(t,m)}, {wf(s_set,t)}, {xf(s_set,m)}, {acc(t,m)}" for t in ts for m in range(4)]
    def interleave(mf, fill, per=1):
        j = 0
        for i, m_ in enumerate(mf):
            e(m_)
            for _ in range(per):
                if j < len(fill):
                    e(fill[j]); j += 1
        while j < len(fill):
            e(fill[j]); j += 1
    e.label("L_cloop")
    for pp in range(16 if CUNR else 4):
        p = pp % 4
        fill = [xread(0, m, 0, p) for m in range(4)] + [wread(0, t, 0, p % 2) for t in range(7)]
        for f in fill[:3]: e(f)
        interleave(mfmas(1, [4, 5, 6]), fill[3:])
        e("s_waitcnt lgkmcnt(0)")
        fill = [xread(1, m, 1, p) for m in range(4)] + [wread(1, t, 1, p % 2) for t in range(7)]
        interleave(mfmas(0, range(7)), fill)
        e("s_waitcnt lgkmcnt(0)")
        mf = mfmas(1, [0, 1, 2, 3])
        for m_ in mf[:2]: e(m_)
        if not NOPF:
            e(f"s_cmp_ge_u32 s{S_QOFF}, {16*BK*QROW}")
            e(f"s_cbranch_scc1 L_nopf{pp}")
            for i in range(PPI):
                e(f"buffer_load_dwordx4 v[{C_DUM}:{C_DUM+3}], v13, s[{S_Q}:{S_Q+3}], s{S_QOFF} offen{QPNT}")
                e(f"s_add_u32 s{S_QOFF}, s{S_QOFF}, {BK*QROW}")
            if p % 2 == 0:
                e(f"buffer_load_dwordx4 v[{C_DUM}:{C_DUM+3}], v12, s[{S_X}:{S_X+3}], s{S_XK} offen{XPNT}")
                e(f"s_add_u32 s{S_XK}, s{S_XK}, 512")
            e.label(f"L_nopf{pp}")
        for m_ in mf[2:]: e(m_)
        if not DBG or p == 3: stamp(e)
        if p == 3:
            e(f"s_add_u32 s{S_CNT}, s{S_CNT}, 1")
            e(f"s_cmp_lt_u32 s{S_CNT}, 4")
        e("s_barrier")
    if not CUNR: e("s_cbranch_scc1 L_cloop")
    for m_ in mfmas(1, [4, 5, 6]): e(m_)
    e(f"s_mov_b32 s27, {ESTRIDE}")
    e("v_lshl_add_u32 v10, v1, 6, v14")
    e("v_mul_lo_u32 v10, v10, s27")
    e("v_lshl_add_u32 v10, v15, 3, v10")
    e("s_barrier")
    for m in range(4):
        for t in range(7):
            b = C_E + ((m * 7 + t) % 8) * 2
            e(f"v_cvt_pk_bf16_f32 v{b}, v{acc1(t,m,0)}, v{acc1(t,m,1)}")
            e(f"v_cvt_pk_bf16_f32 v{b+1}, v{acc1(t,m,2)}, v{acc1(t,m,3)}")
            e(f"ds_write_b64 v10, v[{b}:{b+1}] offset:{m*16*ESTRIDE + t*32}")
    e("s_waitcnt lgkmcnt(0)")
    e("s_branch L_store")

    e.label("L_prod")
    T = V_T
    vm = []
    def issue(lst):
        for f in lst:
            if isinstance(f, tuple):
                e(f[0])
                if f[1] is not None: vm.append(f[1])
            else:
                e(f)
    def need(tag):
        c = [i for i, t in enumerate(vm) if t == tag]
        if not c: return 63
        return min(63, len(vm) - 1 - max(c))
    def qload(step, stage, soff):
        if 'ldq' in SKIP: return []
        ins = []
        for i in range(8):
            r = qreg(stage, i, 0)
            ins.append((f"buffer_load_dwordx4 v[{r}:{r+3}], v{V_QOFF+i}, s[{S_Q}:{S_Q+3}], {soff} offen{' nt' if step < QDNT else ''}", f"q{step}"))
        return ins
    def xdma(step, soff):
        if 'ldx' in SKIP: return []
        ins = []
        for a in range(8):
            if a % 4 == 0:
                ins.append(f"s_add_u32 m0, s{S_M0B}, {(step%4)*XBUF + (a//4)*4096}")
                ins.append("s_nop 0")
            if EMASK: ins.append("s_mov_b64 exec, -1")
            ins.append((f"buffer_load_dwordx4 v{V_XOFF+a}, s[{S_X}:{S_X+3}], {soff} offen offset:{(a%4)*1024}{XDNT} lds", f"x{step}"))
            if EMASK: ins.append(("s_mov_b64 exec, s[56:57]", None))
        return ins
    e(f"v_mov_b32 v{V_QOFF}, v13")
    for i in range(1, 8):
        e(f"v_add_u32 v{V_QOFF+i}, {i*QROW}, v13")
    e(f"s_mov_b32 s27, {N*2}")
    e(f"v_mul_lo_u32 v{T}, v11, s27")
    e(f"s_lshl_b32 s28, s{S_N0}, 1")
    e(f"v_lshl_add_u32 v{T}, v12, 3, v{T}")
    e(f"v_add_u32 v{T}, s28, v{T}")
    e(f"v_and_b32 v{T+1}, 63, v0")
    e(f"v_bfe_u32 v{T+3}, v0, 4, 2")
    e(f"v_and_b32 v{T+2}, 3, v1")
    e(f"v_lshrrev_b32 v{T+8}, 3, v{T+1}")
    e(f"v_lshl_add_u32 v{T+8}, v{T+2}, 6, v{T+8}")
    e(f"v_add_u32 v{T+8}, s{S_M0}, v{T+8}")
    e(f"v_lshlrev_b32 v{T+8}, 11, v{T+8}")
    e(f"v_and_b32 v{T+9}, 7, v{T+1}")
    e(f"v_xor_b32 v{T+9}, v{T+9}, v{T+3}")
    e(f"v_xor_b32 v{T+10}, 4, v{T+9}")
    e(f"v_lshl_add_u32 v{T+9}, v{T+9}, 4, v{T+8}")
    e(f"v_lshl_add_u32 v{T+10}, v{T+10}, 4, v{T+8}")
    for a in range(8):
        e(f"v_add_u32 v{V_XOFF+a}, {a*8*XROW - (a%4)*1024}, v{T+9+(a&1)}")
    e(f"s_and_b32 s{S_M0B}, s{S_W}, 3")
    e(f"s_lshl_b32 s{S_M0B}, s{S_M0B}, 13")
    e("s_waitcnt lgkmcnt(0)")
    if os.environ.get('STAMP2'): stamp(e)
    srd(S_SC, 44, 8 * N * 2)
    srd(S_Z, 46, 8 * N * 2)
    issue([(f"buffer_load_dwordx2 v[{V_RAW}:{V_RAW+1}], v{T}, s[{S_SC}:{S_SC+3}], 0 offen", "sc"),
           (f"buffer_load_dwordx2 v[{V_RAW+2}:{V_RAW+3}], v{T}, s[{S_Z}:{S_Z+3}], 0 offen", "sc")])
    srd(S_Q, 42, K * N * 4)
    if EMASK:
        e("s_mov_b32 s56, 0x0fffffff")
        e("s_mov_b32 s57, 0x0fffffff")
        e("s_mov_b64 exec, s[56:57]")
    issue(qload(0, 0, "0"))
    srd(S_X, 40, M * K * 2)
    srd(S_O, 48, M * N * 2)
    issue(xdma(0, "0"))
    if B0: e("s_barrier")
    if os.environ.get('STAMP2'): stamp(e)
    e(f"v_lshrrev_b32 v{T+8}, 2, v12")
    e(f"v_and_b32 v{T+9}, 3, v12")
    e(f"v_and_b32 v{T+10}, 1, v{T+8}")
    e(f"v_lshlrev_b32 v{T+10}, 1, v{T+10}")
    e(f"v_lshrrev_b32 v{T+11}, 1, v{T+9}")
    e(f"v_add_u32 v{T+10}, v{T+10}, v{T+11}")
    e(f"v_lshl_add_u32 v{T+8}, v{T+8}, 3, v11")
    e(f"v_lshlrev_b32 v{T+8}, 8, v{T+8}")
    e(f"v_lshl_add_u32 v{T+8}, v{T+9}, 6, v{T+8}")
    e(f"v_add_u32 v{T+8}, {LDS_W}, v{T+8}")
    for c in range(4):
        e(f"v_xor_b32 v{T+11}, {c}, v{T+10}")
        e(f"v_lshl_add_u32 v{V_WR+c}, v{T+11}, 4, v{T+8}")
    e(f"v_lshlrev_b32 v{V_SCA}, 4, v12")
    e(f"v_add_u32 v{V_SCA}, {LDS_SC}, v{V_SCA}")
    e(f"v_mul_u32_u24 v{T+4}, 448, v11")
    e(f"v_add_u32 v{T+4}, v{T+4}, v{V_SCA}")
    e(f"s_mov_b32 s{S_C24}, 0x4b800000")
    e("s_mov_b32 s29, 0x43000000")
    e(f"v_lshlrev_b32 v{T+5}, 2, v{T+2}")
    e(f"v_add_u32 v{T+5}, {LDS_FLAG}, v{T+5}")
    e(f"s_waitcnt vmcnt({need('sc')})")
    if os.environ.get('STAMP2'): stamp(e)
    e(f"ds_write_b128 v{T+4}, v[{V_RAW}:{V_RAW+3}]")
    e("s_mov_b64 s[50:51], exec")
    r = V_RAW
    for h in range(2):
        e(f"v_lshlrev_b32 v{T+8}, 16, v{r+2+h}")
        e(f"v_and_b32 v{T+9}, 0xffff0000, v{r+2+h}")
        for x_ in (T+8, T+9):
            e(f"v_rndne_f32 v{T+10}, v{x_}")
            e(f"v_cmp_eq_f32 vcc, v{T+10}, v{x_}")
            e("s_and_b64 s[50:51], s[50:51], vcc")
            e(f"v_cmp_ge_f32 vcc, s29, abs(v{x_})")
            e("s_and_b64 s[50:51], s[50:51], vcc")
        e(f"v_bfe_u32 v{T+10}, v{r+h}, 7, 8")
        e(f"v_bfe_u32 v{T+11}, v{r+h}, 23, 8")
        e(f"v_subrev_u32 v{T+10}, 27, v{T+10}")
        e(f"v_subrev_u32 v{T+11}, 27, v{T+11}")
        e(f"v_max_u32 v{T+10}, v{T+10}, v{T+11}")
        e(f"v_cmp_gt_u32 vcc, 200, v{T+10}")
        e("s_and_b64 s[50:51], s[50:51], vcc")
    e("s_cmp_eq_u64 s[50:51], exec")
    e("s_cselect_b32 s29, 1, 0")
    e(f"v_mov_b32 v{T+6}, s29")
    e(f"ds_write_b32 v{T+5}, v{T+6}")
    e("s_waitcnt lgkmcnt(0)")
    e("s_barrier")
    stamp(e)
    e(f"v_mov_b32 v{T+5}, {LDS_FLAG}")
    e(f"ds_read_b128 v[{T+8}:{T+11}], v{T+5}")
    e(f"ds_read_b128 v[{V_RAW}:{V_RAW+3}], v{V_SCA}")
    e("s_waitcnt lgkmcnt(0)")
    e(f"v_and_b32 v{T+8}, v{T+8}, v{T+9}")
    e(f"v_and_b32 v{T+10}, v{T+10}, v{T+11}")
    e(f"v_and_b32 v{T+8}, v{T+8}, v{T+10}")
    e("s_nop 0")
    e(f"v_readfirstlane_b32 s29, v{T+8}")
    e(f"s_mov_b32 s{S_XK}, {3*128}")
    e(f"s_mov_b32 s{S_QOFF}, {4*BK*QROW}")
    e(f"s_mov_b32 s{S_CNT}, 0")
    e("s_cmp_eq_u32 s29, 1")
    e("s_cbranch_scc0 L_slow")
    vm_at_branch = list(vm)
    for fast in (True, False):
        vm[:] = vm_at_branch
        sfx = "f" if fast else "s"
        if not fast:
            e.label("L_slow")
        def wwrite(c, buf):
            return f"ds_write_b128 v{V_WR+c}, v[{V_P+4*c}:{V_P+4*c+3}] offset:{buf*WBUF}"
        def dequant(stage, buf):
            for op in dequant_ops(stage, fast):
                if isinstance(op, tuple):
                    if 'dsw' not in SKIP: e(wwrite(op[1], buf))
                elif 'valu' not in SKIP: e(op)
        for op in scale_ops(V_RAW, fast): e(op)
        def groups(lst):
            g_ = []; cur = []
            for f in lst:
                cur.append(f)
                if isinstance(f, tuple) and not (EMASK and f[1] is not None and f[1][0] == 'x'):
                    g_.append(cur); cur = []
            return g_
        def Q(st):
            return groups([f"s_mov_b32 s24, {st*BK*QROW}"] + qload(st, st % 4, "s24")) if st < 16 else []
        def X(st):
            return groups([f"s_mov_b32 s25, {st*128}"] + xdma(st, "s25")) if st < 16 else []
        def dq_with(stage, buf, seq):
            ops = dequant_ops(stage, fast)
            n = len(ops); k = len(seq); gi = 0
            for i, op in enumerate(ops):
                while gi < k and gi * n <= i * k:
                    issue(seq[gi]); gi += 1
                if isinstance(op, tuple):
                    if 'dsw' not in SKIP: e(wwrite(op[1], buf))
                elif 'valu' not in SKIP: e(op)
            while gi < k:
                issue(seq[gi]); gi += 1
        e(f"s_waitcnt vmcnt({need('q0')})")
        s1 = Q(1) + X(1)
        dq_with(0, 0, s1[:DQ0])
        e(f"s_waitcnt vmcnt({need('x0')}) lgkmcnt(0)")
        e("s_barrier")
        stamp(e)
        for g_ in s1[DQ0:]: issue(g_)
        sched = {0: Q(2) + X(2) + Q(3), 1: X(3) + Q(4) + X(4), 2: Q(5) + X(5) + Q(6), 3: X(6) + Q(7)}
        for it in range(16):
            def alt(a, b):
                if not ALT: return a + b
                o = []
                for i in range(max(len(a), len(b))):
                    if i < len(a): o.append(a[i])
                    if i < len(b): o.append(b[i])
                return o
            seq = sched[it] if it in sched else alt(X(it + 3), Q(it + 4))
            if it < 15:
                if it % 2 == 1:
                    e(f"ds_read_b128 v[{V_RAW}:{V_RAW+3}], v{V_SCA} offset:{((it+1)//2)*448}")
                for g_ in seq[:2]: issue(g_)
                seq = seq[2:]
                if it % 2 == 1:
                    e("s_waitcnt lgkmcnt(0)")
                    for op in scale_ops(V_RAW, fast): e(op)
                e(f"s_waitcnt vmcnt({need(f'q{it+1}')})")
                dq_with((it + 1) % 4, (it + 1) % 2, seq)
                if not DBG: stamp(e)
                e(f"s_waitcnt vmcnt({need(f'x{it+1}')}) lgkmcnt(0)")
            else:
                if not DBG: stamp(e)
            e("s_barrier")
        if fast:
            e("s_branch L_pdone")
    e.label("L_pdone")
    e("s_mov_b64 exec, -1")
    e("s_waitcnt vmcnt(0)")
    e("s_barrier")

    e.label("L_store")
    e("v_and_b32 v10, 63, v0")
    e("v_mul_u32_u24 v11, 0x1250, v10")
    e("v_lshrrev_b32 v11, 16, v11")
    e("v_mul_u32_u24 v12, 14, v11")
    e("v_sub_u32 v12, v10, v12")
    e("v_lshl_add_u32 v13, v1, 5, v11")
    e(f"s_mov_b32 s27, {ESTRIDE}")
    e("v_mul_lo_u32 v14, v13, s27")
    e("v_lshl_add_u32 v14, v12, 4, v14")
    e(f"v_add_u32 v13, s{S_M0}, v13")
    e(f"s_mov_b32 s27, {OROW}")
    e("v_mul_lo_u32 v13, v13, s27")
    e(f"s_lshl_b32 s28, s{S_N0}, 1")
    e("v_lshl_add_u32 v13, v12, 4, v13")
    e("v_add_u32 v13, s28, v13")
    e("v_cmp_gt_u32 vcc, 56, v10")
    e("s_barrier")
    e("s_and_saveexec_b64 s[50:51], vcc")
    for i in range(8):
        b = 224 + i * 4
        e(f"ds_read_b128 v[{b}:{b+3}], v14 offset:{i*4*ESTRIDE}")
    for i in range(8):
        b = 224 + i * 4
        e(f"s_mov_b32 s24, {i*4*OROW}")
        e(f"s_waitcnt lgkmcnt({7-i})")
        e(f"buffer_store_dwordx4 v[{b}:{b+3}], v13, s[{S_O}:{S_O+3}], s24 offen {os.environ.get('STF','').replace('_',' ')}")
    e("s_mov_b64 exec, s[50:51]")
    if STAMP:
        stamp(e)
        e("s_waitcnt vmcnt(0)")
        stamp(e)
        stamp(e, True)
        e("s_mov_b32 s64, s62")
        e("s_and_b32 s65, s63, 0xffff")
        e(f"s_mov_b32 s66, {64 if DBG else 0x10000000}")
        e("s_mov_b32 s67, 0x00020000")
        e("v_lshlrev_b32 v1, 2, v0")
        e("s_lshl_b32 s24, s2, 11")
        e(f"buffer_store_dword v{C_ST}, v1, s[64:67], s24 offen")
    e.label("L_end")
    e("s_endpgm")

    out += e.lines
    out.append('.section .rodata,"a"')
    out.append(".p2align 6")
    out.append(".amdhsa_kernel standalone__w4a16_gemm_dequant__prompt_kernel")
    out.append("  .amdhsa_next_free_vgpr 256")
    out.append("  .amdhsa_next_free_sgpr 102")
    out.append("  .amdhsa_accum_offset 256")
    out.append("  .amdhsa_group_segment_fixed_size 0")
    out.append("  .amdhsa_kernarg_size 56")
    out.append("  .amdhsa_user_sgpr_count 2")
    out.append("  .amdhsa_user_sgpr_kernarg_segment_ptr 1")
    out.append("  .amdhsa_system_sgpr_workgroup_id_x 1")
    out.append("  .amdhsa_float_denorm_mode_32 3")
    out.append("  .amdhsa_float_denorm_mode_16_64 3")
    out.append(".end_amdhsa_kernel")
    return "\n".join(out) + "\n"


if __name__ == "__main__":
    dst = sys.argv[1] if len(sys.argv) > 1 else "standalone__w4a16_gemm_dequant__prompt.s"
    open(dst, "w").write(gen())
    print("wrote", dst)
```

```python
import sys, os
CPF = int(os.environ.get('CPF', '0'))
STAMP = bool(os.environ.get('STAMP'))
S2 = bool(os.environ.get('STAMP2'))
PRIO = int(os.environ.get('PRIO', '3'))
H = int(os.environ.get('H', '2'))
SPIN = int(os.environ.get('SPIN', '64'))
FORCEFB = int(os.environ.get('FORCEFB', '0'))
WLEAD = int(os.environ.get('WLEAD', '2'))
WSTART = int(os.environ.get('WSTART', '1'))
STAG = 1
TLBT = int(os.environ.get('TLBT', '1'))
SHNT = ' nt' if int(os.environ.get('SHNT', '1')) else ''
QNT = ' nt' if int(os.environ.get('QNT', '1')) else ''
SH1AT = int(os.environ.get('SH1AT', '-1'))
XPF = int(os.environ.get('XPF', '1'))
R1 = int(os.environ.get('R1', '0'))
PUB1 = int(os.environ.get('PUB1', '1'))
assert H in (2,)

M, N, K = 2048, 3584, 1024
BM, BN, BK = 256, 112, 64
QROW = N * 4
XROW = K * 2
OROW = N * 2
XBUF = BM * BK * 2
WBUF = BN * BK * 2
XR, WR = 3, 4
LDS_W = XR * XBUF
LDS_TOTAL = LDS_W + WR * WBUF
ESTRIDE = 240
NPAIR = (16 - H) // 2
WS_FLAG = 8 << 20
WS_BYTES = WS_FLAG + 256 * 8 * 128
WS_STAMP = 16 << 20

C_RDW = 2
C_RDX = 4
C_ST = 8
ACC = 16
def acc(t, m):
    b = ACC + (t * 4 + m) * 4
    return f"v[{b}:{b+3}]"
def acc1(t, m, r): return ACC + (t * 4 + m) * 4 + r
C_WF = 128
C_XF = 184
C_E = 220
def wf(s, t): b = C_WF + s * 28 + t * 4; return f"v[{b}:{b+3}]"
def xf(s, m): b = C_XF + s * 16 + m * 4; return f"v[{b}:{b+3}]"
V_XOFF = 16
V_QOFF = 24
V_S = 32
V_P = 40
V_WR = 60
V_SOFF = 64
V_GW = 72
V_T = 76
V_SCO = 92
V_RAW = 96
V_Q = 116
V_DUM = 244
V_L16, V_FADDR, V_NONCE, V_FLAG, V_Z, V_NADDR = 2, 3, 4, 5, 6, 7
FB_STAGE = 3
def qreg(stage, i, c): return V_Q + stage * 32 + i * 4 + c
def raw(stage): return V_RAW + 4 * stage

S_X, S_Q, S_O, S_SC, S_Z, S_WS, S_DBG = 4, 8, 12, 16, 20, 64, 84
S_C24, S_M0B = 34, 38
S_M0, S_N0, S_W, S_MT, S_NT = 35, 36, 37, 39, 33
S_READY, S_FBK, S_IMGB, S_WM0, S_SHQ, S_SHW, S_FLG, S_SHS = 68, 69, 70, 71, 72, 73, 74, 75
S_RET = 76
S_FBQ, S_FBL, S_FBG = 78, 79, 80
S_CNT, S_NON = 81, 82


class Emit:
    def __init__(self):
        self.lines = []
    def __call__(self, s):
        self.lines.append("    " + s)
    def label(self, s):
        self.lines.append(s + ":")


def stamp(e, real=False):
    if not STAMP: return
    e("s_memrealtime s[60:61]" if real else "s_memtime s[60:61]")
    e("s_waitcnt lgkmcnt(0)")
    e("s_mov_b32 m0, s58")
    e("s_nop 0")
    e(f"v_writelane_b32 v{C_ST}, s60, m0")
    e("s_add_u32 s58, s58, 1")
def stamp2(e):
    if S2: stamp(e)


def dequant_ops(stage):
    ops = []
    r0 = raw(stage)
    ops.append(f"v_lshlrev_b32 v{V_S}, 16, v{r0}")
    ops.append(f"v_and_b32 v{V_S+1}, 0xffff0000, v{r0}")
    ops.append(f"v_lshlrev_b32 v{V_S+2}, 16, v{r0+1}")
    ops.append(f"v_and_b32 v{V_S+3}, 0xffff0000, v{r0+1}")
    ops.append(f"v_lshlrev_b32 v{V_S+4}, 16, v{r0+2}")
    ops.append(f"v_and_b32 v{V_S+5}, 0xffff0000, v{r0+2}")
    ops.append(f"v_lshlrev_b32 v{V_S+6}, 16, v{r0+3}")
    ops.append(f"v_and_b32 v{V_S+7}, 0xffff0000, v{r0+3}")
    for c in range(4):
        for i in range(8):
            r = qreg(stage, i, c)
            ops.append(f"v_fma_mix_f32 v{r}, v{r}, s{S_C24}, -v{V_S+4+c} op_sel_hi:[1,0,0]")
        for j in range(4):
            ops.append(f"v_cvt_pk_bf16_f32 v{V_P+4*c+j}, v{qreg(stage,2*j,c)}, v{qreg(stage,2*j+1,c)}")
        for j in range(4):
            ops.append(f"v_lshlrev_b32 v{qreg(stage,2*j,c)}, 16, v{V_P+4*c+j}")
            ops.append(f"v_and_b32 v{qreg(stage,2*j+1,c)}, 0xffff0000, v{V_P+4*c+j}")
        for i in range(8):
            r = qreg(stage, i, c)
            ops.append(f"v_mul_f32 v{r}, v{r}, v{V_S+c}")
        for j in range(4):
            ops.append(f"v_cvt_pk_bf16_f32 v{V_P+4*c+j}, v{qreg(stage,2*j,c)}, v{qreg(stage,2*j+1,c)}")
        ops.append(("W", c))
    return ops


def gen():
    e = Emit()
    hdr = open("standalone__w4a16_gemm_dequant__prompt.s.ref").read().split("\n")
    out = []
    for l in hdr:
        if l.startswith("; @launch"):
            out.append(f"; @launch grid=(256,1,1) block=(512,1,1) lds={LDS_TOTAL}")
            break
        out.append(l)
    out.append('.amdgcn_target "amdgcn-amd-amdhsa--gfx950"')
    out.append(".text")
    out.append(".globl standalone__w4a16_gemm_dequant__prompt_kernel")
    out.append(".p2align 8")
    out.append(".type standalone__w4a16_gemm_dequant__prompt_kernel,@function")
    out.append("standalone__w4a16_gemm_dequant__prompt_kernel:")

    def srd(d, lo, nbytes):
        e(f"s_mov_b32 s{d}, s{lo}")
        e(f"s_and_b32 s{d+1}, s{lo+1}, 0xffff")
        e(f"s_mov_b32 s{d+2}, {nbytes}")
        e(f"s_mov_b32 s{d+3}, 0x00020000")

    vm = []
    def issue(lst):
        for f in lst:
            if isinstance(f, tuple):
                e(f[0])
                if f[1] is not None: vm.append(f[1])
            else:
                e(f)
    def need(tag):
        c = [i for i, t in enumerate(vm) if t.rstrip('!') == tag]
        assert c, tag
        return min(63, sum(1 for t in vm[max(c) + 1:] if not t.endswith('!')))
    def groups(lst):
        g_ = []; cur = []
        for f in lst:
            cur.append(f)
            if isinstance(f, tuple) and f[1] is not None:
                g_.append(cur); cur = []
        if cur:
            g_[-1] += cur
        return g_
    def work(ops, seq):
        n = len(ops); k = len(seq); gi = 0
        for i, op in enumerate(ops):
            while gi < k and gi * n <= i * k:
                issue(seq[gi]); gi += 1
            issue([op])
        while gi < k:
            issue(seq[gi]); gi += 1
    def dq_lds(stage, slot):
        return [f"ds_write_b128 v{V_WR+op[1]}, v[{V_P+4*op[1]}:{V_P+4*op[1]+3}] offset:{slot*WBUF}" if isinstance(op, tuple) else op
                for op in dequant_ops(stage)]
    def SC(stage, soff, tag):
        r0 = raw(stage)
        return [(f"buffer_load_dwordx2 v[{r0}:{r0+1}], v{V_SCO}, s[{S_SC}:{S_SC+3}], {soff} offen", tag),
                (f"buffer_load_dwordx2 v[{r0+2}:{r0+3}], v{V_SCO}, s[{S_Z}:{S_Z+3}], {soff} offen", tag)]

    T = V_T
    e("s_cmp_ge_u32 s2, 256")
    e("s_cbranch_scc1 L_end")
    if CPF:
        e("s_getpc_b64 s[90:91]")
        e("v_lshlrev_b32 v2, 7, v0")
        e(f"v_cmp_gt_u32 vcc, {CPF*1024}, v2")
        e("s_and_saveexec_b64 s[92:93], vcc")
        e("s_cbranch_execz L_nocpf")
        e("global_load_dword v255, v2, s[90:91]")
        e.label("L_nocpf")
        e("s_mov_b64 exec, s[92:93]")
    e("s_load_dwordx8 s[40:47], s[0:1], 0")
    e("s_load_dwordx4 s[48:51], s[0:1], 32")
    e("s_load_dwordx2 s[52:53], s[0:1], 48")
    e("s_memrealtime s[54:55]")
    if STAMP:
        e("s_mov_b32 s58, 0")
        e(f"v_mov_b32 v{C_ST}, 0")
        stamp(e, True)
        stamp(e)
    e("s_and_b32 s24, s2, 7")
    e("s_lshr_b32 s25, s2, 3")
    e("s_and_b32 s26, s25, 3")
    e("s_lshl_b32 s24, s24, 2")
    e(f"s_add_u32 s{S_NT}, s24, s26")
    e(f"s_lshr_b32 s{S_MT}, s25, 2")
    e(f"s_mul_i32 s{S_N0}, s{S_NT}, {BN}")
    e(f"s_lshl_b32 s{S_M0}, s{S_MT}, 8")
    e("v_lshrrev_b32 v1, 6, v0")
    e("v_and_b32 v10, 255, v0")
    e(f"v_readfirstlane_b32 s{S_W}, v1")
    e("v_lshrrev_b32 v11, 5, v10")
    e("v_and_b32 v12, 31, v10")
    e("v_min_u32 v12, 27, v12")
    e(f"s_lshl_b32 s28, s{S_N0}, 2")
    e("v_lshl_add_u32 v14, v12, 4, s28")
    e(f"v_lshrrev_b32 v{V_SCO}, 1, v14")
    e(f"s_mov_b32 s{S_C24}, 0x4b800000")
    e(f"s_cmp_ge_u32 s{S_W}, 4")
    e("s_cbranch_scc1 L_prod")

    def qoff_wr_setup():
        e(f"s_mov_b32 s27, {8*QROW}")
        e(f"v_mul_lo_u32 v13, v11, s27")
        e(f"v_add_u32 v{V_QOFF}, v14, v13")
        for i in range(1, 8):
            e(f"v_add_u32 v{V_QOFF+i}, {i*QROW}, v{V_QOFF}")
    def wr_setup():
        e(f"v_lshrrev_b32 v{T+8}, 2, v12")
        e(f"v_and_b32 v{T+9}, 3, v12")
        e(f"v_and_b32 v{T+10}, 1, v{T+8}")
        e(f"v_lshlrev_b32 v{T+10}, 1, v{T+10}")
        e(f"v_lshrrev_b32 v{T+11}, 1, v{T+9}")
        e(f"v_add_u32 v{T+10}, v{T+10}, v{T+11}")
        e(f"v_lshlrev_b32 v{T+8}, 8, v{T+8}")
        e(f"v_lshl_add_u32 v{T+8}, v{T+9}, 6, v{T+8}")
        e(f"v_mul_u32_u24 v{T+12}, 1792, v11")
        e(f"v_add_u32 v{T+12}, v{T+12}, v{T+8}")
        e(f"v_add_u32 v{T+12}, {LDS_W}, v{T+12}")
        for c in range(4):
            e(f"v_xor_b32 v{T+11}, {c}, v{T+10}")
            e(f"v_lshl_add_u32 v{V_WR+c}, v{T+11}, 4, v{T+12}")
    def Q(st, stage):
        ins = [f"s_mov_b32 s24, {st*BK*QROW}"]
        for i in range(8):
            r = qreg(stage, i, 0)
            ins.append((f"buffer_load_dwordx4 v[{r}:{r+3}], v{V_QOFF+i}, s[{S_Q}:{S_Q+3}], s24 offen{QNT}", f"q{st}"))
        return groups(ins)

    qoff_wr_setup()
    e("s_waitcnt lgkmcnt(0)")
    srd(S_SC, 44, 8 * N * 2)
    srd(S_Z, 46, 8 * N * 2)
    srd(S_Q, 42, K * N * 4)
    issue(SC(0, "0", "q0"))
    for g_ in Q(0, 0): issue(g_)
    for g_ in Q(1, 1): issue(g_)
    srd(S_O, 48, M * N * 2)
    if TLBT:
        srd(S_WS, 52, WS_BYTES)
        e("v_and_b32 v10, 63, v0")
        e("v_lshl_add_u32 v10, v1, 6, v10")
        e(f"v_add_u32 v10, s{S_M0}, v10")
        e(f"s_mov_b32 s27, {OROW}")
        e("v_mul_lo_u32 v10, v10, s27")
        e(f"s_lshl_b32 s27, s{S_N0}, 1")
        e("s_mov_b64 exec, 1")
        issue([(f"buffer_load_dword v{V_DUM}, v10, s[{S_O}:{S_O+3}], s27 offen", "tl")])
        e(f"s_mul_i32 s27, s{S_NT}, {16*WBUF}")
        e(f"s_cmp_eq_u32 s{S_W}, 1")
        e(f"s_cselect_b32 s27, {WS_FLAG}, s27")
        e(f"v_mov_b32 v10, 0")
        issue([(f"buffer_load_dword v{V_DUM}, v10, s[{S_WS}:{S_WS+3}], s27 offen sc1", "tl")])
        e("s_mov_b64 exec, -1")
    wr_setup()
    e("v_and_b32 v14, 15, v0")
    e("v_bfe_u32 v15, v0, 4, 2")
    e("v_lshrrev_b32 v10, 3, v14")
    e("v_xor_b32 v10, v10, v14")
    e("v_mul_u32_u24 v11, 1792, v15")
    e(f"v_add_u32 v11, {LDS_W}, v11")
    e(f"v_lshl_add_u32 v{C_RDW}, v10, 4, v11")
    e("v_xor_b32 v10, 2, v10")
    e(f"v_lshl_add_u32 v{C_RDW+1}, v10, 4, v11")
    e("v_lshrrev_b32 v10, 1, v14")
    e("v_xor_b32 v10, v10, v15")
    e("v_lshlrev_b32 v11, 13, v1")
    e("v_lshl_add_u32 v11, v14, 7, v11")
    e(f"v_lshl_add_u32 v{C_RDX}, v10, 4, v11")
    e(f"v_xor_b32 v{C_RDX+1}, 64, v{C_RDX}")
    e(f"v_add_u32 v{C_RDX+2}, {2*XBUF}, v{C_RDX}")
    e(f"v_add_u32 v{C_RDX+3}, {2*XBUF}, v{C_RDX+1}")
    stamp(e)
    e(f"s_waitcnt vmcnt({need('q0')})")
    for r in range(4):
        e(f"v_mov_b32 v{raw(1)+r}, v{raw(0)+r}")
    work(dq_lds(0, 0), [])
    e(f"s_waitcnt vmcnt({need('q1')})")
    work(dq_lds(1, 1), [])
    e("s_waitcnt lgkmcnt(0)")
    for i in range(0, 112, 2):
        e(f"v_mov_b64 v[{ACC+i}:{ACC+i+1}], 0")
    for i in range(0, 28, 2):
        e(f"v_mov_b64 v[{C_WF+28+i}:{C_WF+28+i+1}], 0")
    for i in range(0, 16, 2):
        e(f"v_mov_b64 v[{C_XF+16+i}:{C_XF+16+i+1}], 0")
    e(f"s_setprio {PRIO}")
    e("s_barrier")
    stamp(e)
    def wread(s_set, t, s, slot):
        return f"ds_read_b128 {wf(s_set,t)}, v{C_RDW+(t&1)} offset:{slot*WBUF+s*7168+t*256}"
    def xread(s_set, m, s, slot):
        return f"ds_read_b128 {xf(s_set,m)}, v{C_RDX+(slot>>1)*2+s} offset:{(slot&1)*XBUF+m*2048}"
    def mfmas(s_set, ts):
        return [f"v_mfma_f32_16x16x32_bf16 {acc(t,m)}, {wf(s_set,t)}, {xf(s_set,m)}, {acc(t,m)}" for t in ts for m in range(4)]
    def interleave(mf, fill):
        j = 0
        for m_ in mf:
            e(m_)
            if j < len(fill):
                e(fill[j]); j += 1
        while j < len(fill):
            e(fill[j]); j += 1
    for it in range(16):
        fill = [xread(0, m, 0, it % XR) for m in range(4)] + [wread(0, t, 0, it % WR) for t in range(7)]
        for f in fill[:3]: e(f)
        interleave(mfmas(1, [4, 5, 6]), fill[3:])
        e("s_waitcnt lgkmcnt(0)")
        fill = [xread(1, m, 1, it % XR) for m in range(4)] + [wread(1, t, 1, it % WR) for t in range(7)]
        interleave(mfmas(0, range(7)), fill)
        e("s_waitcnt lgkmcnt(0)")
        interleave(mfmas(1, [0, 1, 2, 3]), [])
        stamp(e)
        e("s_barrier")
    for m_ in mfmas(1, [4, 5, 6]): e(m_)
    e(f"s_mov_b32 s27, {ESTRIDE}")
    e("v_lshl_add_u32 v10, v1, 6, v14")
    e("v_mul_lo_u32 v10, v10, s27")
    e("v_lshl_add_u32 v10, v15, 3, v10")
    for m in range(4):
        for t in range(7):
            b = C_E + ((m * 7 + t) % 8) * 2
            e(f"v_cvt_pk_bf16_f32 v{b}, v{acc1(t,m,0)}, v{acc1(t,m,1)}")
            e(f"v_cvt_pk_bf16_f32 v{b+1}, v{acc1(t,m,2)}, v{acc1(t,m,3)}")
            e(f"ds_write_b64 v10, v[{b}:{b+1}] offset:{m*16*ESTRIDE + t*32}")
    e("s_waitcnt lgkmcnt(0)")
    e("s_branch L_store")

    e.label("L_prod")
    vm.clear()
    def SH(rnd, stage):
        ins = [f"s_add_u32 s27, s{S_SHS}, {rnd*4*N*2}"] + SC(stage, "s27", f"sh{rnd}")
        ins.append(f"s_add_u32 s26, s{S_SHQ}, {rnd*8*BK*QROW}")
        for i in range(8):
            r = qreg(stage, i, 0)
            ins.append((f"buffer_load_dwordx4 v[{r}:{r+3}], v{V_SOFF+i}, s[{S_Q}:{S_Q+3}], s26 offen{SHNT}", f"sh{rnd}"))
        return groups(ins)
    def X(st):
        if st >= 16: return []
        ins = [f"s_mov_b32 s25, {st*128}"]
        for a in range(8):
            if a % 4 == 0:
                ins.append(f"s_add_u32 m0, s{S_M0B}, {(st%XR)*XBUF + (a//4)*4096}")
                ins.append("s_nop 0")
            ins.append((f"buffer_load_dwordx4 v{V_XOFF+a}, s[{S_X}:{S_X+3}], s25 offen offset:{(a%4)*1024} lds", f"x{st}"))
        return groups(ins)
    e(f"v_and_b32 v{T+1}, 63, v0")
    e(f"s_and_b32 s{S_W}, s{S_W}, 3")
    e(f"v_lshrrev_b32 v{T+4}, 5, v{T+1}")
    e(f"s_mov_b32 s27, {64*QROW}")
    e(f"v_mul_lo_u32 v{T+5}, v{T+4}, s27")
    e(f"s_mul_i32 s27, s{S_MT}, {8*QROW}")
    e(f"v_add3_u32 v{V_SOFF}, v{T+5}, s27, v14")
    for i in range(1, 8):
        e(f"v_add_u32 v{V_SOFF+i}, {i*QROW}, v{V_SOFF}")
    e(f"s_mul_i32 s{S_SHQ}, s{S_W}, {2*BK*QROW}")
    e(f"s_add_u32 s{S_SHQ}, s{S_SHQ}, {H*BK*QROW}")
    e(f"s_mul_i32 s{S_SHS}, s{S_W}, {N*2}")
    e(f"s_add_u32 s{S_SHS}, s{S_SHS}, {(H//2)*N*2}")
    e(f"s_lshl_b32 s24, s{S_NT}, 2")
    e(f"v_mov_b32 v{V_NADDR}, s24")
    e(f"s_or_b32 s25, s{S_W}, s{S_MT}")
    e(f"s_cmp_eq_u32 s25, 0")
    e("s_cselect_b32 s24, s24, 0x1000")
    e(f"v_mov_b32 v{T+6}, s24")
    e("s_waitcnt lgkmcnt(0)")
    stamp2(e)
    srd(S_DBG, 50, 256)
    e("s_or_b32 s54, s54, 1")
    e(f"v_mov_b32 v{T+7}, s54")
    e("s_mov_b64 exec, 1")
    issue([(f"buffer_store_dword v{T+7}, v{T+6}, s[{S_DBG}:{S_DBG+3}], 0 offen sc1", "ns")])
    e("s_mov_b64 exec, -1")
    srd(S_SC, 44, 8 * N * 2)
    srd(S_Z, 46, 8 * N * 2)
    srd(S_Q, 42, K * N * 4)
    srd(S_X, 40, M * K * 2)
    if STAG:
        e(f"s_cmp_ge_u32 s{S_W}, 2")
        e("s_cbranch_scc1 L_late_sh")
    for g_ in SH(0, 0): issue(g_)
    if STAG: e.label("L_late_sh")
    e(f"v_bfe_u32 v{T+3}, v0, 4, 2")
    e(f"v_and_b32 v{T+2}, 3, v1")
    e(f"v_lshrrev_b32 v{T+8}, 3, v{T+1}")
    e(f"v_lshl_add_u32 v{T+8}, v{T+2}, 6, v{T+8}")
    e(f"v_add_u32 v{T+8}, s{S_M0}, v{T+8}")
    e(f"v_lshlrev_b32 v{T+8}, 11, v{T+8}")
    e(f"v_and_b32 v{T+9}, 7, v{T+1}")
    e(f"v_xor_b32 v{T+9}, v{T+9}, v{T+3}")
    e(f"v_xor_b32 v{T+10}, 4, v{T+9}")
    e(f"v_lshl_add_u32 v{T+9}, v{T+9}, 4, v{T+8}")
    e(f"v_lshl_add_u32 v{T+10}, v{T+10}, 4, v{T+8}")
    for a in range(8):
        e(f"v_add_u32 v{V_XOFF+a}, {a*8*XROW - (a%4)*1024}, v{T+9+(a&1)}")
    e(f"s_lshl_b32 s{S_M0B}, s{S_W}, 13")
    e(f"v_lshrrev_b32 v{T+8}, 3, v{T+1}")
    e("s_lshl_b32 s24, s2, 3")
    e(f"v_add_u32 v{T+8}, s24, v{T+8}")
    e(f"v_lshlrev_b32 v{T+8}, 11, v{T+8}")
    e(f"v_and_b32 v{T+9}, 7, v{T+1}")
    e(f"v_lshl_add_u32 v{T+8}, v{T+9}, 4, v{T+8}")
    e(f"v_lshl_add_u32 v{T+15}, v{T+2}, 7, v{T+8}")
    def xpf(st):
        return [[f"s_mov_b32 s24, {st*128}",
                 (f"buffer_load_dwordx4 v[{V_DUM}:{V_DUM+3}], v{T+15}, s[{S_X}:{S_X+3}], s24 offen", "pf")]]
    if STAG:
        e(f"s_cmp_lt_u32 s{S_W}, 2")
        e("s_cbranch_scc1 L_early_sh")
        sv = list(vm)
        for g_ in X(0) + SH(0, 0): issue(g_)
        vm[:] = sv
        e.label("L_early_sh")
    stamp2(e)
    srd(S_O, 48, M * N * 2)
    srd(S_WS, 52, WS_BYTES)
    qoff_wr_setup()
    wr_setup()
    for pc in range(4):
        e(f"v_add_u32 v{T+11}, {pc*64}, v{T+1}")
        e(f"v_lshlrev_b32 v{V_GW+pc}, 4, v{T+11}")
        e(f"v_add_u32 v{T+13}, {WBUF-1792}, v{V_GW+pc}")
        e(f"v_cmp_le_u32 vcc, 112, v{T+11}")
        e("s_nop 1")
        e(f"v_cndmask_b32 v{V_GW+pc}, v{V_GW+pc}, v{T+13}, vcc")
    e(f"v_lshlrev_b32 v{V_L16}, 4, v{T+1}")
    e(f"s_mul_i32 s{S_IMGB}, s{S_NT}, {16*WBUF}")
    e(f"s_mul_i32 s24, s{S_MT}, 1792")
    e(f"s_add_u32 s{S_SHW}, s{S_IMGB}, s24")
    e(f"s_mul_i32 s24, s{S_W}, {2*WBUF}")
    e(f"s_add_u32 s{S_SHW}, s{S_SHW}, s24")
    e(f"s_add_u32 s{S_SHW}, s{S_SHW}, {H*WBUF}")
    e(f"s_mul_i32 s24, s{S_W}, 3584")
    e(f"s_add_u32 s{S_IMGB}, s{S_IMGB}, s24")
    e(f"s_add_u32 s{S_WM0}, s24, {LDS_W}")
    e(f"v_add_u32 v{T+14}, s{S_WM0}, v{V_L16}")
    e(f"s_lshl_b32 s24, s{S_NT}, 3")
    e(f"s_add_u32 s25, s24, s{S_MT}")
    e(f"s_lshl_b32 s25, s25, 3")
    e(f"s_add_u32 s25, s25, s{S_W}")
    e(f"s_lshl_b32 s25, s25, 7")
    e(f"s_add_u32 s{S_FLG}, s25, {WS_FLAG}")
    e(f"v_and_b32 v{T+8}, 1, v{T+1}")
    e(f"v_lshl_add_u32 v{T+8}, v{T+2}, 1, v{T+8}")
    e(f"v_add_u32 v{T+8}, s24, v{T+8}")
    e(f"v_lshrrev_b32 v{T+9}, 1, v{T+1}")
    e(f"v_min_u32 v{T+9}, {NPAIR-1}, v{T+9}")
    e(f"v_lshl_add_u32 v{T+8}, v{T+8}, 3, v{T+9}")
    e(f"v_lshlrev_b32 v{T+8}, 7, v{T+8}")
    e(f"v_add_u32 v{V_FADDR}, {WS_FLAG}, v{T+8}")
    e(f"v_mov_b32 v{V_Z}, 0")
    e(f"s_mov_b32 s{S_READY}, 0")
    e(f"s_mov_b32 s{S_FBK}, 0")
    uid = [0]
    def share_out(rnd, slot):
        e("s_waitcnt lgkmcnt(0)")
        for pc in range(4):
            e(f"ds_read_b128 v[{V_P+4*pc}:{V_P+4*pc+3}], v{T+14} offset:{slot*WBUF+pc*1024}")
        e(f"s_add_u32 s27, s{S_SHW}, {rnd*8*WBUF}")
        for pc in range(4):
            e(f"s_waitcnt lgkmcnt({3-pc})")
            if pc == 3: e("s_mov_b32 exec_hi, 0")
            issue([(f"buffer_store_dwordx4 v[{V_P+4*pc}:{V_P+4*pc+3}], v{V_GW+pc}, s[{S_WS}:{S_WS+3}], s27 offen sc1", f"st{rnd}")])
            if pc == 3: e("s_mov_b32 exec_hi, -1")
    def has_round(rnd):
        return max(0, min(4, NPAIR - 4 * rnd))
    def publish(rnd):
        nw = has_round(rnd)
        e(f"s_waitcnt vmcnt({need(f'st{rnd}')})")
        e(f"s_add_u32 s27, s{S_FLG}, {rnd*4*128}")
        if nw < 4:
            e(f"s_cmp_lt_u32 s{S_W}, {nw}")
            e(f"s_cselect_b32 s27, s27, 0x40000000")
        if FORCEFB:
            e(f"s_cmp_eq_u32 s{S_MT}, {FORCEFB-1}")
            e(f"s_cselect_b32 s27, 0x40000000, s27")
        e("s_mov_b64 exec, 1")
        issue([(f"buffer_store_dword v{V_NONCE}, v{V_Z}, s[{S_WS}:{S_WS+3}], s27 offen sc1", "fl")])
        e("s_mov_b64 exec, -1")
    def Wd(st):
        if st >= 16: return
        j = (st - H) // 2
        mask = 3 << (2 * j)
        uid[0] += 1
        u = uid[0]
        e(f"s_and_b32 s24, s{S_READY}, {mask}")
        e(f"s_cmp_eq_u32 s24, {mask}")
        e(f"s_cbranch_scc1 L_rdy{u}")
        e(f"s_cmp_eq_u32 s{S_NON}, 0")
        e(f"s_cbranch_scc1 L_fb{u}")
        e(f"s_mov_b32 s{S_CNT}, s{S_FBK}")
        e.label(f"L_poll{u}")
        e(f"buffer_load_dword v{V_FLAG}, v{V_FADDR}, s[{S_WS}:{S_WS+3}], 0 offen sc1")
        e("s_waitcnt vmcnt(0)")
        e(f"v_cmp_eq_u32 vcc, v{V_FLAG}, v{V_NONCE}")
        e(f"s_mov_b32 s{S_READY}, vcc_lo")
        e(f"s_and_b32 s24, s{S_READY}, {mask}")
        e(f"s_cmp_eq_u32 s24, {mask}")
        e(f"s_cbranch_scc1 L_rdy{u}")
        e("s_sleep 2")
        e(f"s_add_u32 s{S_CNT}, s{S_CNT}, 1")
        e(f"s_cmp_lt_u32 s{S_CNT}, {SPIN}")
        e(f"s_cbranch_scc1 L_poll{u}")
        e.label(f"L_fb{u}")
        e(f"s_mov_b32 s{S_FBK}, {SPIN}")
        e(f"s_mov_b32 s{S_FBQ}, {st*BK*QROW}")
        e(f"s_mov_b32 s{S_FBL}, {(st%WR)*WBUF}")
        e(f"s_mov_b32 s{S_FBG}, {(st//2)*N*2}")
        e(f"s_call_b64 s[{S_RET}:{S_RET+1}], L_fallback")
        e(f"s_branch L_done{u}")
        e.label(f"L_rdy{u}")
        e(f"s_add_u32 s27, s{S_IMGB}, {st*WBUF}")
        e(f"s_add_u32 m0, s{S_WM0}, {(st%WR)*WBUF}")
        e("s_nop 0")
        for pce in range(3):
            e(f"buffer_load_dwordx4 v{V_L16}, s[{S_WS}:{S_WS+3}], s27 offen offset:{pce*1024} sc1 lds")
        e("s_mov_b32 exec_hi, 0")
        e(f"buffer_load_dwordx4 v{V_L16}, s[{S_WS}:{S_WS+3}], s27 offen offset:3072 sc1 lds")
        e("s_mov_b32 exec_hi, -1")
        e.label(f"L_done{u}")
        for _ in range(4): vm.append(f"w{st}")

    e("s_waitcnt vmcnt(0)")
    stamp2(e)
    nl = [[(f"buffer_load_dword v{V_NONCE}, v{V_NADDR}, s[{S_DBG}:{S_DBG+3}], 0 offen sc1", "nl")]]
    issue(nl[0])
    work(dq_lds(0, 3), [])
    stamp2(e)
    share_out(0, 3)
    stamp2(e)
    e(f"s_cmp_ge_u32 s{S_W}, 2")
    e("s_cbranch_scc1 L_xb")
    sv = list(vm)
    for g_ in X(0): issue(g_)
    vm[:] = sv
    e("s_branch L_xc")
    e.label("L_xb")
    for g_ in X(1): issue(g_)
    e.label("L_xc")
    nsh = 0
    if SH1AT < 0:
        for g_ in SH(1, 1) + (xpf(3) + xpf(7) + xpf(11) + xpf(15) if XPF else []): issue(g_)
        nsh = 10 + (4 if XPF else 0)
    e(f"s_waitcnt vmcnt({8 + nsh})")
    e(f"v_readfirstlane_b32 s{S_NON}, v{V_NONCE}")
    e(f"s_cmp_lg_u32 s{S_NON}, 0")
    e("s_cbranch_scc1 L_n_got")
    e(f"s_mov_b32 s{S_CNT}, 0")
    e.label("L_n_poll")
    e(f"buffer_load_dword v{V_NONCE}, v{V_NADDR}, s[{S_DBG}:{S_DBG+3}], 0 offen sc1")
    e("s_waitcnt vmcnt(0)")
    e(f"v_readfirstlane_b32 s{S_NON}, v{V_NONCE}")
    e(f"s_cmp_lg_u32 s{S_NON}, 0")
    e("s_cbranch_scc1 L_n_got")
    e("s_sleep 2")
    e(f"s_add_u32 s{S_CNT}, s{S_CNT}, 1")
    e(f"s_cmp_lt_u32 s{S_CNT}, {SPIN}")
    e("s_cbranch_scc1 L_n_poll")
    e.label("L_n_got")
    publish(0)
    e(f"s_cmp_ge_u32 s{S_W}, 2")
    e("s_cbranch_scc1 L_xd")
    sv = list(vm)
    for g_ in X(1): issue(g_)
    vm[:] = sv + ['x1!'] * 8
    e(f"s_waitcnt vmcnt({9 + nsh})")
    e.label("L_xd")
    stamp(e)
    e("s_barrier")
    stamp(e)
    for it in range(16):
        xs = X(it + 2)
        todo = [st for st in range(H, 16) if min(max(st - WLEAD, WSTART), st - 1) == it]
        if it == 0:
            for g_ in xs + (xpf(3) if (XPF and SH1AT >= 0) else []): issue(g_)
            xs = []
        for st in todo:
            if st < it + 3: Wd(st)
        for g_ in xs: issue(g_)
        if it == R1 and has_round(1):
            e(f"s_waitcnt vmcnt({need('sh1')})")
            work(dq_lds(1, (it + 3) % WR), [])
            share_out(1, (it + 3) % WR)
        if it == PUB1 and has_round(1):
            publish(1)
        for st in todo:
            if st >= it + 3: Wd(st)
        if it == SH1AT:
            for g_ in SH(1, 1) + (xpf(7) + xpf(11) + xpf(15) if XPF else []): issue(g_)
        stamp(e)
        if it < 15:
            tags = [f"x{it+1}"] + ([f"w{it+1}"] if it + 1 >= H else [])
            e(f"s_waitcnt vmcnt({min(need(t) for t in tags)}) lgkmcnt(0)")
        e("s_barrier")
    e("s_branch L_store")

    e.label("L_fallback")
    r0 = raw(FB_STAGE)
    e(f"buffer_load_dwordx2 v[{r0}:{r0+1}], v{V_SCO}, s[{S_SC}:{S_SC+3}], s{S_FBG} offen")
    e(f"buffer_load_dwordx2 v[{r0+2}:{r0+3}], v{V_SCO}, s[{S_Z}:{S_Z+3}], s{S_FBG} offen")
    for i in range(8):
        r = qreg(FB_STAGE, i, 0)
        e(f"buffer_load_dwordx4 v[{r}:{r+3}], v{V_QOFF+i}, s[{S_Q}:{S_Q+3}], s{S_FBQ} offen")
    for c in range(4):
        e(f"v_add_u32 v{T+8+c}, s{S_FBL}, v{V_WR+c}")
    e("s_waitcnt vmcnt(0)")
    for op in dequant_ops(FB_STAGE):
        if isinstance(op, tuple):
            e(f"ds_write_b128 v{T+8+op[1]}, v[{V_P+4*op[1]}:{V_P+4*op[1]+3}]")
        else:
            e(op)
    e("s_waitcnt lgkmcnt(0)")
    e(f"s_setpc_b64 s[{S_RET}:{S_RET+1}]")

    e.label("L_store")
    e("v_and_b32 v10, 63, v0")
    e("v_mul_u32_u24 v11, 0x1250, v10")
    e("v_lshrrev_b32 v11, 16, v11")
    e("v_mul_u32_u24 v12, 14, v11")
    e("v_sub_u32 v12, v10, v12")
    e("v_lshl_add_u32 v13, v1, 5, v11")
    e(f"s_mov_b32 s27, {ESTRIDE}")
    e("v_mul_lo_u32 v14, v13, s27")
    e("v_lshl_add_u32 v14, v12, 4, v14")
    e(f"v_add_u32 v13, s{S_M0}, v13")
    e(f"s_mov_b32 s27, {OROW}")
    e("v_mul_lo_u32 v13, v13, s27")
    e(f"s_lshl_b32 s28, s{S_N0}, 1")
    e("v_lshl_add_u32 v13, v12, 4, v13")
    e("v_add_u32 v13, s28, v13")
    e("v_cmp_gt_u32 vcc, 56, v10")
    e("s_barrier")
    e("s_and_saveexec_b64 s[56:57], vcc")
    for i in range(8):
        b = 128 + i * 4
        e(f"ds_read_b128 v[{b}:{b+3}], v14 offset:{i*4*ESTRIDE}")
    for i in range(8):
        b = 128 + i * 4
        e(f"s_mov_b32 s24, {i*4*OROW}")
        e(f"s_waitcnt lgkmcnt({7-i})")
        e(f"buffer_store_dwordx4 v[{b}:{b+3}], v13, s[{S_O}:{S_O+3}], s24 offen")
    e("s_mov_b64 exec, s[56:57]")
    if STAMP:
        stamp(e)
        e("s_waitcnt vmcnt(0)")
        stamp(e)
        stamp(e, True)
        e("s_mov_b32 s64, s52")
        e("s_and_b32 s65, s53, 0xffff")
        e("s_mov_b32 s66, 0x10000000")
        e("s_mov_b32 s67, 0x00020000")
        e("v_lshlrev_b32 v1, 2, v0")
        e("s_lshl_b32 s24, s2, 11")
        e(f"s_add_u32 s24, s24, {WS_STAMP}")
        e(f"buffer_store_dword v{C_ST}, v1, s[64:67], s24 offen")
    e.label("L_end")
    e("s_endpgm")

    out += e.lines
    out.append('.section .rodata,"a"')
    out.append(".p2align 6")
    out.append(".amdhsa_kernel standalone__w4a16_gemm_dequant__prompt_kernel")
    out.append("  .amdhsa_next_free_vgpr 256")
    out.append("  .amdhsa_next_free_sgpr 102")
    out.append("  .amdhsa_accum_offset 256")
    out.append("  .amdhsa_group_segment_fixed_size 0")
    out.append("  .amdhsa_kernarg_size 56")
    out.append("  .amdhsa_user_sgpr_count 2")
    out.append("  .amdhsa_user_sgpr_kernarg_segment_ptr 1")
    out.append("  .amdhsa_system_sgpr_workgroup_id_x 1")
    out.append("  .amdhsa_float_denorm_mode_32 3")
    out.append("  .amdhsa_float_denorm_mode_16_64 3")
    out.append(".end_amdhsa_kernel")
    return "\n".join(out) + "\n"


if __name__ == "__main__":
    dst = sys.argv[1] if len(sys.argv) > 1 else "standalone__w4a16_gemm_dequant__prompt.s"
    open(dst, "w").write(gen())
    print("wrote", dst)
```

```python
import sys, os
CPF = int(os.environ.get('CPF', '11'))
STAMP = bool(os.environ.get('STAMP'))
S2 = bool(os.environ.get('STAMP2'))
PRIO = int(os.environ.get('PRIO', '3'))
H = int(os.environ.get('H', '2'))
SPIN = int(os.environ.get('SPIN', '64'))
FORCEFB = int(os.environ.get('FORCEFB', '0'))
WLEAD = int(os.environ.get('WLEAD', '2'))
WSTART = int(os.environ.get('WSTART', '1'))
STAG = 1
TLBT = 0
SHNT = ' nt' if int(os.environ.get('SHNT', '1')) else ''
QNT = ' nt' if int(os.environ.get('QNT', '1')) else ''
SH1AT = int(os.environ.get('SH1AT', '-1'))
XPF = int(os.environ.get('XPF', '1'))
R1 = int(os.environ.get('R1', '0'))
PUB1 = int(os.environ.get('PUB1', '1'))
assert H in (2,)

M, N, K = 2048, 3584, 1024
BM, BN, BK = 256, 112, 64
QROW = N * 4
XROW = K * 2
OROW = N * 2
XBUF = BM * BK * 2
WBUF = BN * BK * 2
XR, WR = 3, 4
LDS_W = XR * XBUF
LDS_TOTAL = LDS_W + WR * WBUF
ESTRIDE = 240
NPAIR = (16 - H) // 2
WS_FLAG = 8 << 20
WS_BYTES = WS_FLAG + 256 * 8 * 128
WS_STAMP = 16 << 20

C_RDW = 2
C_RDX = 4
C_ST = 8
ACC = 16
def acc(t, m):
    b = ACC + (t * 4 + m) * 4
    return f"v[{b}:{b+3}]"
def acc1(t, m, r): return ACC + (t * 4 + m) * 4 + r
C_WF = 128
C_XF = 184
C_E = 220
def wf(s, t): b = C_WF + s * 28 + t * 4; return f"v[{b}:{b+3}]"
def xf(s, m): b = C_XF + s * 16 + m * 4; return f"v[{b}:{b+3}]"
V_XOFF = 16
V_QOFF = 24
V_S = 32
V_P = 40
V_WR = 60
V_SOFF = 64
V_GW = 72
V_T = 76
V_SCO = 92
V_RAW = 96
V_Q = 116
V_DUM = 244
V_L16, V_FADDR, V_NONCE, V_FLAG, V_Z, V_NADDR = 2, 3, 4, 5, 6, 7
FB_STAGE = 3
def qreg(stage, i, c): return V_Q + stage * 32 + i * 4 + c
def raw(stage): return V_RAW + 4 * stage

S_X, S_Q, S_O, S_SC, S_Z, S_WS, S_DBG = 4, 8, 12, 16, 20, 64, 84
S_C24, S_M0B = 34, 38
S_M0, S_N0, S_W, S_MT, S_NT = 35, 36, 37, 39, 33
S_READY, S_FBK, S_IMGB, S_WM0, S_SHQ, S_SHW, S_FLG, S_SHS = 68, 69, 70, 71, 72, 73, 74, 75
S_RET = 76
S_FBQ, S_FBL, S_FBG = 78, 79, 80
S_CNT, S_NON = 81, 82
S_XO, S_WO, S_IT, S_XKQ, S_WSRC, S_MASK, S_ST = 94, 95, 96, 97, 98, 99, 100
C_CUR = 9


class Emit:
    def __init__(self):
        self.lines = []
    def __call__(self, s):
        self.lines.append("    " + s)
    def label(self, s):
        self.lines.append(s + ":")


def stamp(e, real=False):
    if not STAMP: return
    e("s_memrealtime s[60:61]" if real else "s_memtime s[60:61]")
    e("s_waitcnt lgkmcnt(0)")
    e("s_mov_b32 m0, s58")
    e("s_nop 0")
    e(f"v_writelane_b32 v{C_ST}, s60, m0")
    e("s_add_u32 s58, s58, 1")
def stamp2(e):
    if S2: stamp(e)


def dequant_ops(stage):
    ops = []
    r0 = raw(stage)
    ops.append(f"v_lshlrev_b32 v{V_S}, 16, v{r0}")
    ops.append(f"v_and_b32 v{V_S+1}, 0xffff0000, v{r0}")
    ops.append(f"v_lshlrev_b32 v{V_S+2}, 16, v{r0+1}")
    ops.append(f"v_and_b32 v{V_S+3}, 0xffff0000, v{r0+1}")
    ops.append(f"v_lshlrev_b32 v{V_S+4}, 16, v{r0+2}")
    ops.append(f"v_and_b32 v{V_S+5}, 0xffff0000, v{r0+2}")
    ops.append(f"v_lshlrev_b32 v{V_S+6}, 16, v{r0+3}")
    ops.append(f"v_and_b32 v{V_S+7}, 0xffff0000, v{r0+3}")
    for c in range(4):
        for i in range(8):
            r = qreg(stage, i, c)
            ops.append(f"v_fma_mix_f32 v{r}, v{r}, s{S_C24}, -v{V_S+4+c} op_sel_hi:[1,0,0]")
        for j in range(4):
            ops.append(f"v_cvt_pk_bf16_f32 v{V_P+4*c+j}, v{qreg(stage,2*j,c)}, v{qreg(stage,2*j+1,c)}")
        for j in range(4):
            ops.append(f"v_lshlrev_b32 v{qreg(stage,2*j,c)}, 16, v{V_P+4*c+j}")
            ops.append(f"v_and_b32 v{qreg(stage,2*j+1,c)}, 0xffff0000, v{V_P+4*c+j}")
        for i in range(8):
            r = qreg(stage, i, c)
            ops.append(f"v_mul_f32 v{r}, v{r}, v{V_S+c}")
        for j in range(4):
            ops.append(f"v_cvt_pk_bf16_f32 v{V_P+4*c+j}, v{qreg(stage,2*j,c)}, v{qreg(stage,2*j+1,c)}")
        ops.append(("W", c))
    return ops


def gen():
    e = Emit()
    hdr = open("standalone__w4a16_gemm_dequant__prompt.s.ref").read().split("\n")
    out = []
    for l in hdr:
        if l.startswith("; @launch"):
            out.append(f"; @launch grid=(256,1,1) block=(512,1,1) lds={LDS_TOTAL}")
            break
        out.append(l)
    out.append('.amdgcn_target "amdgcn-amd-amdhsa--gfx950"')
    out.append(".text")
    out.append(".globl standalone__w4a16_gemm_dequant__prompt_kernel")
    out.append(".p2align 8")
    out.append(".type standalone__w4a16_gemm_dequant__prompt_kernel,@function")
    out.append("standalone__w4a16_gemm_dequant__prompt_kernel:")

    def srd(d, lo, nbytes):
        e(f"s_mov_b32 s{d}, s{lo}")
        e(f"s_and_b32 s{d+1}, s{lo+1}, 0xffff")
        e(f"s_mov_b32 s{d+2}, {nbytes}")
        e(f"s_mov_b32 s{d+3}, 0x00020000")

    vm = []
    def issue(lst):
        for f in lst:
            if isinstance(f, tuple):
                e(f[0])
                if f[1] is not None: vm.append(f[1])
            else:
                e(f)
    def need(tag):
        c = [i for i, t in enumerate(vm) if t.rstrip('!') == tag]
        assert c, tag
        return min(63, sum(1 for t in vm[max(c) + 1:] if not t.endswith('!')))
    def groups(lst):
        g_ = []; cur = []
        for f in lst:
            cur.append(f)
            if isinstance(f, tuple) and f[1] is not None:
                g_.append(cur); cur = []
        if cur:
            g_[-1] += cur
        return g_
    def work(ops, seq):
        n = len(ops); k = len(seq); gi = 0
        for i, op in enumerate(ops):
            while gi < k and gi * n <= i * k:
                issue(seq[gi]); gi += 1
            issue([op])
        while gi < k:
            issue(seq[gi]); gi += 1
    def dq_lds(stage, slot):
        return [f"ds_write_b128 v{V_WR+op[1]}, v[{V_P+4*op[1]}:{V_P+4*op[1]+3}] offset:{slot*WBUF}" if isinstance(op, tuple) else op
                for op in dequant_ops(stage)]
    def SC(stage, soff, tag):
        r0 = raw(stage)
        return [(f"buffer_load_dwordx2 v[{r0}:{r0+1}], v{V_SCO}, s[{S_SC}:{S_SC+3}], {soff} offen", tag),
                (f"buffer_load_dwordx2 v[{r0+2}:{r0+3}], v{V_SCO}, s[{S_Z}:{S_Z+3}], {soff} offen", tag)]

    T = V_T
    e("s_cmp_ge_u32 s2, 256")
    e("s_cbranch_scc1 L_end")
    if CPF:
        e("s_getpc_b64 s[90:91]")
        e("v_lshlrev_b32 v2, 7, v0")
        e(f"v_cmp_gt_u32 vcc, {CPF*1024}, v2")
        e("s_and_saveexec_b64 s[92:93], vcc")
        e("s_cbranch_execz L_nocpf")
        e("global_load_dword v255, v2, s[90:91]")
        e.label("L_nocpf")
        e("s_mov_b64 exec, s[92:93]")
    e("s_load_dwordx8 s[40:47], s[0:1], 0")
    e("s_load_dwordx4 s[48:51], s[0:1], 32")
    e("s_load_dwordx2 s[52:53], s[0:1], 48")
    e("s_memrealtime s[54:55]")
    if STAMP:
        e("s_mov_b32 s58, 0")
        e(f"v_mov_b32 v{C_ST}, 0")
        stamp(e, True)
        stamp(e)
    e("s_and_b32 s24, s2, 7")
    e("s_lshr_b32 s25, s2, 3")
    e("s_and_b32 s26, s25, 3")
    e("s_lshl_b32 s24, s24, 2")
    e(f"s_add_u32 s{S_NT}, s24, s26")
    e(f"s_lshr_b32 s{S_MT}, s25, 2")
    e(f"s_mul_i32 s{S_N0}, s{S_NT}, {BN}")
    e(f"s_lshl_b32 s{S_M0}, s{S_MT}, 8")
    e("v_lshrrev_b32 v1, 6, v0")
    e("v_and_b32 v10, 255, v0")
    e(f"v_readfirstlane_b32 s{S_W}, v1")
    e("v_lshrrev_b32 v11, 5, v10")
    e("v_and_b32 v12, 31, v10")
    e("v_min_u32 v12, 27, v12")
    e(f"s_lshl_b32 s28, s{S_N0}, 2")
    e("v_lshl_add_u32 v14, v12, 4, s28")
    e(f"v_lshrrev_b32 v{V_SCO}, 1, v14")
    e(f"s_mov_b32 s{S_C24}, 0x4b800000")
    e(f"s_cmp_ge_u32 s{S_W}, 4")
    e("s_cbranch_scc1 L_prod")

    def qoff_wr_setup():
        e(f"s_mov_b32 s27, {8*QROW}")
        e(f"v_mul_lo_u32 v13, v11, s27")
        e(f"v_add_u32 v{V_QOFF}, v14, v13")
        for i in range(1, 8):
            e(f"v_add_u32 v{V_QOFF+i}, {i*QROW}, v{V_QOFF}")
    def wr_setup():
        e(f"v_lshrrev_b32 v{T+8}, 2, v12")
        e(f"v_and_b32 v{T+9}, 3, v12")
        e(f"v_and_b32 v{T+10}, 1, v{T+8}")
        e(f"v_lshlrev_b32 v{T+10}, 1, v{T+10}")
        e(f"v_lshrrev_b32 v{T+11}, 1, v{T+9}")
        e(f"v_add_u32 v{T+10}, v{T+10}, v{T+11}")
        e(f"v_lshlrev_b32 v{T+8}, 8, v{T+8}")
        e(f"v_lshl_add_u32 v{T+8}, v{T+9}, 6, v{T+8}")
        e(f"v_mul_u32_u24 v{T+12}, 1792, v11")
        e(f"v_add_u32 v{T+12}, v{T+12}, v{T+8}")
        e(f"v_add_u32 v{T+12}, {LDS_W}, v{T+12}")
        for c in range(4):
            e(f"v_xor_b32 v{T+11}, {c}, v{T+10}")
            e(f"v_lshl_add_u32 v{V_WR+c}, v{T+11}, 4, v{T+12}")
    def Q(st, stage):
        ins = [f"s_mov_b32 s24, {st*BK*QROW}"]
        for i in range(8):
            r = qreg(stage, i, 0)
            ins.append((f"buffer_load_dwordx4 v[{r}:{r+3}], v{V_QOFF+i}, s[{S_Q}:{S_Q+3}], s24 offen{QNT}", f"q{st}"))
        return groups(ins)

    qoff_wr_setup()
    e("s_waitcnt lgkmcnt(0)")
    srd(S_SC, 44, 8 * N * 2)
    srd(S_Z, 46, 8 * N * 2)
    srd(S_Q, 42, K * N * 4)
    issue(SC(0, "0", "q0"))
    for g_ in Q(0, 0): issue(g_)
    for g_ in Q(1, 1): issue(g_)
    srd(S_O, 48, M * N * 2)
    if TLBT:
        srd(S_WS, 52, WS_BYTES)
        e("v_and_b32 v10, 63, v0")
        e("v_lshl_add_u32 v10, v1, 6, v10")
        e(f"v_add_u32 v10, s{S_M0}, v10")
        e(f"s_mov_b32 s27, {OROW}")
        e("v_mul_lo_u32 v10, v10, s27")
        e(f"s_lshl_b32 s27, s{S_N0}, 1")
        e("s_mov_b64 exec, 1")
        issue([(f"buffer_load_dword v{V_DUM}, v10, s[{S_O}:{S_O+3}], s27 offen", "tl")])
        e(f"s_mul_i32 s27, s{S_NT}, {16*WBUF}")
        e(f"s_cmp_eq_u32 s{S_W}, 1")
        e(f"s_cselect_b32 s27, {WS_FLAG}, s27")
        e(f"v_mov_b32 v10, 0")
        issue([(f"buffer_load_dword v{V_DUM}, v10, s[{S_WS}:{S_WS+3}], s27 offen sc1", "tl")])
        e("s_mov_b64 exec, -1")
    wr_setup()
    e("v_and_b32 v14, 15, v0")
    e("v_bfe_u32 v15, v0, 4, 2")
    e("v_lshrrev_b32 v10, 3, v14")
    e("v_xor_b32 v10, v10, v14")
    e("v_mul_u32_u24 v11, 1792, v15")
    e(f"v_add_u32 v11, {LDS_W}, v11")
    e(f"v_lshl_add_u32 v{C_RDW}, v10, 4, v11")
    e("v_xor_b32 v10, 2, v10")
    e(f"v_lshl_add_u32 v{C_RDW+1}, v10, 4, v11")
    e("v_lshrrev_b32 v10, 1, v14")
    e("v_xor_b32 v10, v10, v15")
    e("v_lshlrev_b32 v11, 13, v1")
    e("v_lshl_add_u32 v11, v14, 7, v11")
    e(f"v_lshl_add_u32 v{C_RDX}, v10, 4, v11")
    e(f"v_xor_b32 v{C_RDX+1}, 64, v{C_RDX}")
    e(f"v_add_u32 v{C_RDX+2}, {2*XBUF}, v{C_RDX}")
    e(f"v_add_u32 v{C_RDX+3}, {2*XBUF}, v{C_RDX+1}")
    stamp(e)
    e(f"s_waitcnt vmcnt({need('q0')})")
    for r in range(4):
        e(f"v_mov_b32 v{raw(1)+r}, v{raw(0)+r}")
    work(dq_lds(0, 0), [])
    e(f"s_waitcnt vmcnt({need('q1')})")
    work(dq_lds(1, 1), [])
    e("s_waitcnt lgkmcnt(0)")
    for i in range(0, 112, 2):
        e(f"v_mov_b64 v[{ACC+i}:{ACC+i+1}], 0")
    for i in range(0, 28, 2):
        e(f"v_mov_b64 v[{C_WF+28+i}:{C_WF+28+i+1}], 0")
    for i in range(0, 16, 2):
        e(f"v_mov_b64 v[{C_XF+16+i}:{C_XF+16+i+1}], 0")
    e(f"s_mov_b32 s{S_XO}, 0")
    e(f"s_mov_b32 s{S_WO}, 0")
    e(f"s_mov_b32 s{S_IT}, 0")
    e(f"v_mov_b32 v{C_CUR}, v{C_RDX}")
    e(f"v_mov_b32 v{C_CUR+1}, v{C_RDX+1}")
    e(f"v_mov_b32 v{C_CUR+2}, v{C_RDW}")
    e(f"v_mov_b32 v{C_CUR+3}, v{C_RDW+1}")
    e(f"s_setprio {PRIO}")
    e("s_barrier")
    stamp(e)
    def wread(s_set, t, s):
        return f"ds_read_b128 {wf(s_set,t)}, v{C_CUR+2+(t&1)} offset:{s*7168+t*256}"
    def xread(s_set, m, s):
        return f"ds_read_b128 {xf(s_set,m)}, v{C_CUR+s} offset:{m*2048}"
    def mfmas(s_set, ts):
        return [f"v_mfma_f32_16x16x32_bf16 {acc(t,m)}, {wf(s_set,t)}, {xf(s_set,m)}, {acc(t,m)}" for t in ts for m in range(4)]
    def interleave(mf, fill):
        j = 0
        for m_ in mf:
            e(m_)
            if j < len(fill):
                e(fill[j]); j += 1
        while j < len(fill):
            e(fill[j]); j += 1
    e.label("L_cloop")
    fill = [xread(0, m, 0) for m in range(4)] + [wread(0, t, 0) for t in range(7)]
    for f in fill[:3]: e(f)
    interleave(mfmas(1, [4, 5, 6]), fill[3:])
    e("s_waitcnt lgkmcnt(0)")
    fill = [xread(1, m, 1) for m in range(4)] + [wread(1, t, 1) for t in range(7)]
    interleave(mfmas(0, range(7)), fill)
    e("s_waitcnt lgkmcnt(0)")
    adv = [f"s_add_u32 s{S_XO}, s{S_XO}, {XBUF}",
           f"s_cmp_eq_u32 s{S_XO}, {XR*XBUF}",
           f"s_cselect_b32 s{S_XO}, 0, s{S_XO}",
           f"s_add_u32 s{S_WO}, s{S_WO}, {WBUF}",
           f"s_cmp_eq_u32 s{S_WO}, {WR*WBUF}",
           f"s_cselect_b32 s{S_WO}, 0, s{S_WO}",
           f"v_add_u32 v{C_CUR}, s{S_XO}, v{C_RDX}",
           f"v_add_u32 v{C_CUR+1}, s{S_XO}, v{C_RDX+1}",
           f"v_add_u32 v{C_CUR+2}, s{S_WO}, v{C_RDW}",
           f"v_add_u32 v{C_CUR+3}, s{S_WO}, v{C_RDW+1}"]
    interleave(mfmas(1, [0, 1, 2, 3]), adv)
    stamp(e)
    e(f"s_add_u32 s{S_IT}, s{S_IT}, 1")
    e(f"s_cmp_lt_u32 s{S_IT}, 16")
    e("s_barrier")
    e("s_cbranch_scc1 L_cloop")
    for m_ in mfmas(1, [4, 5, 6]): e(m_)
    e(f"s_mov_b32 s27, {ESTRIDE}")
    e("v_lshl_add_u32 v10, v1, 6, v14")
    e("v_mul_lo_u32 v10, v10, s27")
    e("v_lshl_add_u32 v10, v15, 3, v10")
    for m in range(4):
        for t in range(7):
            b = C_E + ((m * 7 + t) % 8) * 2
            e(f"v_cvt_pk_bf16_f32 v{b}, v{acc1(t,m,0)}, v{acc1(t,m,1)}")
            e(f"v_cvt_pk_bf16_f32 v{b+1}, v{acc1(t,m,2)}, v{acc1(t,m,3)}")
            e(f"ds_write_b64 v10, v[{b}:{b+1}] offset:{m*16*ESTRIDE + t*32}")
    e("s_waitcnt lgkmcnt(0)")
    e("s_branch L_store")

    e.label("L_prod")
    vm.clear()
    def SH(rnd, stage):
        ins = [f"s_add_u32 s27, s{S_SHS}, {rnd*4*N*2}"] + SC(stage, "s27", f"sh{rnd}")
        ins.append(f"s_add_u32 s26, s{S_SHQ}, {rnd*8*BK*QROW}")
        for i in range(8):
            r = qreg(stage, i, 0)
            ins.append((f"buffer_load_dwordx4 v[{r}:{r+3}], v{V_SOFF+i}, s[{S_Q}:{S_Q+3}], s26 offen{SHNT}", f"sh{rnd}"))
        return groups(ins)
    def X(st):
        if st >= 16: return []
        ins = [f"s_mov_b32 s25, {st*128}"]
        for a in range(8):
            if a % 4 == 0:
                ins.append(f"s_add_u32 m0, s{S_M0B}, {(st%XR)*XBUF + (a//4)*4096}")
                ins.append("s_nop 0")
            ins.append((f"buffer_load_dwordx4 v{V_XOFF+a}, s[{S_X}:{S_X+3}], s25 offen offset:{(a%4)*1024} lds", f"x{st}"))
        return groups(ins)
    e(f"v_and_b32 v{T+1}, 63, v0")
    e(f"s_and_b32 s{S_W}, s{S_W}, 3")
    e(f"v_lshrrev_b32 v{T+4}, 5, v{T+1}")
    e(f"s_mov_b32 s27, {64*QROW}")
    e(f"v_mul_lo_u32 v{T+5}, v{T+4}, s27")
    e(f"s_mul_i32 s27, s{S_MT}, {8*QROW}")
    e(f"v_add3_u32 v{V_SOFF}, v{T+5}, s27, v14")
    for i in range(1, 8):
        e(f"v_add_u32 v{V_SOFF+i}, {i*QROW}, v{V_SOFF}")
    e(f"s_mul_i32 s{S_SHQ}, s{S_W}, {2*BK*QROW}")
    e(f"s_add_u32 s{S_SHQ}, s{S_SHQ}, {H*BK*QROW}")
    e(f"s_mul_i32 s{S_SHS}, s{S_W}, {N*2}")
    e(f"s_add_u32 s{S_SHS}, s{S_SHS}, {(H//2)*N*2}")
    e(f"s_lshl_b32 s24, s{S_NT}, 2")
    e(f"v_mov_b32 v{V_NADDR}, s24")
    e(f"s_or_b32 s25, s{S_W}, s{S_MT}")
    e(f"s_cmp_eq_u32 s25, 0")
    e("s_cselect_b32 s24, s24, 0x1000")
    e(f"v_mov_b32 v{T+6}, s24")
    e("s_waitcnt lgkmcnt(0)")
    stamp2(e)
    srd(S_DBG, 50, 256)
    e("s_or_b32 s54, s54, 1")
    e(f"v_mov_b32 v{T+7}, s54")
    e("s_mov_b64 exec, 1")
    issue([(f"buffer_store_dword v{T+7}, v{T+6}, s[{S_DBG}:{S_DBG+3}], 0 offen sc1", "ns")])
    e("s_mov_b64 exec, -1")
    srd(S_SC, 44, 8 * N * 2)
    srd(S_Z, 46, 8 * N * 2)
    srd(S_Q, 42, K * N * 4)
    srd(S_X, 40, M * K * 2)
    if STAG:
        e(f"s_cmp_ge_u32 s{S_W}, 2")
        e("s_cbranch_scc1 L_late_sh")
    for g_ in SH(0, 0): issue(g_)
    if STAG: e.label("L_late_sh")
    e(f"v_bfe_u32 v{T+3}, v0, 4, 2")
    e(f"v_and_b32 v{T+2}, 3, v1")
    e(f"v_lshrrev_b32 v{T+8}, 3, v{T+1}")
    e(f"v_lshl_add_u32 v{T+8}, v{T+2}, 6, v{T+8}")
    e(f"v_add_u32 v{T+8}, s{S_M0}, v{T+8}")
    e(f"v_lshlrev_b32 v{T+8}, 11, v{T+8}")
    e(f"v_and_b32 v{T+9}, 7, v{T+1}")
    e(f"v_xor_b32 v{T+9}, v{T+9}, v{T+3}")
    e(f"v_xor_b32 v{T+10}, 4, v{T+9}")
    e(f"v_lshl_add_u32 v{T+9}, v{T+9}, 4, v{T+8}")
    e(f"v_lshl_add_u32 v{T+10}, v{T+10}, 4, v{T+8}")
    for a in range(8):
        e(f"v_add_u32 v{V_XOFF+a}, {a*8*XROW - (a%4)*1024}, v{T+9+(a&1)}")
    e(f"s_lshl_b32 s{S_M0B}, s{S_W}, 13")
    e(f"v_lshrrev_b32 v{T+8}, 3, v{T+1}")
    e("s_lshl_b32 s24, s2, 3")
    e(f"v_add_u32 v{T+8}, s24, v{T+8}")
    e(f"v_lshlrev_b32 v{T+8}, 11, v{T+8}")
    e(f"v_and_b32 v{T+9}, 7, v{T+1}")
    e(f"v_lshl_add_u32 v{T+8}, v{T+9}, 4, v{T+8}")
    e(f"v_lshl_add_u32 v{T+15}, v{T+2}, 7, v{T+8}")
    def xpf(st):
        return [[f"s_mov_b32 s24, {st*128}",
                 (f"buffer_load_dwordx4 v[{V_DUM}:{V_DUM+3}], v{T+15}, s[{S_X}:{S_X+3}], s24 offen", "pf")]]
    if STAG:
        e(f"s_cmp_lt_u32 s{S_W}, 2")
        e("s_cbranch_scc1 L_early_sh")
        sv = list(vm)
        for g_ in X(0) + SH(0, 0): issue(g_)
        vm[:] = sv
        e.label("L_early_sh")
    stamp2(e)
    srd(S_O, 48, M * N * 2)
    srd(S_WS, 52, WS_BYTES)
    qoff_wr_setup()
    wr_setup()
    for pc in range(4):
        e(f"v_add_u32 v{T+11}, {pc*64}, v{T+1}")
        e(f"v_lshlrev_b32 v{V_GW+pc}, 4, v{T+11}")
        e(f"v_add_u32 v{T+13}, {WBUF-1792}, v{V_GW+pc}")
        e(f"v_cmp_le_u32 vcc, 112, v{T+11}")
        e("s_nop 1")
        e(f"v_cndmask_b32 v{V_GW+pc}, v{V_GW+pc}, v{T+13}, vcc")
    e(f"v_lshlrev_b32 v{V_L16}, 4, v{T+1}")
    e(f"s_mul_i32 s{S_IMGB}, s{S_NT}, {16*WBUF}")
    e(f"s_mul_i32 s24, s{S_MT}, 1792")
    e(f"s_add_u32 s{S_SHW}, s{S_IMGB}, s24")
    e(f"s_mul_i32 s24, s{S_W}, {2*WBUF}")
    e(f"s_add_u32 s{S_SHW}, s{S_SHW}, s24")
    e(f"s_add_u32 s{S_SHW}, s{S_SHW}, {H*WBUF}")
    e(f"s_mul_i32 s24, s{S_W}, 3584")
    e(f"s_add_u32 s{S_IMGB}, s{S_IMGB}, s24")
    e(f"s_add_u32 s{S_WM0}, s24, {LDS_W}")
    e(f"v_add_u32 v{T+14}, s{S_WM0}, v{V_L16}")
    e(f"s_lshl_b32 s24, s{S_NT}, 3")
    e(f"s_add_u32 s25, s24, s{S_MT}")
    e(f"s_lshl_b32 s25, s25, 3")
    e(f"s_add_u32 s25, s25, s{S_W}")
    e(f"s_lshl_b32 s25, s25, 7")
    e(f"s_add_u32 s{S_FLG}, s25, {WS_FLAG}")
    e(f"v_and_b32 v{T+8}, 1, v{T+1}")
    e(f"v_lshl_add_u32 v{T+8}, v{T+2}, 1, v{T+8}")
    e(f"v_add_u32 v{T+8}, s24, v{T+8}")
    e(f"v_lshrrev_b32 v{T+9}, 1, v{T+1}")
    e(f"v_min_u32 v{T+9}, {NPAIR-1}, v{T+9}")
    e(f"v_lshl_add_u32 v{T+8}, v{T+8}, 3, v{T+9}")
    e(f"v_lshlrev_b32 v{T+8}, 7, v{T+8}")
    e(f"v_add_u32 v{V_FADDR}, {WS_FLAG}, v{T+8}")
    e(f"v_mov_b32 v{V_Z}, 0")
    e(f"s_mov_b32 s{S_READY}, 0")
    e(f"s_mov_b32 s{S_FBK}, 0")
    uid = [0]
    def share_out(rnd, slot):
        e("s_waitcnt lgkmcnt(0)")
        for pc in range(4):
            e(f"ds_read_b128 v[{V_P+4*pc}:{V_P+4*pc+3}], v{T+14} offset:{slot*WBUF+pc*1024}")
        e(f"s_add_u32 s27, s{S_SHW}, {rnd*8*WBUF}")
        for pc in range(4):
            e(f"s_waitcnt lgkmcnt({3-pc})")
            if pc == 3: e("s_mov_b32 exec_hi, 0")
            issue([(f"buffer_store_dwordx4 v[{V_P+4*pc}:{V_P+4*pc+3}], v{V_GW+pc}, s[{S_WS}:{S_WS+3}], s27 offen sc1", f"st{rnd}")])
            if pc == 3: e("s_mov_b32 exec_hi, -1")
    def has_round(rnd):
        return max(0, min(4, NPAIR - 4 * rnd))
    def publish(rnd):
        nw = has_round(rnd)
        e(f"s_waitcnt vmcnt({need(f'st{rnd}')})")
        e(f"s_add_u32 s27, s{S_FLG}, {rnd*4*128}")
        if nw < 4:
            e(f"s_cmp_lt_u32 s{S_W}, {nw}")
            e(f"s_cselect_b32 s27, s27, 0x40000000")
        if FORCEFB:
            e(f"s_cmp_eq_u32 s{S_MT}, {FORCEFB-1}")
            e(f"s_cselect_b32 s27, 0x40000000, s27")
        e("s_mov_b64 exec, 1")
        issue([(f"buffer_store_dword v{V_NONCE}, v{V_Z}, s[{S_WS}:{S_WS+3}], s27 offen sc1", "fl")])
        e("s_mov_b64 exec, -1")
    def Wd(st):
        if st >= 16: return
        j = (st - H) // 2
        mask = 3 << (2 * j)
        uid[0] += 1
        u = uid[0]
        e(f"s_and_b32 s24, s{S_READY}, {mask}")
        e(f"s_cmp_eq_u32 s24, {mask}")
        e(f"s_cbranch_scc1 L_rdy{u}")
        e(f"s_cmp_eq_u32 s{S_NON}, 0")
        e(f"s_cbranch_scc1 L_fb{u}")
        e(f"s_mov_b32 s{S_CNT}, s{S_FBK}")
        e.label(f"L_poll{u}")
        e(f"buffer_load_dword v{V_FLAG}, v{V_FADDR}, s[{S_WS}:{S_WS+3}], 0 offen sc1")
        e("s_waitcnt vmcnt(0)")
        e(f"v_cmp_eq_u32 vcc, v{V_FLAG}, v{V_NONCE}")
        e(f"s_mov_b32 s{S_READY}, vcc_lo")
        e(f"s_and_b32 s24, s{S_READY}, {mask}")
        e(f"s_cmp_eq_u32 s24, {mask}")
        e(f"s_cbranch_scc1 L_rdy{u}")
        e("s_sleep 2")
        e(f"s_add_u32 s{S_CNT}, s{S_CNT}, 1")
        e(f"s_cmp_lt_u32 s{S_CNT}, {SPIN}")
        e(f"s_cbranch_scc1 L_poll{u}")
        e.label(f"L_fb{u}")
        e(f"s_mov_b32 s{S_FBK}, {SPIN}")
        e(f"s_mov_b32 s{S_FBQ}, {st*BK*QROW}")
        e(f"s_mov_b32 s{S_FBL}, {(st%WR)*WBUF}")
        e(f"s_mov_b32 s{S_FBG}, {(st//2)*N*2}")
        e(f"s_call_b64 s[{S_RET}:{S_RET+1}], L_fallback")
        e(f"s_branch L_done{u}")
        e.label(f"L_rdy{u}")
        e(f"s_add_u32 s27, s{S_IMGB}, {st*WBUF}")
        e(f"s_add_u32 m0, s{S_WM0}, {(st%WR)*WBUF}")
        e("s_nop 0")
        for pce in range(3):
            e(f"buffer_load_dwordx4 v{V_L16}, s[{S_WS}:{S_WS+3}], s27 offen offset:{pce*1024} sc1 lds")
        e("s_mov_b32 exec_hi, 0")
        e(f"buffer_load_dwordx4 v{V_L16}, s[{S_WS}:{S_WS+3}], s27 offen offset:3072 sc1 lds")
        e("s_mov_b32 exec_hi, -1")
        e.label(f"L_done{u}")
        for _ in range(4): vm.append(f"w{st}")

    e("s_waitcnt vmcnt(0)")
    stamp2(e)
    nl = [[(f"buffer_load_dword v{V_NONCE}, v{V_NADDR}, s[{S_DBG}:{S_DBG+3}], 0 offen sc1", "nl")]]
    issue(nl[0])
    work(dq_lds(0, 3), [])
    stamp2(e)
    share_out(0, 3)
    stamp2(e)
    e(f"s_cmp_ge_u32 s{S_W}, 2")
    e("s_cbranch_scc1 L_xb")
    sv = list(vm)
    for g_ in X(0): issue(g_)
    vm[:] = sv
    e("s_branch L_xc")
    e.label("L_xb")
    for g_ in X(1): issue(g_)
    e.label("L_xc")
    nsh = 0
    if SH1AT < 0:
        for g_ in SH(1, 1) + (xpf(3) + xpf(7) + xpf(11) + xpf(15) if XPF else []): issue(g_)
        nsh = 10 + (4 if XPF else 0)
    e(f"s_waitcnt vmcnt({8 + nsh})")
    e(f"v_readfirstlane_b32 s{S_NON}, v{V_NONCE}")
    e(f"s_cmp_lg_u32 s{S_NON}, 0")
    e("s_cbranch_scc1 L_n_got")
    e(f"s_mov_b32 s{S_CNT}, 0")
    e.label("L_n_poll")
    e(f"buffer_load_dword v{V_NONCE}, v{V_NADDR}, s[{S_DBG}:{S_DBG+3}], 0 offen sc1")
    e("s_waitcnt vmcnt(0)")
    e(f"v_readfirstlane_b32 s{S_NON}, v{V_NONCE}")
    e(f"s_cmp_lg_u32 s{S_NON}, 0")
    e("s_cbranch_scc1 L_n_got")
    e("s_sleep 2")
    e(f"s_add_u32 s{S_CNT}, s{S_CNT}, 1")
    e(f"s_cmp_lt_u32 s{S_CNT}, {SPIN}")
    e("s_cbranch_scc1 L_n_poll")
    e.label("L_n_got")
    publish(0)
    e(f"s_cmp_ge_u32 s{S_W}, 2")
    e("s_cbranch_scc1 L_xd")
    sv = list(vm)
    for g_ in X(1): issue(g_)
    vm[:] = sv + ['x1!'] * 8
    e(f"s_waitcnt vmcnt({9 + nsh})")
    e.label("L_xd")
    stamp(e)
    e("s_barrier")
    stamp(e)
    assert WLEAD == 2 and WSTART == 1 and R1 == 0 and PUB1 == 1 and SH1AT < 0
    for it in range(2):
        xs = X(it + 2)
        todo = [st for st in range(H, 16) if min(max(st - WLEAD, WSTART), st - 1) == it]
        if it == 0:
            for g_ in xs: issue(g_)
            xs = []
        for st in todo: Wd(st)
        for g_ in xs: issue(g_)
        if it == R1:
            e(f"s_waitcnt vmcnt({need('sh1')})")
            work(dq_lds(1, (it + 3) % WR), [])
            share_out(1, (it + 3) % WR)
        if it == PUB1:
            publish(1)
        stamp(e)
        tags = [f"x{it+1}"] + ([f"w{it+1}"] if it + 1 >= H else [])
        e(f"s_waitcnt vmcnt({min(need(t) for t in tags)}) lgkmcnt(0)")
        e("s_barrier")
    e(f"s_mov_b32 s{S_ST}, 4")
    e(f"s_mov_b32 s{S_XO}, {(4 % XR) * XBUF}")
    e(f"s_mov_b32 s{S_WO}, {(4 % WR) * WBUF}")
    e(f"s_mov_b32 s{S_XKQ}, {4*128}")
    e(f"s_add_u32 s{S_WSRC}, s{S_IMGB}, {4*WBUF}")
    e.label("L_ploop")
    e(f"s_sub_u32 s24, s{S_ST}, {H}")
    e(f"s_and_b32 s24, s24, 0xfe")
    e(f"s_lshl_b32 s{S_MASK}, 3, s24")
    e(f"s_and_b32 s24, s{S_READY}, s{S_MASK}")
    e(f"s_cmp_eq_u32 s24, s{S_MASK}")
    e("s_cbranch_scc1 L_rdyL")
    e(f"s_cmp_eq_u32 s{S_NON}, 0")
    e("s_cbranch_scc1 L_fbL")
    e(f"s_mov_b32 s{S_CNT}, s{S_FBK}")
    e.label("L_pollL")
    e(f"buffer_load_dword v{V_FLAG}, v{V_FADDR}, s[{S_WS}:{S_WS+3}], 0 offen sc1")
    e("s_waitcnt vmcnt(0)")
    e(f"v_cmp_eq_u32 vcc, v{V_FLAG}, v{V_NONCE}")
    e(f"s_mov_b32 s{S_READY}, vcc_lo")
    e(f"s_and_b32 s24, s{S_READY}, s{S_MASK}")
    e(f"s_cmp_eq_u32 s24, s{S_MASK}")
    e("s_cbranch_scc1 L_rdyL")
    e("s_sleep 2")
    e(f"s_add_u32 s{S_CNT}, s{S_CNT}, 1")
    e(f"s_cmp_lt_u32 s{S_CNT}, {SPIN}")
    e("s_cbranch_scc1 L_pollL")
    e.label("L_fbL")
    e(f"s_mov_b32 s{S_FBK}, {SPIN}")
    e(f"s_mul_i32 s{S_FBQ}, s{S_ST}, {BK*QROW}")
    e(f"s_mov_b32 s{S_FBL}, s{S_WO}")
    e(f"s_lshr_b32 s24, s{S_ST}, 1")
    e(f"s_mul_i32 s{S_FBG}, s24, {N*2}")
    e(f"s_call_b64 s[{S_RET}:{S_RET+1}], L_fallback")
    e("s_branch L_doneL")
    e.label("L_rdyL")
    e(f"s_add_u32 m0, s{S_WM0}, s{S_WO}")
    e("s_nop 0")
    for pce in range(3):
        e(f"buffer_load_dwordx4 v{V_L16}, s[{S_WS}:{S_WS+3}], s{S_WSRC} offen offset:{pce*1024} sc1 lds")
    e("s_mov_b32 exec_hi, 0")
    e(f"buffer_load_dwordx4 v{V_L16}, s[{S_WS}:{S_WS+3}], s{S_WSRC} offen offset:3072 sc1 lds")
    e("s_mov_b32 exec_hi, -1")
    e.label("L_doneL")
    e(f"s_add_u32 s24, s{S_M0B}, s{S_XO}")
    for a in range(8):
        if a % 4 == 0:
            e(f"s_add_u32 m0, s24, {(a//4)*4096}")
            e("s_nop 0")
        e(f"buffer_load_dwordx4 v{V_XOFF+a}, s[{S_X}:{S_X+3}], s{S_XKQ} offen offset:{(a%4)*1024} lds")
    e(f"s_add_u32 s{S_XO}, s{S_XO}, {XBUF}")
    e(f"s_cmp_eq_u32 s{S_XO}, {XR*XBUF}")
    e(f"s_cselect_b32 s{S_XO}, 0, s{S_XO}")
    e(f"s_add_u32 s{S_WO}, s{S_WO}, {WBUF}")
    e(f"s_cmp_eq_u32 s{S_WO}, {WR*WBUF}")
    e(f"s_cselect_b32 s{S_WO}, 0, s{S_WO}")
    e(f"s_add_u32 s{S_XKQ}, s{S_XKQ}, 128")
    e(f"s_add_u32 s{S_WSRC}, s{S_WSRC}, {WBUF}")
    stamp(e)
    e(f"s_add_u32 s{S_ST}, s{S_ST}, 1")
    e(f"s_cmp_lt_u32 s{S_ST}, 16")
    e("s_waitcnt vmcnt(12)")
    e("s_barrier")
    e("s_cbranch_scc1 L_ploop")
    stamp(e)
    e("s_waitcnt vmcnt(0)")
    e("s_barrier")
    stamp(e)
    e("s_barrier")
    e("s_branch L_store")

    e.label("L_fallback")
    r0 = raw(FB_STAGE)
    e(f"buffer_load_dwordx2 v[{r0}:{r0+1}], v{V_SCO}, s[{S_SC}:{S_SC+3}], s{S_FBG} offen")
    e(f"buffer_load_dwordx2 v[{r0+2}:{r0+3}], v{V_SCO}, s[{S_Z}:{S_Z+3}], s{S_FBG} offen")
    for i in range(8):
        r = qreg(FB_STAGE, i, 0)
        e(f"buffer_load_dwordx4 v[{r}:{r+3}], v{V_QOFF+i}, s[{S_Q}:{S_Q+3}], s{S_FBQ} offen")
    for c in range(4):
        e(f"v_add_u32 v{T+8+c}, s{S_FBL}, v{V_WR+c}")
    e("s_waitcnt vmcnt(0)")
    for op in dequant_ops(FB_STAGE):
        if isinstance(op, tuple):
            e(f"ds_write_b128 v{T+8+op[1]}, v[{V_P+4*op[1]}:{V_P+4*op[1]+3}]")
        else:
            e(op)
    e("s_waitcnt lgkmcnt(0)")
    e(f"s_setpc_b64 s[{S_RET}:{S_RET+1}]")

    e.label("L_store")
    e("v_and_b32 v10, 63, v0")
    e("v_mul_u32_u24 v11, 0x1250, v10")
    e("v_lshrrev_b32 v11, 16, v11")
    e("v_mul_u32_u24 v12, 14, v11")
    e("v_sub_u32 v12, v10, v12")
    e("v_lshl_add_u32 v13, v1, 5, v11")
    e(f"s_mov_b32 s27, {ESTRIDE}")
    e("v_mul_lo_u32 v14, v13, s27")
    e("v_lshl_add_u32 v14, v12, 4, v14")
    e(f"v_add_u32 v13, s{S_M0}, v13")
    e(f"s_mov_b32 s27, {OROW}")
    e("v_mul_lo_u32 v13, v13, s27")
    e(f"s_lshl_b32 s28, s{S_N0}, 1")
    e("v_lshl_add_u32 v13, v12, 4, v13")
    e("v_add_u32 v13, s28, v13")
    e("v_cmp_gt_u32 vcc, 56, v10")
    e("s_barrier")
    e("s_and_saveexec_b64 s[56:57], vcc")
    for i in range(8):
        b = 128 + i * 4
        e(f"ds_read_b128 v[{b}:{b+3}], v14 offset:{i*4*ESTRIDE}")
    for i in range(8):
        b = 128 + i * 4
        e(f"s_mov_b32 s24, {i*4*OROW}")
        e(f"s_waitcnt lgkmcnt({7-i})")
        e(f"buffer_store_dwordx4 v[{b}:{b+3}], v13, s[{S_O}:{S_O+3}], s24 offen")
    e("s_mov_b64 exec, s[56:57]")
    if STAMP:
        stamp(e)
        e("s_waitcnt vmcnt(0)")
        stamp(e)
        stamp(e, True)
        e("s_mov_b32 s64, s52")
        e("s_and_b32 s65, s53, 0xffff")
        e("s_mov_b32 s66, 0x10000000")
        e("s_mov_b32 s67, 0x00020000")
        e("v_lshlrev_b32 v1, 2, v0")
        e("s_lshl_b32 s24, s2, 11")
        e(f"s_add_u32 s24, s24, {WS_STAMP}")
        e(f"buffer_store_dword v{C_ST}, v1, s[64:67], s24 offen")
    e.label("L_end")
    e("s_endpgm")

    out += e.lines
    out.append('.section .rodata,"a"')
    out.append(".p2align 6")
    out.append(".amdhsa_kernel standalone__w4a16_gemm_dequant__prompt_kernel")
    out.append("  .amdhsa_next_free_vgpr 256")
    out.append("  .amdhsa_next_free_sgpr 102")
    out.append("  .amdhsa_accum_offset 256")
    out.append("  .amdhsa_group_segment_fixed_size 0")
    out.append("  .amdhsa_kernarg_size 56")
    out.append("  .amdhsa_user_sgpr_count 2")
    out.append("  .amdhsa_user_sgpr_kernarg_segment_ptr 1")
    out.append("  .amdhsa_system_sgpr_workgroup_id_x 1")
    out.append("  .amdhsa_float_denorm_mode_32 3")
    out.append("  .amdhsa_float_denorm_mode_16_64 3")
    out.append(".end_amdhsa_kernel")
    return "\n".join(out) + "\n"


if __name__ == "__main__":
    dst = sys.argv[1] if len(sys.argv) > 1 else "standalone__w4a16_gemm_dequant__prompt.s"
    open(dst, "w").write(gen())
    print("wrote", dst)
```

```python
import sys, os
CPF = int(os.environ.get('CPF', '10'))
STAMP = bool(os.environ.get('STAMP'))
S2 = bool(os.environ.get('STAMP2'))
PRIO = int(os.environ.get('PRIO', '3'))
H = int(os.environ.get('H', '2'))
SPIN = int(os.environ.get('SPIN', '64'))
FORCEFB = int(os.environ.get('FORCEFB', '0'))
WLEAD = int(os.environ.get('WLEAD', '2'))
WSTART = int(os.environ.get('WSTART', '1'))
STAG = 1
TLBT = 0
STG2 = int(os.environ.get('STG2', '0'))
CXPOS = int(os.environ.get('CXPOS', '1'))
NONON = int(os.environ.get('NONON', '0'))
EPI2 = int(os.environ.get('EPI2', '1'))
SHNT = ' nt' if int(os.environ.get('SHNT', '1')) else ''
QNT = ' nt' if int(os.environ.get('QNT', '1')) else ''
SH1AT = int(os.environ.get('SH1AT', '-1'))
XPF = int(os.environ.get('XPF', '1'))
R1 = int(os.environ.get('R1', '0'))
PUB1 = int(os.environ.get('PUB1', '1'))
assert H in (2,)

M, N, K = 2048, 3584, 1024
BM, BN, BK = 256, 112, 64
QROW = N * 4
XROW = K * 2
OROW = N * 2
XBUF = BM * BK * 2
WBUF = BN * BK * 2
XR, WR = 3, 4
LDS_W = XR * XBUF
LDS_TOTAL = LDS_W + WR * WBUF
ESTRIDE = 240
NPAIR = (16 - H) // 2
WS_FLAG = 8 << 20
WS_BYTES = WS_FLAG + 256 * 8 * 128
WS_STAMP = 16 << 20

C_RDW = 2
C_RDX = 4
C_ST = 8
ACC = 16
def acc(t, m):
    b = ACC + (t * 4 + m) * 4
    return f"v[{b}:{b+3}]"
def acc1(t, m, r): return ACC + (t * 4 + m) * 4 + r
C_WF = 128
C_XF = 184
C_E = 220
def wf(s, t): b = C_WF + s * 28 + t * 4; return f"v[{b}:{b+3}]"
def xf(s, m): b = C_XF + s * 16 + m * 4; return f"v[{b}:{b+3}]"
V_XOFF = 16
V_QOFF = 24
V_S = 32
V_P = 40
V_WR = 60
V_SOFF = 64
V_GW = 72
V_T = 76
V_SCO = 92
V_RAW = 96
V_Q = 116
V_DUM = 244
V_L16, V_FADDR, V_NONCE, V_FLAG, V_Z, V_NADDR = 2, 3, 4, 5, 6, 7
FB_STAGE = 3
def qreg(stage, i, c): return V_Q + stage * 32 + i * 4 + c
def raw(stage): return V_RAW + 4 * stage

S_X, S_Q, S_O, S_SC, S_Z, S_WS, S_DBG = 4, 8, 12, 16, 20, 64, 84
S_C24, S_M0B = 34, 38
S_M0, S_N0, S_W, S_MT, S_NT = 35, 36, 37, 39, 33
S_READY, S_FBK, S_IMGB, S_WM0, S_SHQ, S_SHW, S_FLG, S_SHS = 68, 69, 70, 71, 72, 73, 74, 75
S_RET = 76
S_FBQ, S_FBL, S_FBG = 78, 79, 80
S_CNT, S_NON = 81, 82
S_XO, S_WO, S_IT, S_XKQ, S_WSRC, S_MASK, S_ST = 94, 95, 96, 97, 98, 99, 100
C_CUR = 9


class Emit:
    def __init__(self):
        self.lines = []
    def __call__(self, s):
        self.lines.append("    " + s)
    def label(self, s):
        self.lines.append(s + ":")


def stamp(e, real=False):
    if not STAMP: return
    e("s_memrealtime s[60:61]" if real else "s_memtime s[60:61]")
    e("s_waitcnt lgkmcnt(0)")
    e("s_mov_b32 m0, s58")
    e("s_nop 0")
    e(f"v_writelane_b32 v{C_ST}, s60, m0")
    e("s_add_u32 s58, s58, 1")
def stamp2(e):
    if S2: stamp(e)


def dequant_ops(stage):
    ops = []
    r0 = raw(stage)
    ops.append(f"v_lshlrev_b32 v{V_S}, 16, v{r0}")
    ops.append(f"v_and_b32 v{V_S+1}, 0xffff0000, v{r0}")
    ops.append(f"v_lshlrev_b32 v{V_S+2}, 16, v{r0+1}")
    ops.append(f"v_and_b32 v{V_S+3}, 0xffff0000, v{r0+1}")
    ops.append(f"v_lshlrev_b32 v{V_S+4}, 16, v{r0+2}")
    ops.append(f"v_and_b32 v{V_S+5}, 0xffff0000, v{r0+2}")
    ops.append(f"v_lshlrev_b32 v{V_S+6}, 16, v{r0+3}")
    ops.append(f"v_and_b32 v{V_S+7}, 0xffff0000, v{r0+3}")
    for c in range(4):
        for i in range(8):
            r = qreg(stage, i, c)
            ops.append(f"v_fma_mix_f32 v{r}, v{r}, s{S_C24}, -v{V_S+4+c} op_sel_hi:[1,0,0]")
        for j in range(4):
            ops.append(f"v_cvt_pk_bf16_f32 v{V_P+4*c+j}, v{qreg(stage,2*j,c)}, v{qreg(stage,2*j+1,c)}")
        for j in range(4):
            ops.append(f"v_lshlrev_b32 v{qreg(stage,2*j,c)}, 16, v{V_P+4*c+j}")
            ops.append(f"v_and_b32 v{qreg(stage,2*j+1,c)}, 0xffff0000, v{V_P+4*c+j}")
        for i in range(8):
            r = qreg(stage, i, c)
            ops.append(f"v_mul_f32 v{r}, v{r}, v{V_S+c}")
        for j in range(4):
            ops.append(f"v_cvt_pk_bf16_f32 v{V_P+4*c+j}, v{qreg(stage,2*j,c)}, v{qreg(stage,2*j+1,c)}")
        ops.append(("W", c))
    return ops


def gen():
    e = Emit()
    hdr = open("standalone__w4a16_gemm_dequant__prompt.s.ref").read().split("\n")
    out = []
    for l in hdr:
        if l.startswith("; @launch"):
            out.append(f"; @launch grid=(256,1,1) block=(512,1,1) lds={LDS_TOTAL}")
            break
        out.append(l)
    out.append('.amdgcn_target "amdgcn-amd-amdhsa--gfx950"')
    out.append(".text")
    out.append(".globl standalone__w4a16_gemm_dequant__prompt_kernel")
    out.append(".p2align 8")
    out.append(".type standalone__w4a16_gemm_dequant__prompt_kernel,@function")
    out.append("standalone__w4a16_gemm_dequant__prompt_kernel:")

    def srd(d, lo, nbytes):
        e(f"s_mov_b32 s{d}, s{lo}")
        e(f"s_and_b32 s{d+1}, s{lo+1}, 0xffff")
        e(f"s_mov_b32 s{d+2}, {nbytes}")
        e(f"s_mov_b32 s{d+3}, 0x00020000")

    vm = []
    def issue(lst):
        for f in lst:
            if isinstance(f, tuple):
                e(f[0])
                if f[1] is not None: vm.append(f[1])
            else:
                e(f)
    def need(tag):
        c = [i for i, t in enumerate(vm) if t.rstrip('!') == tag]
        assert c, tag
        return min(63, sum(1 for t in vm[max(c) + 1:] if not t.endswith('!')))
    def groups(lst):
        g_ = []; cur = []
        for f in lst:
            cur.append(f)
            if isinstance(f, tuple) and f[1] is not None:
                g_.append(cur); cur = []
        if cur:
            g_[-1] += cur
        return g_
    def work(ops, seq):
        n = len(ops); k = len(seq); gi = 0
        for i, op in enumerate(ops):
            while gi < k and gi * n <= i * k:
                issue(seq[gi]); gi += 1
            issue([op])
        while gi < k:
            issue(seq[gi]); gi += 1
    def dq_lds(stage, slot):
        return [f"ds_write_b128 v{V_WR+op[1]}, v[{V_P+4*op[1]}:{V_P+4*op[1]+3}] offset:{slot*WBUF}" if isinstance(op, tuple) else op
                for op in dequant_ops(stage)]
    def SC(stage, soff, tag):
        r0 = raw(stage)
        return [(f"buffer_load_dwordx2 v[{r0}:{r0+1}], v{V_SCO}, s[{S_SC}:{S_SC+3}], {soff} offen", tag),
                (f"buffer_load_dwordx2 v[{r0+2}:{r0+3}], v{V_SCO}, s[{S_Z}:{S_Z+3}], {soff} offen", tag)]

    T = V_T
    e("s_cmp_ge_u32 s2, 256")
    e("s_cbranch_scc1 L_end")
    if CPF:
        e("s_getpc_b64 s[90:91]")
        e("v_lshlrev_b32 v2, 7, v0")
        e(f"v_cmp_gt_u32 vcc, {CPF*1024}, v2")
        e("s_and_saveexec_b64 s[92:93], vcc")
        e("s_cbranch_execz L_nocpf")
        e("global_load_dword v255, v2, s[90:91]")
        e.label("L_nocpf")
        e("s_mov_b64 exec, s[92:93]")
    e("s_load_dwordx8 s[40:47], s[0:1], 0")
    e("s_load_dwordx4 s[48:51], s[0:1], 32")
    e("s_load_dwordx2 s[52:53], s[0:1], 48")
    e("s_memrealtime s[54:55]")
    if STAMP:
        e("s_mov_b32 s58, 0")
        e(f"v_mov_b32 v{C_ST}, 0")
        stamp(e, True)
        stamp(e)
    e("s_and_b32 s24, s2, 7")
    e("s_lshr_b32 s25, s2, 3")
    e("s_and_b32 s26, s25, 3")
    e("s_lshl_b32 s24, s24, 2")
    e(f"s_add_u32 s{S_NT}, s24, s26")
    e(f"s_lshr_b32 s{S_MT}, s25, 2")
    e(f"s_mul_i32 s{S_N0}, s{S_NT}, {BN}")
    e(f"s_lshl_b32 s{S_M0}, s{S_MT}, 8")
    e("v_lshrrev_b32 v1, 6, v0")
    e("v_and_b32 v10, 255, v0")
    e(f"v_readfirstlane_b32 s{S_W}, v1")
    e("v_lshrrev_b32 v11, 5, v10")
    e("v_and_b32 v12, 31, v10")
    e("v_min_u32 v12, 27, v12")
    e(f"s_lshl_b32 s28, s{S_N0}, 2")
    e("v_lshl_add_u32 v14, v12, 4, s28")
    e(f"v_lshrrev_b32 v{V_SCO}, 1, v14")
    e(f"s_mov_b32 s{S_C24}, 0x4b800000")
    e(f"s_cmp_ge_u32 s{S_W}, 4")
    e("s_cbranch_scc1 L_prod")

    def qoff_wr_setup():
        e(f"s_mov_b32 s27, {8*QROW}")
        e(f"v_mul_lo_u32 v13, v11, s27")
        e(f"v_add_u32 v{V_QOFF}, v14, v13")
        for i in range(1, 8):
            e(f"v_add_u32 v{V_QOFF+i}, {i*QROW}, v{V_QOFF}")
    def wr_setup():
        e(f"v_lshrrev_b32 v{T+8}, 2, v12")
        e(f"v_and_b32 v{T+9}, 3, v12")
        e(f"v_and_b32 v{T+10}, 1, v{T+8}")
        e(f"v_lshlrev_b32 v{T+10}, 1, v{T+10}")
        e(f"v_lshrrev_b32 v{T+11}, 1, v{T+9}")
        e(f"v_add_u32 v{T+10}, v{T+10}, v{T+11}")
        e(f"v_lshlrev_b32 v{T+8}, 8, v{T+8}")
        e(f"v_lshl_add_u32 v{T+8}, v{T+9}, 6, v{T+8}")
        e(f"v_mul_u32_u24 v{T+12}, 1792, v11")
        e(f"v_add_u32 v{T+12}, v{T+12}, v{T+8}")
        e(f"v_add_u32 v{T+12}, {LDS_W}, v{T+12}")
        for c in range(4):
            e(f"v_xor_b32 v{T+11}, {c}, v{T+10}")
            e(f"v_lshl_add_u32 v{V_WR+c}, v{T+11}, 4, v{T+12}")
    def Q(st, stage):
        ins = [f"s_mov_b32 s24, {st*BK*QROW}"]
        for i in range(8):
            r = qreg(stage, i, 0)
            ins.append((f"buffer_load_dwordx4 v[{r}:{r+3}], v{V_QOFF+i}, s[{S_Q}:{S_Q+3}], s24 offen{QNT}", f"q{st}"))
        return groups(ins)

    def X(st):
        if st >= 16: return []
        ins = [f"s_mov_b32 s25, {st*128}"]
        for a in range(8):
            if a % 4 == 0:
                ins.append(f"s_add_u32 m0, s{S_M0B}, {(st%XR)*XBUF + (a//4)*4096}")
                ins.append("s_nop 0")
            ins.append((f"buffer_load_dwordx4 v{V_XOFF+a}, s[{S_X}:{S_X+3}], s25 offen offset:{(a%4)*1024} lds", f"x{st}"))
        return groups(ins)
    def xoff_setup():
        e(f"v_and_b32 v{T+1}, 63, v0")
        e(f"v_bfe_u32 v{T+3}, v0, 4, 2")
        e(f"v_and_b32 v{T+2}, 3, v1")
        e(f"v_lshrrev_b32 v{T+8}, 3, v{T+1}")
        e(f"v_lshl_add_u32 v{T+8}, v{T+2}, 6, v{T+8}")
        e(f"v_add_u32 v{T+8}, s{S_M0}, v{T+8}")
        e(f"v_lshlrev_b32 v{T+8}, 11, v{T+8}")
        e(f"v_and_b32 v{T+9}, 7, v{T+1}")
        e(f"v_xor_b32 v{T+9}, v{T+9}, v{T+3}")
        e(f"v_xor_b32 v{T+10}, 4, v{T+9}")
        e(f"v_lshl_add_u32 v{T+9}, v{T+9}, 4, v{T+8}")
        e(f"v_lshl_add_u32 v{T+10}, v{T+10}, 4, v{T+8}")
        for a in range(8):
            e(f"v_add_u32 v{V_XOFF+a}, {a*8*XROW - (a%4)*1024}, v{T+9+(a&1)}")
        e(f"s_and_b32 s24, s{S_W}, 3")
        e(f"s_lshl_b32 s{S_M0B}, s24, 13")

    qoff_wr_setup()
    e("s_waitcnt lgkmcnt(0)")
    srd(S_SC, 44, 8 * N * 2)
    srd(S_Z, 46, 8 * N * 2)
    srd(S_Q, 42, K * N * 4)
    issue(SC(0, "0", "q0"))
    for g_ in Q(0, 0): issue(g_)
    for g_ in Q(1, 1): issue(g_)
    srd(S_O, 48, M * N * 2)
    srd(S_X, 40, M * K * 2)
    xoff_setup()
    if CXPOS == 0:
        for g_ in X(0) + X(1): issue(g_)
    if TLBT:
        srd(S_WS, 52, WS_BYTES)
        e("v_and_b32 v10, 63, v0")
        e("v_lshl_add_u32 v10, v1, 6, v10")
        e(f"v_add_u32 v10, s{S_M0}, v10")
        e(f"s_mov_b32 s27, {OROW}")
        e("v_mul_lo_u32 v10, v10, s27")
        e(f"s_lshl_b32 s27, s{S_N0}, 1")
        e("s_mov_b64 exec, 1")
        issue([(f"buffer_load_dword v{V_DUM}, v10, s[{S_O}:{S_O+3}], s27 offen", "tl")])
        e(f"s_mul_i32 s27, s{S_NT}, {16*WBUF}")
        e(f"s_cmp_eq_u32 s{S_W}, 1")
        e(f"s_cselect_b32 s27, {WS_FLAG}, s27")
        e(f"v_mov_b32 v10, 0")
        issue([(f"buffer_load_dword v{V_DUM}, v10, s[{S_WS}:{S_WS+3}], s27 offen sc1", "tl")])
        e("s_mov_b64 exec, -1")
    wr_setup()
    e("v_and_b32 v14, 15, v0")
    e("v_bfe_u32 v15, v0, 4, 2")
    e("v_lshrrev_b32 v10, 3, v14")
    e("v_xor_b32 v10, v10, v14")
    e("v_mul_u32_u24 v11, 1792, v15")
    e(f"v_add_u32 v11, {LDS_W}, v11")
    e(f"v_lshl_add_u32 v{C_RDW}, v10, 4, v11")
    e("v_xor_b32 v10, 2, v10")
    e(f"v_lshl_add_u32 v{C_RDW+1}, v10, 4, v11")
    e("v_lshrrev_b32 v10, 1, v14")
    e("v_xor_b32 v10, v10, v15")
    e("v_lshlrev_b32 v11, 13, v1")
    e("v_lshl_add_u32 v11, v14, 7, v11")
    e(f"v_lshl_add_u32 v{C_RDX}, v10, 4, v11")
    e(f"v_xor_b32 v{C_RDX+1}, 64, v{C_RDX}")
    e(f"v_add_u32 v{C_RDX+2}, {2*XBUF}, v{C_RDX}")
    e(f"v_add_u32 v{C_RDX+3}, {2*XBUF}, v{C_RDX+1}")
    stamp(e)
    e(f"s_waitcnt vmcnt({need('q0')})")
    for r in range(4):
        e(f"v_mov_b32 v{raw(1)+r}, v{raw(0)+r}")
    work(dq_lds(0, 0), X(0) if CXPOS else [])
    e(f"s_waitcnt vmcnt({need('q1')})")
    work(dq_lds(1, 1), X(1) if CXPOS else [])
    e("s_waitcnt lgkmcnt(0)")
    for i in range(0, 112, 2):
        e(f"v_mov_b64 v[{ACC+i}:{ACC+i+1}], 0")
    for i in range(0, 28, 2):
        e(f"v_mov_b64 v[{C_WF+28+i}:{C_WF+28+i+1}], 0")
    for i in range(0, 16, 2):
        e(f"v_mov_b64 v[{C_XF+16+i}:{C_XF+16+i+1}], 0")
    e(f"s_mov_b32 s{S_XO}, 0")
    e(f"s_mov_b32 s{S_WO}, 0")
    e(f"s_mov_b32 s{S_IT}, 0")
    e(f"v_mov_b32 v{C_CUR}, v{C_RDX}")
    e(f"v_mov_b32 v{C_CUR+1}, v{C_RDX+1}")
    e(f"v_mov_b32 v{C_CUR+2}, v{C_RDW}")
    e(f"v_mov_b32 v{C_CUR+3}, v{C_RDW+1}")
    e(f"s_setprio {PRIO}")
    e("s_waitcnt vmcnt(0)")
    stamp(e)
    def wread(s_set, t, s):
        return f"ds_read_b128 {wf(s_set,t)}, v{C_CUR+2+(t&1)} offset:{s*7168+t*256}"
    def xread(s_set, m, s):
        return f"ds_read_b128 {xf(s_set,m)}, v{C_CUR+s} offset:{m*2048}"
    def mfmas(s_set, ts):
        return [f"v_mfma_f32_16x16x32_bf16 {acc(t,m)}, {wf(s_set,t)}, {xf(s_set,m)}, {acc(t,m)}" for t in ts for m in range(4)]
    def interleave(mf, fill):
        j = 0
        for m_ in mf:
            e(m_)
            if j < len(fill):
                e(fill[j]); j += 1
        while j < len(fill):
            e(fill[j]); j += 1
    e.label("L_cloop")
    e("s_barrier")
    fill = [xread(0, m, 0) for m in range(4)] + [wread(0, t, 0) for t in range(7)]
    for f in fill[:3]: e(f)
    interleave(mfmas(1, [4, 5, 6]), fill[3:])
    e("s_waitcnt lgkmcnt(0)")
    fill = [xread(1, m, 1) for m in range(4)] + [wread(1, t, 1) for t in range(7)]
    interleave(mfmas(0, range(7)), fill)
    e("s_waitcnt lgkmcnt(0)")
    adv = [f"s_add_u32 s{S_XO}, s{S_XO}, {XBUF}",
           f"s_cmp_eq_u32 s{S_XO}, {XR*XBUF}",
           f"s_cselect_b32 s{S_XO}, 0, s{S_XO}",
           f"s_add_u32 s{S_WO}, s{S_WO}, {WBUF}",
           f"s_cmp_eq_u32 s{S_WO}, {WR*WBUF}",
           f"s_cselect_b32 s{S_WO}, 0, s{S_WO}",
           f"v_add_u32 v{C_CUR}, s{S_XO}, v{C_RDX}",
           f"v_add_u32 v{C_CUR+1}, s{S_XO}, v{C_RDX+1}",
           f"v_add_u32 v{C_CUR+2}, s{S_WO}, v{C_RDW}",
           f"v_add_u32 v{C_CUR+3}, s{S_WO}, v{C_RDW+1}",
           f"s_add_u32 s{S_IT}, s{S_IT}, 1"]
    mf = mfmas(1, [0, 1, 2, 3])
    interleave(mf[:-2], adv)
    stamp(e)
    e(f"s_cmp_lt_u32 s{S_IT}, 16")
    for m_ in mf[-2:]: e(m_)
    e("s_cbranch_scc1 L_cloop")
    e("s_barrier")
    for m_ in mfmas(1, [4, 5, 6]): e(m_)
    e(f"s_mov_b32 s27, {ESTRIDE}")
    e("v_lshl_add_u32 v10, v1, 6, v14")
    e("v_mul_lo_u32 v10, v10, s27")
    e("v_lshl_add_u32 v10, v15, 3, v10")
    for m in range(4):
        for t in range(7):
            b = C_E + ((m * 7 + t) % 8) * 2
            e(f"v_cvt_pk_bf16_f32 v{b}, v{acc1(t,m,0)}, v{acc1(t,m,1)}")
            e(f"v_cvt_pk_bf16_f32 v{b+1}, v{acc1(t,m,2)}, v{acc1(t,m,3)}")
            e(f"ds_write_b64 v10, v[{b}:{b+1}] offset:{m*16*ESTRIDE + t*32}")
    e("s_waitcnt lgkmcnt(0)")
    e("s_branch L_store")

    e.label("L_prod")
    vm.clear()
    def SH(rnd, stage):
        ins = [f"s_add_u32 s27, s{S_SHS}, {rnd*4*N*2}"] + SC(stage, "s27", f"sh{rnd}")
        ins.append(f"s_add_u32 s26, s{S_SHQ}, {rnd*8*BK*QROW}")
        for i in range(8):
            r = qreg(stage, i, 0)
            ins.append((f"buffer_load_dwordx4 v[{r}:{r+3}], v{V_SOFF+i}, s[{S_Q}:{S_Q+3}], s26 offen{SHNT}", f"sh{rnd}"))
        return groups(ins)
    e(f"v_and_b32 v{T+1}, 63, v0")
    e(f"s_and_b32 s{S_W}, s{S_W}, 3")
    e(f"v_lshrrev_b32 v{T+4}, 5, v{T+1}")
    e(f"s_mov_b32 s27, {64*QROW}")
    e(f"v_mul_lo_u32 v{T+5}, v{T+4}, s27")
    e(f"s_mul_i32 s27, s{S_MT}, {8*QROW}")
    e(f"v_add3_u32 v{V_SOFF}, v{T+5}, s27, v14")
    for i in range(1, 8):
        e(f"v_add_u32 v{V_SOFF+i}, {i*QROW}, v{V_SOFF}")
    e(f"s_mul_i32 s{S_SHQ}, s{S_W}, {2*BK*QROW}")
    e(f"s_add_u32 s{S_SHQ}, s{S_SHQ}, {H*BK*QROW}")
    e(f"s_mul_i32 s{S_SHS}, s{S_W}, {N*2}")
    e(f"s_add_u32 s{S_SHS}, s{S_SHS}, {(H//2)*N*2}")
    e(f"s_lshl_b32 s24, s{S_NT}, 2")
    e(f"v_mov_b32 v{V_NADDR}, s24")
    e(f"s_or_b32 s25, s{S_W}, s{S_MT}")
    e(f"s_cmp_eq_u32 s25, 0")
    e("s_cselect_b32 s24, s24, 0x1000")
    if NONON: e("s_mov_b32 s24, 0x1000")
    e(f"v_mov_b32 v{T+6}, s24")
    e("s_waitcnt lgkmcnt(0)")
    stamp2(e)
    srd(S_DBG, 50, 256)
    e("s_or_b32 s54, s54, 1")
    e(f"v_mov_b32 v{T+7}, s54")
    e("s_mov_b64 exec, 1")
    issue([(f"buffer_store_dword v{T+7}, v{T+6}, s[{S_DBG}:{S_DBG+3}], 0 offen sc1", "ns")])
    e("s_mov_b64 exec, -1")
    srd(S_SC, 44, 8 * N * 2)
    srd(S_Z, 46, 8 * N * 2)
    srd(S_Q, 42, K * N * 4)
    srd(S_X, 40, M * K * 2)
    for g_ in SH(0, 0): issue(g_)
    xoff_setup()
    e(f"v_lshrrev_b32 v{T+8}, 3, v{T+1}")
    e("s_lshl_b32 s24, s2, 3")
    e(f"v_add_u32 v{T+8}, s24, v{T+8}")
    e(f"v_lshlrev_b32 v{T+8}, 11, v{T+8}")
    e(f"v_and_b32 v{T+9}, 7, v{T+1}")
    e(f"v_lshl_add_u32 v{T+8}, v{T+9}, 4, v{T+8}")
    e(f"v_lshl_add_u32 v{T+15}, v{T+2}, 7, v{T+8}")
    def xpf(st):
        return [[f"s_mov_b32 s24, {st*128}",
                 (f"buffer_load_dwordx4 v[{V_DUM}:{V_DUM+3}], v{T+15}, s[{S_X}:{S_X+3}], s24 offen", "pf")]]
    stamp2(e)
    srd(S_O, 48, M * N * 2)
    srd(S_WS, 52, WS_BYTES)
    qoff_wr_setup()
    wr_setup()
    for pc in range(4):
        e(f"v_add_u32 v{T+11}, {pc*64}, v{T+1}")
        e(f"v_lshlrev_b32 v{V_GW+pc}, 4, v{T+11}")
        e(f"v_add_u32 v{T+13}, {WBUF-1792}, v{V_GW+pc}")
        e(f"v_cmp_le_u32 vcc, 112, v{T+11}")
        e("s_nop 1")
        e(f"v_cndmask_b32 v{V_GW+pc}, v{V_GW+pc}, v{T+13}, vcc")
    e(f"v_lshlrev_b32 v{V_L16}, 4, v{T+1}")
    e(f"s_mul_i32 s{S_IMGB}, s{S_NT}, {16*WBUF}")
    e(f"s_mul_i32 s24, s{S_MT}, 1792")
    e(f"s_add_u32 s{S_SHW}, s{S_IMGB}, s24")
    e(f"s_mul_i32 s24, s{S_W}, {2*WBUF}")
    e(f"s_add_u32 s{S_SHW}, s{S_SHW}, s24")
    e(f"s_add_u32 s{S_SHW}, s{S_SHW}, {H*WBUF}")
    e(f"s_mul_i32 s24, s{S_W}, 3584")
    e(f"s_add_u32 s{S_IMGB}, s{S_IMGB}, s24")
    e(f"s_add_u32 s{S_WM0}, s24, {LDS_W}")
    e(f"v_add_u32 v{T+14}, s{S_WM0}, v{V_L16}")
    e(f"s_lshl_b32 s24, s{S_NT}, 3")
    e(f"s_add_u32 s25, s24, s{S_MT}")
    e(f"s_lshl_b32 s25, s25, 3")
    e(f"s_add_u32 s25, s25, s{S_W}")
    e(f"s_lshl_b32 s25, s25, 7")
    e(f"s_add_u32 s{S_FLG}, s25, {WS_FLAG}")
    e(f"v_and_b32 v{T+8}, 1, v{T+1}")
    e(f"v_lshl_add_u32 v{T+8}, v{T+2}, 1, v{T+8}")
    e(f"v_add_u32 v{T+8}, s24, v{T+8}")
    e(f"v_lshrrev_b32 v{T+9}, 1, v{T+1}")
    e(f"v_min_u32 v{T+9}, {NPAIR-1}, v{T+9}")
    e(f"v_lshl_add_u32 v{T+8}, v{T+8}, 3, v{T+9}")
    e(f"v_lshlrev_b32 v{T+8}, 7, v{T+8}")
    e(f"v_add_u32 v{V_FADDR}, {WS_FLAG}, v{T+8}")
    e(f"v_mov_b32 v{V_Z}, 0")
    e(f"s_mov_b32 s{S_READY}, 0")
    e(f"s_mov_b32 s{S_FBK}, 0")
    uid = [0]
    def share_out(rnd, slot):
        e("s_waitcnt lgkmcnt(0)")
        for pc in range(4):
            e(f"ds_read_b128 v[{V_P+4*pc}:{V_P+4*pc+3}], v{T+14} offset:{slot*WBUF+pc*1024}")
        e(f"s_add_u32 s27, s{S_SHW}, {rnd*8*WBUF}")
        for pc in range(4):
            e(f"s_waitcnt lgkmcnt({3-pc})")
            if pc == 3: e("s_mov_b32 exec_hi, 0")
            issue([(f"buffer_store_dwordx4 v[{V_P+4*pc}:{V_P+4*pc+3}], v{V_GW+pc}, s[{S_WS}:{S_WS+3}], s27 offen sc1", f"st{rnd}")])
            if pc == 3: e("s_mov_b32 exec_hi, -1")
    def has_round(rnd):
        return max(0, min(4, NPAIR - 4 * rnd))
    def publish(rnd):
        nw = has_round(rnd)
        e(f"s_waitcnt vmcnt({need(f'st{rnd}')})")
        e(f"s_add_u32 s27, s{S_FLG}, {rnd*4*128}")
        if nw < 4:
            e(f"s_cmp_lt_u32 s{S_W}, {nw}")
            e(f"s_cselect_b32 s27, s27, 0x40000000")
        if FORCEFB:
            e(f"s_cmp_eq_u32 s{S_MT}, {FORCEFB-1}")
            e(f"s_cselect_b32 s27, 0x40000000, s27")
        e("s_mov_b64 exec, 1")
        issue([(f"buffer_store_dword v{V_NONCE}, v{V_Z}, s[{S_WS}:{S_WS+3}], s27 offen sc1", "fl")])
        e("s_mov_b64 exec, -1")
    def Wd(st):
        if st >= 16: return
        j = (st - H) // 2
        mask = 3 << (2 * j)
        uid[0] += 1
        u = uid[0]
        e(f"s_and_b32 s24, s{S_READY}, {mask}")
        e(f"s_cmp_eq_u32 s24, {mask}")
        e(f"s_cbranch_scc1 L_rdy{u}")
        e(f"s_cmp_eq_u32 s{S_NON}, 0")
        e(f"s_cbranch_scc1 L_fb{u}")
        e(f"s_mov_b32 s{S_CNT}, s{S_FBK}")
        e.label(f"L_poll{u}")
        e(f"buffer_load_dword v{V_FLAG}, v{V_FADDR}, s[{S_WS}:{S_WS+3}], 0 offen sc1")
        e("s_waitcnt vmcnt(0)")
        e(f"v_cmp_eq_u32 vcc, v{V_FLAG}, v{V_NONCE}")
        e(f"s_mov_b32 s{S_READY}, vcc_lo")
        e(f"s_and_b32 s24, s{S_READY}, {mask}")
        e(f"s_cmp_eq_u32 s24, {mask}")
        e(f"s_cbranch_scc1 L_rdy{u}")
        e("s_sleep 2")
        e(f"s_add_u32 s{S_CNT}, s{S_CNT}, 1")
        e(f"s_cmp_lt_u32 s{S_CNT}, {SPIN}")
        e(f"s_cbranch_scc1 L_poll{u}")
        e.label(f"L_fb{u}")
        e(f"s_mov_b32 s{S_FBK}, {SPIN}")
        e(f"s_mov_b32 s{S_FBQ}, {st*BK*QROW}")
        e(f"s_mov_b32 s{S_FBL}, {(st%WR)*WBUF}")
        e(f"s_mov_b32 s{S_FBG}, {(st//2)*N*2}")
        e(f"s_call_b64 s[{S_RET}:{S_RET+1}], L_fallback")
        e(f"s_branch L_done{u}")
        e.label(f"L_rdy{u}")
        e(f"s_add_u32 s27, s{S_IMGB}, {st*WBUF}")
        e(f"s_add_u32 m0, s{S_WM0}, {(st%WR)*WBUF}")
        e("s_nop 0")
        for pce in range(3):
            e(f"buffer_load_dwordx4 v{V_L16}, s[{S_WS}:{S_WS+3}], s27 offen offset:{pce*1024} sc1 lds")
        e("s_mov_b32 exec_hi, 0")
        e(f"buffer_load_dwordx4 v{V_L16}, s[{S_WS}:{S_WS+3}], s27 offen offset:3072 sc1 lds")
        e("s_mov_b32 exec_hi, -1")
        e.label(f"L_done{u}")
        for _ in range(4): vm.append(f"w{st}")

    e("s_waitcnt vmcnt(0)")
    stamp2(e)
    work(dq_lds(0, 3), [])
    stamp2(e)
    share_out(0, 3)
    issue([(f"buffer_load_dword v{V_NONCE}, v{V_NADDR}, s[{S_DBG}:{S_DBG+3}], 0 offen sc1", "nl")])
    stamp2(e)
    for g_ in SH(1, 1) + (xpf(3) + xpf(7) + xpf(11) + xpf(15) if XPF else []) + X(2): issue(g_)
    stamp(e)
    e("s_barrier")
    stamp(e)
    e(f"s_waitcnt vmcnt({need('nl')})")
    e(f"v_readfirstlane_b32 s{S_NON}, v{V_NONCE}")
    e(f"s_cmp_lg_u32 s{S_NON}, 0")
    e("s_cbranch_scc1 L_n_got")
    e(f"s_mov_b32 s{S_CNT}, 0")
    e.label("L_n_poll")
    e(f"buffer_load_dword v{V_NONCE}, v{V_NADDR}, s[{S_DBG}:{S_DBG+3}], 0 offen sc1")
    e("s_waitcnt vmcnt(0)")
    e(f"v_readfirstlane_b32 s{S_NON}, v{V_NONCE}")
    e(f"s_cmp_lg_u32 s{S_NON}, 0")
    e("s_cbranch_scc1 L_n_got")
    e("s_sleep 2")
    e(f"s_add_u32 s{S_CNT}, s{S_CNT}, 1")
    e(f"s_cmp_lt_u32 s{S_CNT}, {SPIN}")
    e("s_cbranch_scc1 L_n_poll")
    e.label("L_n_got")
    publish(0)
    stamp(e)
    e("s_barrier")
    for g_ in X(3): issue(g_)
    e(f"s_waitcnt vmcnt({need('sh1')})")
    work(dq_lds(1, 0), [])
    Wd(2); Wd(3)
    share_out(1, 0)
    stamp(e)
    e(f"s_waitcnt vmcnt({min(need('x2'), need('w2'))})")
    e("s_barrier")
    publish(1)
    e(f"s_mov_b32 s{S_ST}, 4")
    e(f"s_mov_b32 s{S_XO}, {(4 % XR) * XBUF}")
    e(f"s_mov_b32 s{S_WO}, {(4 % WR) * WBUF}")
    e(f"s_mov_b32 s{S_XKQ}, {4*128}")
    e(f"s_add_u32 s{S_WSRC}, s{S_IMGB}, {4*WBUF}")
    e.label("L_ploop")
    e(f"s_sub_u32 s24, s{S_ST}, {H}")
    e(f"s_and_b32 s24, s24, 0xfe")
    e(f"s_lshl_b32 s{S_MASK}, 3, s24")
    e(f"s_and_b32 s24, s{S_READY}, s{S_MASK}")
    e(f"s_cmp_eq_u32 s24, s{S_MASK}")
    e("s_cbranch_scc1 L_rdyL")
    e(f"s_cmp_eq_u32 s{S_NON}, 0")
    e("s_cbranch_scc1 L_fbL")
    e(f"s_mov_b32 s{S_CNT}, s{S_FBK}")
    e.label("L_pollL")
    e(f"buffer_load_dword v{V_FLAG}, v{V_FADDR}, s[{S_WS}:{S_WS+3}], 0 offen sc1")
    e("s_waitcnt vmcnt(0)")
    e(f"v_cmp_eq_u32 vcc, v{V_FLAG}, v{V_NONCE}")
    e(f"s_mov_b32 s{S_READY}, vcc_lo")
    e(f"s_and_b32 s24, s{S_READY}, s{S_MASK}")
    e(f"s_cmp_eq_u32 s24, s{S_MASK}")
    e("s_cbranch_scc1 L_rdyL")
    e("s_sleep 2")
    e(f"s_add_u32 s{S_CNT}, s{S_CNT}, 1")
    e(f"s_cmp_lt_u32 s{S_CNT}, {SPIN}")
    e("s_cbranch_scc1 L_pollL")
    e.label("L_fbL")
    e(f"s_mov_b32 s{S_FBK}, {SPIN}")
    e(f"s_mul_i32 s{S_FBQ}, s{S_ST}, {BK*QROW}")
    e(f"s_mov_b32 s{S_FBL}, s{S_WO}")
    e(f"s_lshr_b32 s24, s{S_ST}, 1")
    e(f"s_mul_i32 s{S_FBG}, s24, {N*2}")
    e(f"s_call_b64 s[{S_RET}:{S_RET+1}], L_fallback")
    e("s_branch L_doneL")
    e.label("L_rdyL")
    e(f"s_add_u32 m0, s{S_WM0}, s{S_WO}")
    e("s_nop 0")
    for pce in range(3):
        e(f"buffer_load_dwordx4 v{V_L16}, s[{S_WS}:{S_WS+3}], s{S_WSRC} offen offset:{pce*1024} sc1 lds")
    e("s_mov_b32 exec_hi, 0")
    e(f"buffer_load_dwordx4 v{V_L16}, s[{S_WS}:{S_WS+3}], s{S_WSRC} offen offset:3072 sc1 lds")
    e("s_mov_b32 exec_hi, -1")
    e.label("L_doneL")
    e(f"s_add_u32 s24, s{S_M0B}, s{S_XO}")
    for a in range(8):
        if a % 4 == 0:
            e(f"s_add_u32 m0, s24, {(a//4)*4096}")
            e("s_nop 0")
        e(f"buffer_load_dwordx4 v{V_XOFF+a}, s[{S_X}:{S_X+3}], s{S_XKQ} offen offset:{(a%4)*1024} lds")
    e(f"s_add_u32 s{S_XO}, s{S_XO}, {XBUF}")
    e(f"s_cmp_eq_u32 s{S_XO}, {XR*XBUF}")
    e(f"s_cselect_b32 s{S_XO}, 0, s{S_XO}")
    e(f"s_add_u32 s{S_WO}, s{S_WO}, {WBUF}")
    e(f"s_cmp_eq_u32 s{S_WO}, {WR*WBUF}")
    e(f"s_cselect_b32 s{S_WO}, 0, s{S_WO}")
    e(f"s_add_u32 s{S_XKQ}, s{S_XKQ}, 128")
    e(f"s_add_u32 s{S_WSRC}, s{S_WSRC}, {WBUF}")
    stamp(e)
    e(f"s_add_u32 s{S_ST}, s{S_ST}, 1")
    e(f"s_cmp_lt_u32 s{S_ST}, 16")
    e("s_waitcnt vmcnt(12)")
    e("s_barrier")
    e("s_cbranch_scc1 L_ploop")
    stamp(e)
    e("s_waitcnt vmcnt(0)")
    e("s_barrier")
    stamp(e)
    e("s_barrier")
    e("s_branch L_store")

    e.label("L_fallback")
    r0 = raw(FB_STAGE)
    e(f"buffer_load_dwordx2 v[{r0}:{r0+1}], v{V_SCO}, s[{S_SC}:{S_SC+3}], s{S_FBG} offen")
    e(f"buffer_load_dwordx2 v[{r0+2}:{r0+3}], v{V_SCO}, s[{S_Z}:{S_Z+3}], s{S_FBG} offen")
    for i in range(8):
        r = qreg(FB_STAGE, i, 0)
        e(f"buffer_load_dwordx4 v[{r}:{r+3}], v{V_QOFF+i}, s[{S_Q}:{S_Q+3}], s{S_FBQ} offen")
    for c in range(4):
        e(f"v_add_u32 v{T+8+c}, s{S_FBL}, v{V_WR+c}")
    e("s_waitcnt vmcnt(0)")
    for op in dequant_ops(FB_STAGE):
        if isinstance(op, tuple):
            e(f"ds_write_b128 v{T+8+op[1]}, v[{V_P+4*op[1]}:{V_P+4*op[1]+3}]")
        else:
            e(op)
    e("s_waitcnt lgkmcnt(0)")
    e(f"s_setpc_b64 s[{S_RET}:{S_RET+1}]")

    e.label("L_store")
    e("v_and_b32 v10, 63, v0")
    e("v_mul_u32_u24 v11, 0x1250, v10")
    e("v_lshrrev_b32 v11, 16, v11")
    e("v_mul_u32_u24 v12, 14, v11")
    e("v_sub_u32 v12, v10, v12")
    e("v_lshl_add_u32 v13, v1, 5, v11")
    e(f"s_mov_b32 s27, {ESTRIDE}")
    e("v_mul_lo_u32 v14, v13, s27")
    e("v_lshl_add_u32 v14, v12, 4, v14")
    e(f"v_add_u32 v13, s{S_M0}, v13")
    e(f"s_mov_b32 s27, {OROW}")
    e("v_mul_lo_u32 v13, v13, s27")
    e(f"s_lshl_b32 s28, s{S_N0}, 1")
    e("v_lshl_add_u32 v13, v12, 4, v13")
    e("v_add_u32 v13, s28, v13")
    e("v_cmp_gt_u32 vcc, 56, v10")
    e("s_barrier")
    e("s_and_saveexec_b64 s[56:57], vcc")
    for i in range(8):
        b = 128 + i * 4
        e(f"ds_read_b128 v[{b}:{b+3}], v14 offset:{i*4*ESTRIDE}")
    for i in range(8):
        b = 128 + i * 4
        e(f"s_mov_b32 s24, {i*4*OROW}")
        e(f"s_waitcnt lgkmcnt({7-i})")
        e(f"buffer_store_dwordx4 v[{b}:{b+3}], v13, s[{S_O}:{S_O+3}], s24 offen")
    e("s_mov_b64 exec, s[56:57]")
    if STAMP:
        stamp(e)
        e("s_waitcnt vmcnt(0)")
        stamp(e)
        stamp(e, True)
        e("s_mov_b32 s64, s52")
        e("s_and_b32 s65, s53, 0xffff")
        e("s_mov_b32 s66, 0x10000000")
        e("s_mov_b32 s67, 0x00020000")
        e("v_lshlrev_b32 v1, 2, v0")
        e("s_lshl_b32 s24, s2, 11")
        e(f"s_add_u32 s24, s24, {WS_STAMP}")
        e(f"buffer_store_dword v{C_ST}, v1, s[64:67], s24 offen")
    e.label("L_end")
    e("s_endpgm")

    out += e.lines
    out.append('.section .rodata,"a"')
    out.append(".p2align 6")
    out.append(".amdhsa_kernel standalone__w4a16_gemm_dequant__prompt_kernel")
    out.append("  .amdhsa_next_free_vgpr 256")
    out.append("  .amdhsa_next_free_sgpr 102")
    out.append("  .amdhsa_accum_offset 256")
    out.append("  .amdhsa_group_segment_fixed_size 0")
    out.append("  .amdhsa_kernarg_size 56")
    out.append("  .amdhsa_user_sgpr_count 2")
    out.append("  .amdhsa_user_sgpr_kernarg_segment_ptr 1")
    out.append("  .amdhsa_system_sgpr_workgroup_id_x 1")
    out.append("  .amdhsa_float_denorm_mode_32 3")
    out.append("  .amdhsa_float_denorm_mode_16_64 3")
    out.append(".end_amdhsa_kernel")
    return "\n".join(out) + "\n"


if __name__ == "__main__":
    dst = sys.argv[1] if len(sys.argv) > 1 else "standalone__w4a16_gemm_dequant__prompt.s"
    open(dst, "w").write(gen())
    print("wrote", dst)
```

```python
import sys, os
CPF = int(os.environ.get('CPF', '11'))
STAMP = bool(os.environ.get('STAMP'))
S2 = bool(os.environ.get('STAMP2'))
PRIO = int(os.environ.get('PRIO', '3'))
H = int(os.environ.get('H', '2'))
SPIN = int(os.environ.get('SPIN', '64'))
FORCEFB = int(os.environ.get('FORCEFB', '0'))
WLEAD = int(os.environ.get('WLEAD', '2'))
WSTART = int(os.environ.get('WSTART', '1'))
STAG = 1
TLBT = 0
XMAP = int(os.environ.get('XMAP', '0'))
STG2 = int(os.environ.get('STG2', '0'))
CXPOS = int(os.environ.get('CXPOS', '1'))
NONON = int(os.environ.get('NONON', '0'))
EPI2 = int(os.environ.get('EPI2', '1'))
SHNT = ' nt' if int(os.environ.get('SHNT', '1')) else ''
QNT = ' nt' if int(os.environ.get('QNT', '1')) else ''
SH1AT = int(os.environ.get('SH1AT', '-1'))
XPF = int(os.environ.get('XPF', '1'))
R1 = int(os.environ.get('R1', '0'))
PUB1 = int(os.environ.get('PUB1', '1'))
assert H in (2,)

M, N, K = 2048, 3584, 1024
BM, BN, BK = 256, 112, 64
QROW = N * 4
XROW = K * 2
OROW = N * 2
XBUF = BM * BK * 2
WBUF = BN * BK * 2
XR, WR = 3, 4
LDS_W = XR * XBUF
LDS_TOTAL = LDS_W + WR * WBUF
ESTRIDE = 240
EBASE = 32768
NPAIR = (16 - H) // 2
WS_FLAG = 8 << 20
WS_BYTES = WS_FLAG + 256 * 8 * 128
WS_STAMP = 16 << 20

C_RDW = 2
C_RDX = 4
C_ST = 8
ACC = 16
def acc(t, m):
    b = ACC + (t * 4 + m) * 4
    return f"v[{b}:{b+3}]"
def acc1(t, m, r): return ACC + (t * 4 + m) * 4 + r
C_WF = 128
C_XF = 184
C_E = 220
def wf(s, t): b = C_WF + s * 28 + t * 4; return f"v[{b}:{b+3}]"
def xf(s, m): b = C_XF + s * 16 + m * 4; return f"v[{b}:{b+3}]"
V_XOFF = 16
V_QOFF = 24
V_S = 32
V_P = 40
V_WR = 60
V_SOFF = 64
V_GW = 72
V_T = 76
V_SCO = 92
V_RAW = 96
V_Q = 116
V_DUM = 244
V_L16, V_FADDR, V_NONCE, V_FLAG, V_Z, V_NADDR = 2, 3, 4, 5, 6, 7
FB_STAGE = 3
def qreg(stage, i, c): return V_Q + stage * 32 + i * 4 + c
def raw(stage): return V_RAW + 4 * stage

S_X, S_Q, S_O, S_SC, S_Z, S_WS, S_DBG = 4, 8, 12, 16, 20, 64, 84
S_C24, S_M0B = 34, 38
S_M0, S_N0, S_W, S_MT, S_NT = 35, 36, 37, 39, 33
S_READY, S_FBK, S_IMGB, S_WM0, S_SHQ, S_SHW, S_FLG, S_SHS = 68, 69, 70, 71, 72, 73, 74, 75
S_RET = 76
S_FBQ, S_FBL, S_FBG = 78, 79, 80
S_CNT, S_NON = 81, 82
S_XO, S_WO, S_IT, S_XKQ, S_WSRC, S_MASK, S_ST = 94, 95, 96, 97, 98, 99, 100
C_CUR = 9


class Emit:
    def __init__(self):
        self.lines = []
    def __call__(self, s):
        self.lines.append("    " + s)
    def label(self, s):
        self.lines.append(s + ":")


def stamp(e, real=False):
    if not STAMP: return
    e("s_memrealtime s[60:61]" if real else "s_memtime s[60:61]")
    e("s_waitcnt lgkmcnt(0)")
    e("s_mov_b32 m0, s58")
    e("s_nop 0")
    e(f"v_writelane_b32 v{C_ST}, s60, m0")
    e("s_add_u32 s58, s58, 1")
def stamp2(e):
    if S2: stamp(e)


def dequant_ops(stage):
    ops = []
    r0 = raw(stage)
    ops.append(f"v_lshlrev_b32 v{V_S}, 16, v{r0}")
    ops.append(f"v_and_b32 v{V_S+1}, 0xffff0000, v{r0}")
    ops.append(f"v_lshlrev_b32 v{V_S+2}, 16, v{r0+1}")
    ops.append(f"v_and_b32 v{V_S+3}, 0xffff0000, v{r0+1}")
    ops.append(f"v_lshlrev_b32 v{V_S+4}, 16, v{r0+2}")
    ops.append(f"v_and_b32 v{V_S+5}, 0xffff0000, v{r0+2}")
    ops.append(f"v_lshlrev_b32 v{V_S+6}, 16, v{r0+3}")
    ops.append(f"v_and_b32 v{V_S+7}, 0xffff0000, v{r0+3}")
    for c in range(4):
        for i in range(8):
            r = qreg(stage, i, c)
            ops.append(f"v_fma_mix_f32 v{r}, v{r}, s{S_C24}, -v{V_S+4+c} op_sel_hi:[1,0,0]")
        for j in range(4):
            ops.append(f"v_cvt_pk_bf16_f32 v{V_P+4*c+j}, v{qreg(stage,2*j,c)}, v{qreg(stage,2*j+1,c)}")
        for j in range(4):
            ops.append(f"v_lshlrev_b32 v{qreg(stage,2*j,c)}, 16, v{V_P+4*c+j}")
            ops.append(f"v_and_b32 v{qreg(stage,2*j+1,c)}, 0xffff0000, v{V_P+4*c+j}")
        for i in range(8):
            r = qreg(stage, i, c)
            ops.append(f"v_mul_f32 v{r}, v{r}, v{V_S+c}")
        for j in range(4):
            ops.append(f"v_cvt_pk_bf16_f32 v{V_P+4*c+j}, v{qreg(stage,2*j,c)}, v{qreg(stage,2*j+1,c)}")
        ops.append(("W", c))
    return ops


def gen():
    e = Emit()
    hdr = open("standalone__w4a16_gemm_dequant__prompt.s.ref").read().split("\n")
    out = []
    for l in hdr:
        if l.startswith("; @launch"):
            out.append(f"; @launch grid=(256,1,1) block=(512,1,1) lds={LDS_TOTAL}")
            break
        out.append(l)
    out.append('.amdgcn_target "amdgcn-amd-amdhsa--gfx950"')
    out.append(".text")
    out.append(".globl standalone__w4a16_gemm_dequant__prompt_kernel")
    out.append(".p2align 8")
    out.append(".type standalone__w4a16_gemm_dequant__prompt_kernel,@function")
    out.append("standalone__w4a16_gemm_dequant__prompt_kernel:")

    def srd(d, lo, nbytes):
        e(f"s_mov_b32 s{d}, s{lo}")
        e(f"s_and_b32 s{d+1}, s{lo+1}, 0xffff")
        e(f"s_mov_b32 s{d+2}, {nbytes}")
        e(f"s_mov_b32 s{d+3}, 0x00020000")

    vm = []
    def issue(lst):
        for f in lst:
            if isinstance(f, tuple):
                e(f[0])
                if f[1] is not None: vm.append(f[1])
            else:
                e(f)
    def need(tag):
        c = [i for i, t in enumerate(vm) if t.rstrip('!') == tag]
        assert c, tag
        return min(63, sum(1 for t in vm[max(c) + 1:] if not t.endswith('!')))
    def groups(lst):
        g_ = []; cur = []
        for f in lst:
            cur.append(f)
            if isinstance(f, tuple) and f[1] is not None:
                g_.append(cur); cur = []
        if cur:
            g_[-1] += cur
        return g_
    def work(ops, seq):
        n = len(ops); k = len(seq); gi = 0
        for i, op in enumerate(ops):
            while gi < k and gi * n <= i * k:
                issue(seq[gi]); gi += 1
            issue([op])
        while gi < k:
            issue(seq[gi]); gi += 1
    def dq_lds(stage, slot):
        return [f"ds_write_b128 v{V_WR+op[1]}, v[{V_P+4*op[1]}:{V_P+4*op[1]+3}] offset:{slot*WBUF}" if isinstance(op, tuple) else op
                for op in dequant_ops(stage)]
    def SC(stage, soff, tag):
        r0 = raw(stage)
        return [(f"buffer_load_dwordx2 v[{r0}:{r0+1}], v{V_SCO}, s[{S_SC}:{S_SC+3}], {soff} offen", tag),
                (f"buffer_load_dwordx2 v[{r0+2}:{r0+3}], v{V_SCO}, s[{S_Z}:{S_Z+3}], {soff} offen", tag)]

    T = V_T
    e("s_cmp_ge_u32 s2, 256")
    e("s_cbranch_scc1 L_end")
    if CPF:
        e("s_getpc_b64 s[90:91]")
        e("v_lshlrev_b32 v2, 7, v0")
        e(f"v_cmp_gt_u32 vcc, {CPF*1024}, v2")
        e("s_and_saveexec_b64 s[92:93], vcc")
        e("s_cbranch_execz L_nocpf")
        e("global_load_dword v255, v2, s[90:91]")
        e.label("L_nocpf")
        e("s_mov_b64 exec, s[92:93]")
    e("s_load_dwordx8 s[40:47], s[0:1], 0")
    e("s_load_dwordx4 s[48:51], s[0:1], 32")
    e("s_load_dwordx2 s[52:53], s[0:1], 48")
    e("s_memrealtime s[54:55]")
    if STAMP:
        e("s_mov_b32 s58, 0")
        e(f"v_mov_b32 v{C_ST}, 0")
        stamp(e, True)
        stamp(e)
    e("s_and_b32 s24, s2, 7")
    e("s_lshr_b32 s25, s2, 3")
    e("s_and_b32 s26, s25, 3")
    e("s_lshl_b32 s24, s24, 2")
    e(f"s_add_u32 s{S_NT}, s24, s26")
    e(f"s_lshr_b32 s{S_MT}, s25, 2")
    if XMAP == 1:
        e(f"s_and_b32 s{S_MT}, s2, 7")
        e(f"s_lshr_b32 s{S_NT}, s2, 3")
    if XMAP == 2:
        e(f"s_and_b32 s24, s2, 1")
        e(f"s_lshl_b32 s24, s24, 2")
        e(f"s_bfe_u32 s25, s2, 0x20003")
        e(f"s_add_u32 s{S_MT}, s24, s25")
        e(f"s_bfe_u32 s24, s2, 0x20001")
        e(f"s_lshl_b32 s24, s24, 3")
        e(f"s_lshr_b32 s25, s2, 5")
        e(f"s_add_u32 s{S_NT}, s24, s25")
    e(f"s_mul_i32 s{S_N0}, s{S_NT}, {BN}")
    e(f"s_lshl_b32 s{S_M0}, s{S_MT}, 8")
    e("v_lshrrev_b32 v1, 6, v0")
    e("v_and_b32 v10, 255, v0")
    e(f"v_readfirstlane_b32 s{S_W}, v1")
    e("v_lshrrev_b32 v11, 5, v10")
    e("v_and_b32 v12, 31, v10")
    e("v_min_u32 v12, 27, v12")
    e(f"s_lshl_b32 s28, s{S_N0}, 2")
    e("v_lshl_add_u32 v14, v12, 4, s28")
    e(f"v_lshrrev_b32 v{V_SCO}, 1, v14")
    e(f"s_mov_b32 s{S_C24}, 0x4b800000")
    e(f"s_cmp_ge_u32 s{S_W}, 4")
    e("s_cbranch_scc1 L_prod")

    def qoff_wr_setup():
        e(f"s_mov_b32 s27, {8*QROW}")
        e(f"v_mul_lo_u32 v13, v11, s27")
        e(f"v_add_u32 v{V_QOFF}, v14, v13")
        for i in range(1, 8):
            e(f"v_add_u32 v{V_QOFF+i}, {i*QROW}, v{V_QOFF}")
    def wr_setup():
        e(f"v_lshrrev_b32 v{T+8}, 2, v12")
        e(f"v_and_b32 v{T+9}, 3, v12")
        e(f"v_and_b32 v{T+10}, 1, v{T+8}")
        e(f"v_lshlrev_b32 v{T+10}, 1, v{T+10}")
        e(f"v_lshrrev_b32 v{T+11}, 1, v{T+9}")
        e(f"v_add_u32 v{T+10}, v{T+10}, v{T+11}")
        e(f"v_lshlrev_b32 v{T+8}, 8, v{T+8}")
        e(f"v_lshl_add_u32 v{T+8}, v{T+9}, 6, v{T+8}")
        e(f"v_mul_u32_u24 v{T+12}, 1792, v11")
        e(f"v_add_u32 v{T+12}, v{T+12}, v{T+8}")
        e(f"v_add_u32 v{T+12}, {LDS_W}, v{T+12}")
        for c in range(4):
            e(f"v_xor_b32 v{T+11}, {c}, v{T+10}")
            e(f"v_lshl_add_u32 v{V_WR+c}, v{T+11}, 4, v{T+12}")
    def Q(st, stage):
        ins = [f"s_mov_b32 s24, {st*BK*QROW}"]
        for i in range(8):
            r = qreg(stage, i, 0)
            ins.append((f"buffer_load_dwordx4 v[{r}:{r+3}], v{V_QOFF+i}, s[{S_Q}:{S_Q+3}], s24 offen{QNT}", f"q{st}"))
        return groups(ins)

    def X(st):
        if st >= 16: return []
        ins = [f"s_mov_b32 s25, {st*128}"]
        for a in range(8):
            if a % 4 == 0:
                ins.append(f"s_add_u32 m0, s{S_M0B}, {(st%XR)*XBUF + (a//4)*4096}")
                ins.append("s_nop 0")
            ins.append((f"buffer_load_dwordx4 v{V_XOFF+a}, s[{S_X}:{S_X+3}], s25 offen offset:{(a%4)*1024} lds", f"x{st}"))
        return groups(ins)
    def xoff_setup():
        e(f"v_and_b32 v{T+1}, 63, v0")
        e(f"v_bfe_u32 v{T+3}, v0, 4, 2")
        e(f"v_and_b32 v{T+2}, 3, v1")
        e(f"v_lshrrev_b32 v{T+8}, 3, v{T+1}")
        e(f"v_lshl_add_u32 v{T+8}, v{T+2}, 6, v{T+8}")
        e(f"v_add_u32 v{T+8}, s{S_M0}, v{T+8}")
        e(f"v_lshlrev_b32 v{T+8}, 11, v{T+8}")
        e(f"v_and_b32 v{T+9}, 7, v{T+1}")
        e(f"v_xor_b32 v{T+9}, v{T+9}, v{T+3}")
        e(f"v_xor_b32 v{T+10}, 4, v{T+9}")
        e(f"v_lshl_add_u32 v{T+9}, v{T+9}, 4, v{T+8}")
        e(f"v_lshl_add_u32 v{T+10}, v{T+10}, 4, v{T+8}")
        for a in range(8):
            e(f"v_add_u32 v{V_XOFF+a}, {a*8*XROW - (a%4)*1024}, v{T+9+(a&1)}")
        e(f"s_and_b32 s24, s{S_W}, 3")
        e(f"s_lshl_b32 s{S_M0B}, s24, 13")

    qoff_wr_setup()
    e("s_waitcnt lgkmcnt(0)")
    srd(S_SC, 44, 8 * N * 2)
    srd(S_Z, 46, 8 * N * 2)
    srd(S_Q, 42, K * N * 4)
    issue(SC(0, "0", "q0"))
    for g_ in Q(0, 0): issue(g_)
    for g_ in Q(1, 1): issue(g_)
    srd(S_O, 48, M * N * 2)
    srd(S_X, 40, M * K * 2)
    xoff_setup()
    if CXPOS == 0:
        for g_ in X(0) + X(1): issue(g_)
    if TLBT:
        srd(S_WS, 52, WS_BYTES)
        e("v_and_b32 v10, 63, v0")
        e("v_lshl_add_u32 v10, v1, 6, v10")
        e(f"v_add_u32 v10, s{S_M0}, v10")
        e(f"s_mov_b32 s27, {OROW}")
        e("v_mul_lo_u32 v10, v10, s27")
        e(f"s_lshl_b32 s27, s{S_N0}, 1")
        e("s_mov_b64 exec, 1")
        issue([(f"buffer_load_dword v{V_DUM}, v10, s[{S_O}:{S_O+3}], s27 offen", "tl")])
        e(f"s_mul_i32 s27, s{S_NT}, {16*WBUF}")
        e(f"s_cmp_eq_u32 s{S_W}, 1")
        e(f"s_cselect_b32 s27, {WS_FLAG}, s27")
        e(f"v_mov_b32 v10, 0")
        issue([(f"buffer_load_dword v{V_DUM}, v10, s[{S_WS}:{S_WS+3}], s27 offen sc1", "tl")])
        e("s_mov_b64 exec, -1")
    wr_setup()
    e("v_and_b32 v14, 15, v0")
    e("v_bfe_u32 v15, v0, 4, 2")
    e("v_lshrrev_b32 v10, 3, v14")
    e("v_xor_b32 v10, v10, v14")
    e("v_mul_u32_u24 v11, 1792, v15")
    e(f"v_add_u32 v11, {LDS_W}, v11")
    e(f"v_lshl_add_u32 v{C_RDW}, v10, 4, v11")
    e("v_xor_b32 v10, 2, v10")
    e(f"v_lshl_add_u32 v{C_RDW+1}, v10, 4, v11")
    e("v_lshrrev_b32 v10, 1, v14")
    e("v_xor_b32 v10, v10, v15")
    e("v_lshlrev_b32 v11, 13, v1")
    e("v_lshl_add_u32 v11, v14, 7, v11")
    e(f"v_lshl_add_u32 v{C_RDX}, v10, 4, v11")
    e(f"v_xor_b32 v{C_RDX+1}, 64, v{C_RDX}")
    e(f"v_add_u32 v{C_RDX+2}, {2*XBUF}, v{C_RDX}")
    e(f"v_add_u32 v{C_RDX+3}, {2*XBUF}, v{C_RDX+1}")
    stamp(e)
    e(f"s_waitcnt vmcnt({need('q0')})")
    for r in range(4):
        e(f"v_mov_b32 v{raw(1)+r}, v{raw(0)+r}")
    work(dq_lds(0, 0), X(0) if CXPOS else [])
    e(f"s_waitcnt vmcnt({need('q1')})")
    work(dq_lds(1, 1), X(1) if CXPOS else [])
    e("s_waitcnt lgkmcnt(0)")
    for i in range(0, 112, 2):
        e(f"v_mov_b64 v[{ACC+i}:{ACC+i+1}], 0")
    for i in range(0, 28, 2):
        e(f"v_mov_b64 v[{C_WF+28+i}:{C_WF+28+i+1}], 0")
    for i in range(0, 16, 2):
        e(f"v_mov_b64 v[{C_XF+16+i}:{C_XF+16+i+1}], 0")
    e(f"s_mov_b32 s{S_XO}, 0")
    e(f"s_mov_b32 s{S_WO}, 0")
    e(f"s_mov_b32 s{S_IT}, 0")
    e(f"v_mov_b32 v{C_CUR}, v{C_RDX}")
    e(f"v_mov_b32 v{C_CUR+1}, v{C_RDX+1}")
    e(f"v_mov_b32 v{C_CUR+2}, v{C_RDW}")
    e(f"v_mov_b32 v{C_CUR+3}, v{C_RDW+1}")
    e(f"s_setprio {PRIO}")
    e("s_waitcnt vmcnt(0)")
    stamp(e)
    def wread(s_set, t, s):
        return f"ds_read_b128 {wf(s_set,t)}, v{C_CUR+2+(t&1)} offset:{s*7168+t*256}"
    def xread(s_set, m, s):
        return f"ds_read_b128 {xf(s_set,m)}, v{C_CUR+s} offset:{m*2048}"
    def mfmas(s_set, ts):
        return [f"v_mfma_f32_16x16x32_bf16 {acc(t,m)}, {wf(s_set,t)}, {xf(s_set,m)}, {acc(t,m)}" for t in ts for m in range(4)]
    def interleave(mf, fill):
        j = 0
        for m_ in mf:
            e(m_)
            if j < len(fill):
                e(fill[j]); j += 1
        while j < len(fill):
            e(fill[j]); j += 1
    e.label("L_cloop")
    e("s_barrier")
    fill = [xread(0, m, 0) for m in range(4)] + [wread(0, t, 0) for t in range(7)]
    for f in fill[:3]: e(f)
    interleave(mfmas(1, [4, 5, 6]), fill[3:])
    e("s_waitcnt lgkmcnt(0)")
    fill = [xread(1, m, 1) for m in range(4)] + [wread(1, t, 1) for t in range(7)]
    interleave(mfmas(0, range(7)), fill)
    e("s_waitcnt lgkmcnt(0)")
    adv = [f"s_add_u32 s{S_XO}, s{S_XO}, {XBUF}",
           f"s_cmp_eq_u32 s{S_XO}, {XR*XBUF}",
           f"s_cselect_b32 s{S_XO}, 0, s{S_XO}",
           f"s_add_u32 s{S_WO}, s{S_WO}, {WBUF}",
           f"s_cmp_eq_u32 s{S_WO}, {WR*WBUF}",
           f"s_cselect_b32 s{S_WO}, 0, s{S_WO}",
           f"v_add_u32 v{C_CUR}, s{S_XO}, v{C_RDX}",
           f"v_add_u32 v{C_CUR+1}, s{S_XO}, v{C_RDX+1}",
           f"v_add_u32 v{C_CUR+2}, s{S_WO}, v{C_RDW}",
           f"v_add_u32 v{C_CUR+3}, s{S_WO}, v{C_RDW+1}",
           f"s_add_u32 s{S_IT}, s{S_IT}, 1"]
    mf = mfmas(1, [0, 1, 2, 3])
    interleave(mf[:-2], adv)
    stamp(e)
    e(f"s_cmp_lt_u32 s{S_IT}, 15")
    for m_ in mf[-2:]: e(m_)
    e("s_cbranch_scc1 L_cloop")
    e("s_barrier")
    fill = [xread(0, m, 0) for m in range(4)] + [wread(0, t, 0) for t in range(7)]
    for f in fill[:3]: e(f)
    interleave(mfmas(1, [4, 5, 6]), fill[3:])
    for f in [xread(1, m, 1) for m in range(4)] + [wread(1, t, 1) for t in range(7)]: e(f)
    e(f"s_mov_b32 s27, {ESTRIDE}")
    e("v_lshl_add_u32 v13, v1, 6, v14")
    e("v_mul_lo_u32 v13, v13, s27")
    e("v_lshl_add_u32 v13, v15, 3, v13")
    e(f"v_add_u32 v13, {EBASE}, v13")
    def mf_m(m):
        return [f"v_mfma_f32_16x16x32_bf16 {acc(t,m)}, {wf(s_,t)}, {xf(s_,m)}, {acc(t,m)}" for s_ in range(2) for t in range(7)]
    def conv(m):
        o = []
        for t in range(7):
            b = C_E + t * 2
            o.append(f"v_cvt_pk_bf16_f32 v{b}, v{acc1(t,m,0)}, v{acc1(t,m,1)}")
            o.append(f"v_cvt_pk_bf16_f32 v{b+1}, v{acc1(t,m,2)}, v{acc1(t,m,3)}")
            o.append(f"ds_write_b64 v13, v[{b}:{b+1}] offset:{m*16*ESTRIDE + t*32}")
        return o
    e("s_waitcnt lgkmcnt(11)")
    mm = mf_m(0)
    for m_ in mm[:7]: e(m_)
    e("s_waitcnt lgkmcnt(0)")
    for m_ in mm[7:]: e(m_)
    for m in range(1, 4):
        mm = mf_m(m); cv = conv(m - 1)
        for m_ in mm[:2]: e(m_)
        j = 0
        for m_ in mm[2:]:
            e(m_)
            for _ in range(2):
                if j < len(cv):
                    e(cv[j]); j += 1
        e("s_waitcnt lgkmcnt(0)")
        e("s_barrier")
    e("s_nop 7")
    for c_ in conv(3): e(c_)
    e("s_waitcnt lgkmcnt(0)")
    e("s_barrier")
    stamp(e)
    e("s_branch L_fin")

    e.label("L_prod")
    vm.clear()
    def SH(rnd, stage):
        ins = [f"s_add_u32 s27, s{S_SHS}, {rnd*4*N*2}"] + SC(stage, "s27", f"sh{rnd}")
        ins.append(f"s_add_u32 s26, s{S_SHQ}, {rnd*8*BK*QROW}")
        for i in range(8):
            r = qreg(stage, i, 0)
            ins.append((f"buffer_load_dwordx4 v[{r}:{r+3}], v{V_SOFF+i}, s[{S_Q}:{S_Q+3}], s26 offen{SHNT}", f"sh{rnd}"))
        return groups(ins)
    e(f"v_and_b32 v{T+1}, 63, v0")
    e(f"s_and_b32 s{S_W}, s{S_W}, 3")
    e(f"v_lshrrev_b32 v{T+4}, 5, v{T+1}")
    e(f"s_mov_b32 s27, {64*QROW}")
    e(f"v_mul_lo_u32 v{T+5}, v{T+4}, s27")
    e(f"s_mul_i32 s27, s{S_MT}, {8*QROW}")
    e(f"v_add3_u32 v{V_SOFF}, v{T+5}, s27, v14")
    for i in range(1, 8):
        e(f"v_add_u32 v{V_SOFF+i}, {i*QROW}, v{V_SOFF}")
    e(f"s_mul_i32 s{S_SHQ}, s{S_W}, {2*BK*QROW}")
    e(f"s_add_u32 s{S_SHQ}, s{S_SHQ}, {H*BK*QROW}")
    e(f"s_mul_i32 s{S_SHS}, s{S_W}, {N*2}")
    e(f"s_add_u32 s{S_SHS}, s{S_SHS}, {(H//2)*N*2}")
    e(f"s_lshl_b32 s24, s{S_NT}, 2")
    e(f"v_mov_b32 v{V_NADDR}, s24")
    e(f"s_or_b32 s25, s{S_W}, s{S_MT}")
    e(f"s_cmp_eq_u32 s25, 0")
    e("s_cselect_b32 s24, s24, 0x1000")
    if NONON: e("s_mov_b32 s24, 0x1000")
    e(f"v_mov_b32 v{T+6}, s24")
    e("s_waitcnt lgkmcnt(0)")
    stamp2(e)
    srd(S_DBG, 50, 256)
    e("s_or_b32 s54, s54, 1")
    e(f"v_mov_b32 v{T+7}, s54")
    e("s_mov_b64 exec, 1")
    issue([(f"buffer_store_dword v{T+7}, v{T+6}, s[{S_DBG}:{S_DBG+3}], 0 offen sc1", "ns")])
    e("s_mov_b64 exec, -1")
    srd(S_SC, 44, 8 * N * 2)
    srd(S_Z, 46, 8 * N * 2)
    srd(S_Q, 42, K * N * 4)
    srd(S_X, 40, M * K * 2)
    for g_ in SH(0, 0): issue(g_)
    xoff_setup()
    e(f"v_lshrrev_b32 v{T+8}, 3, v{T+1}")
    e("s_lshl_b32 s24, s2, 3")
    e(f"v_add_u32 v{T+8}, s24, v{T+8}")
    e(f"v_lshlrev_b32 v{T+8}, 11, v{T+8}")
    e(f"v_and_b32 v{T+9}, 7, v{T+1}")
    e(f"v_lshl_add_u32 v{T+8}, v{T+9}, 4, v{T+8}")
    e(f"v_lshl_add_u32 v{T+15}, v{T+2}, 7, v{T+8}")
    def xpf(st):
        return [[f"s_mov_b32 s24, {st*128}",
                 (f"buffer_load_dwordx4 v[{V_DUM}:{V_DUM+3}], v{T+15}, s[{S_X}:{S_X+3}], s24 offen", "pf")]]
    stamp2(e)
    srd(S_O, 48, M * N * 2)
    srd(S_WS, 52, WS_BYTES)
    qoff_wr_setup()
    wr_setup()
    for pc in range(4):
        e(f"v_add_u32 v{T+11}, {pc*64}, v{T+1}")
        e(f"v_lshlrev_b32 v{V_GW+pc}, 4, v{T+11}")
        e(f"v_add_u32 v{T+13}, {WBUF-1792}, v{V_GW+pc}")
        e(f"v_cmp_le_u32 vcc, 112, v{T+11}")
        e("s_nop 1")
        e(f"v_cndmask_b32 v{V_GW+pc}, v{V_GW+pc}, v{T+13}, vcc")
    e(f"v_lshlrev_b32 v{V_L16}, 4, v{T+1}")
    e(f"s_mul_i32 s{S_IMGB}, s{S_NT}, {16*WBUF}")
    e(f"s_mul_i32 s24, s{S_MT}, 1792")
    e(f"s_add_u32 s{S_SHW}, s{S_IMGB}, s24")
    e(f"s_mul_i32 s24, s{S_W}, {2*WBUF}")
    e(f"s_add_u32 s{S_SHW}, s{S_SHW}, s24")
    e(f"s_add_u32 s{S_SHW}, s{S_SHW}, {H*WBUF}")
    e(f"s_mul_i32 s24, s{S_W}, 3584")
    e(f"s_add_u32 s{S_IMGB}, s{S_IMGB}, s24")
    e(f"s_add_u32 s{S_WM0}, s24, {LDS_W}")
    e(f"v_add_u32 v{T+14}, s{S_WM0}, v{V_L16}")
    e(f"s_lshl_b32 s24, s{S_NT}, 3")
    e(f"s_add_u32 s25, s24, s{S_MT}")
    e(f"s_lshl_b32 s25, s25, 3")
    e(f"s_add_u32 s25, s25, s{S_W}")
    e(f"s_lshl_b32 s25, s25, 7")
    e(f"s_add_u32 s{S_FLG}, s25, {WS_FLAG}")
    e(f"v_and_b32 v{T+8}, 1, v{T+1}")
    e(f"v_lshl_add_u32 v{T+8}, v{T+2}, 1, v{T+8}")
    e(f"v_add_u32 v{T+8}, s24, v{T+8}")
    e(f"v_lshrrev_b32 v{T+9}, 1, v{T+1}")
    e(f"v_min_u32 v{T+9}, {NPAIR-1}, v{T+9}")
    e(f"v_lshl_add_u32 v{T+8}, v{T+8}, 3, v{T+9}")
    e(f"v_lshlrev_b32 v{T+8}, 7, v{T+8}")
    e(f"v_add_u32 v{V_FADDR}, {WS_FLAG}, v{T+8}")
    e(f"v_mov_b32 v{V_Z}, 0")
    e(f"s_mov_b32 s{S_READY}, 0")
    e(f"s_mov_b32 s{S_FBK}, 0")
    uid = [0]
    def share_out(rnd, slot):
        e("s_waitcnt lgkmcnt(0)")
        for pc in range(4):
            e(f"ds_read_b128 v[{V_P+4*pc}:{V_P+4*pc+3}], v{T+14} offset:{slot*WBUF+pc*1024}")
        e(f"s_add_u32 s27, s{S_SHW}, {rnd*8*WBUF}")
        for pc in range(4):
            e(f"s_waitcnt lgkmcnt({3-pc})")
            if pc == 3: e("s_mov_b32 exec_hi, 0")
            issue([(f"buffer_store_dwordx4 v[{V_P+4*pc}:{V_P+4*pc+3}], v{V_GW+pc}, s[{S_WS}:{S_WS+3}], s27 offen sc1", f"st{rnd}")])
            if pc == 3: e("s_mov_b32 exec_hi, -1")
    def has_round(rnd):
        return max(0, min(4, NPAIR - 4 * rnd))
    def publish(rnd):
        nw = has_round(rnd)
        e(f"s_waitcnt vmcnt({need(f'st{rnd}')})")
        e(f"s_add_u32 s27, s{S_FLG}, {rnd*4*128}")
        if nw < 4:
            e(f"s_cmp_lt_u32 s{S_W}, {nw}")
            e(f"s_cselect_b32 s27, s27, 0x40000000")
        if FORCEFB:
            e(f"s_cmp_eq_u32 s{S_MT}, {FORCEFB-1}")
            e(f"s_cselect_b32 s27, 0x40000000, s27")
        e("s_mov_b64 exec, 1")
        issue([(f"buffer_store_dword v{V_NONCE}, v{V_Z}, s[{S_WS}:{S_WS+3}], s27 offen sc1", "fl")])
        e("s_mov_b64 exec, -1")
    def Wd(st):
        if st >= 16: return
        j = (st - H) // 2
        mask = 3 << (2 * j)
        uid[0] += 1
        u = uid[0]
        e(f"s_and_b32 s24, s{S_READY}, {mask}")
        e(f"s_cmp_eq_u32 s24, {mask}")
        e(f"s_cbranch_scc1 L_rdy{u}")
        e(f"s_cmp_eq_u32 s{S_NON}, 0")
        e(f"s_cbranch_scc1 L_fb{u}")
        e(f"s_mov_b32 s{S_CNT}, s{S_FBK}")
        e.label(f"L_poll{u}")
        e(f"buffer_load_dword v{V_FLAG}, v{V_FADDR}, s[{S_WS}:{S_WS+3}], 0 offen sc1")
        e("s_waitcnt vmcnt(0)")
        e(f"v_cmp_eq_u32 vcc, v{V_FLAG}, v{V_NONCE}")
        e(f"s_mov_b32 s{S_READY}, vcc_lo")
        e(f"s_and_b32 s24, s{S_READY}, {mask}")
        e(f"s_cmp_eq_u32 s24, {mask}")
        e(f"s_cbranch_scc1 L_rdy{u}")
        e("s_sleep 2")
        e(f"s_add_u32 s{S_CNT}, s{S_CNT}, 1")
        e(f"s_cmp_lt_u32 s{S_CNT}, {SPIN}")
        e(f"s_cbranch_scc1 L_poll{u}")
        e.label(f"L_fb{u}")
        e(f"s_mov_b32 s{S_FBK}, {SPIN}")
        e(f"s_mov_b32 s{S_FBQ}, {st*BK*QROW}")
        e(f"s_mov_b32 s{S_FBL}, {(st%WR)*WBUF}")
        e(f"s_mov_b32 s{S_FBG}, {(st//2)*N*2}")
        e(f"s_call_b64 s[{S_RET}:{S_RET+1}], L_fallback")
        e(f"s_branch L_done{u}")
        e.label(f"L_rdy{u}")
        e(f"s_add_u32 s27, s{S_IMGB}, {st*WBUF}")
        e(f"s_add_u32 m0, s{S_WM0}, {(st%WR)*WBUF}")
        e("s_nop 0")
        for pce in range(3):
            e(f"buffer_load_dwordx4 v{V_L16}, s[{S_WS}:{S_WS+3}], s27 offen offset:{pce*1024} sc1 lds")
        e("s_mov_b32 exec_hi, 0")
        e(f"buffer_load_dwordx4 v{V_L16}, s[{S_WS}:{S_WS+3}], s27 offen offset:3072 sc1 lds")
        e("s_mov_b32 exec_hi, -1")
        e.label(f"L_done{u}")
        for _ in range(4): vm.append(f"w{st}")

    e("s_waitcnt vmcnt(0)")
    stamp2(e)
    work(dq_lds(0, 3), [])
    stamp2(e)
    share_out(0, 3)
    issue([(f"buffer_load_dword v{V_NONCE}, v{V_NADDR}, s[{S_DBG}:{S_DBG+3}], 0 offen sc1", "nl")])
    stamp2(e)
    for g_ in SH(1, 1) + (xpf(3) + xpf(7) + xpf(11) + xpf(15) if XPF else []) + X(2): issue(g_)
    stamp(e)
    e("s_barrier")
    stamp(e)
    e(f"s_waitcnt vmcnt({need('nl')})")
    e(f"v_readfirstlane_b32 s{S_NON}, v{V_NONCE}")
    e(f"s_cmp_lg_u32 s{S_NON}, 0")
    e("s_cbranch_scc1 L_n_got")
    e(f"s_mov_b32 s{S_CNT}, 0")
    e.label("L_n_poll")
    e(f"buffer_load_dword v{V_NONCE}, v{V_NADDR}, s[{S_DBG}:{S_DBG+3}], 0 offen sc1")
    e("s_waitcnt vmcnt(0)")
    e(f"v_readfirstlane_b32 s{S_NON}, v{V_NONCE}")
    e(f"s_cmp_lg_u32 s{S_NON}, 0")
    e("s_cbranch_scc1 L_n_got")
    e("s_sleep 2")
    e(f"s_add_u32 s{S_CNT}, s{S_CNT}, 1")
    e(f"s_cmp_lt_u32 s{S_CNT}, {SPIN}")
    e("s_cbranch_scc1 L_n_poll")
    e.label("L_n_got")
    publish(0)
    stamp(e)
    e("s_barrier")
    for g_ in X(3): issue(g_)
    e(f"s_waitcnt vmcnt({need('sh1')})")
    work(dq_lds(1, 0), [])
    Wd(2); Wd(3)
    share_out(1, 0)
    stamp(e)
    e(f"s_waitcnt vmcnt({min(need('x2'), need('w2'))})")
    e("s_barrier")
    publish(1)
    e(f"s_mov_b32 s{S_ST}, 4")
    e(f"s_mov_b32 s{S_XO}, {(4 % XR) * XBUF}")
    e(f"s_mov_b32 s{S_WO}, {(4 % WR) * WBUF}")
    e(f"s_mov_b32 s{S_XKQ}, {4*128}")
    e(f"s_add_u32 s{S_WSRC}, s{S_IMGB}, {4*WBUF}")
    e.label("L_ploop")
    e(f"s_sub_u32 s24, s{S_ST}, {H}")
    e(f"s_and_b32 s24, s24, 0xfe")
    e(f"s_lshl_b32 s{S_MASK}, 3, s24")
    e(f"s_and_b32 s24, s{S_READY}, s{S_MASK}")
    e(f"s_cmp_eq_u32 s24, s{S_MASK}")
    e("s_cbranch_scc1 L_rdyL")
    e(f"s_cmp_eq_u32 s{S_NON}, 0")
    e("s_cbranch_scc1 L_fbL")
    e(f"s_mov_b32 s{S_CNT}, s{S_FBK}")
    e.label("L_pollL")
    e(f"buffer_load_dword v{V_FLAG}, v{V_FADDR}, s[{S_WS}:{S_WS+3}], 0 offen sc1")
    e("s_waitcnt vmcnt(0)")
    e(f"v_cmp_eq_u32 vcc, v{V_FLAG}, v{V_NONCE}")
    e(f"s_mov_b32 s{S_READY}, vcc_lo")
    e(f"s_and_b32 s24, s{S_READY}, s{S_MASK}")
    e(f"s_cmp_eq_u32 s24, s{S_MASK}")
    e("s_cbranch_scc1 L_rdyL")
    e("s_sleep 2")
    e(f"s_add_u32 s{S_CNT}, s{S_CNT}, 1")
    e(f"s_cmp_lt_u32 s{S_CNT}, {SPIN}")
    e("s_cbranch_scc1 L_pollL")
    e.label("L_fbL")
    e(f"s_mov_b32 s{S_FBK}, {SPIN}")
    e(f"s_mul_i32 s{S_FBQ}, s{S_ST}, {BK*QROW}")
    e(f"s_mov_b32 s{S_FBL}, s{S_WO}")
    e(f"s_lshr_b32 s24, s{S_ST}, 1")
    e(f"s_mul_i32 s{S_FBG}, s24, {N*2}")
    e(f"s_call_b64 s[{S_RET}:{S_RET+1}], L_fallback")
    e("s_branch L_doneL")
    e.label("L_rdyL")
    e(f"s_add_u32 m0, s{S_WM0}, s{S_WO}")
    e("s_nop 0")
    for pce in range(3):
        e(f"buffer_load_dwordx4 v{V_L16}, s[{S_WS}:{S_WS+3}], s{S_WSRC} offen offset:{pce*1024} sc1 lds")
    e("s_mov_b32 exec_hi, 0")
    e(f"buffer_load_dwordx4 v{V_L16}, s[{S_WS}:{S_WS+3}], s{S_WSRC} offen offset:3072 sc1 lds")
    e("s_mov_b32 exec_hi, -1")
    e.label("L_doneL")
    e(f"s_add_u32 s24, s{S_M0B}, s{S_XO}")
    for a in range(8):
        if a % 4 == 0:
            e(f"s_add_u32 m0, s24, {(a//4)*4096}")
            e("s_nop 0")
        e(f"buffer_load_dwordx4 v{V_XOFF+a}, s[{S_X}:{S_X+3}], s{S_XKQ} offen offset:{(a%4)*1024} lds")
    e(f"s_add_u32 s{S_XO}, s{S_XO}, {XBUF}")
    e(f"s_cmp_eq_u32 s{S_XO}, {XR*XBUF}")
    e(f"s_cselect_b32 s{S_XO}, 0, s{S_XO}")
    e(f"s_add_u32 s{S_WO}, s{S_WO}, {WBUF}")
    e(f"s_cmp_eq_u32 s{S_WO}, {WR*WBUF}")
    e(f"s_cselect_b32 s{S_WO}, 0, s{S_WO}")
    e(f"s_add_u32 s{S_XKQ}, s{S_XKQ}, 128")
    e(f"s_add_u32 s{S_WSRC}, s{S_WSRC}, {WBUF}")
    stamp(e)
    e(f"s_add_u32 s{S_ST}, s{S_ST}, 1")
    e(f"s_cmp_lt_u32 s{S_ST}, 16")
    e("s_waitcnt vmcnt(12)")
    e("s_barrier")
    e("s_cbranch_scc1 L_ploop")
    stamp(e)
    e("s_waitcnt vmcnt(0)")
    e("s_barrier")
    stamp(e)
    e("v_and_b32 v10, 63, v0")
    e("v_mul_u32_u24 v11, 0x1250, v10")
    e("v_lshrrev_b32 v11, 16, v11")
    e("v_mul_u32_u24 v12, 14, v11")
    e("v_sub_u32 v12, v10, v12")
    e("v_and_b32 v13, 3, v1")
    e("v_lshl_add_u32 v13, v13, 6, v11")
    e(f"s_mov_b32 s27, {ESTRIDE}")
    e("v_mul_lo_u32 v14, v13, s27")
    e("v_lshl_add_u32 v14, v12, 4, v14")
    e(f"v_add_u32 v14, {EBASE}, v14")
    e(f"v_add_u32 v13, s{S_M0}, v13")
    e(f"s_mov_b32 s27, {OROW}")
    e("v_mul_lo_u32 v13, v13, s27")
    e(f"s_lshl_b32 s28, s{S_N0}, 1")
    e("v_lshl_add_u32 v13, v12, 4, v13")
    e("v_add_u32 v13, s28, v13")
    e("v_cmp_gt_u32 vcc, 56, v10")
    e("s_and_b64 exec, exec, vcc")
    for m in range(4):
        e("s_barrier")
        for i in range(4):
            b = 128 + m * 16 + i * 4
            e(f"ds_read_b128 v[{b}:{b+3}], v14 offset:{(m*16+i*4)*ESTRIDE}")
        for i in range(4):
            b = 128 + m * 16 + i * 4
            e(f"s_mov_b32 s24, {(m*16+i*4)*OROW}")
            e(f"s_waitcnt lgkmcnt({3-i})")
            e(f"buffer_store_dwordx4 v[{b}:{b+3}], v13, s[{S_O}:{S_O+3}], s24 offen")
    e("s_mov_b64 exec, -1")
    e("s_branch L_fin")

    e.label("L_fallback")
    r0 = raw(FB_STAGE)
    e(f"buffer_load_dwordx2 v[{r0}:{r0+1}], v{V_SCO}, s[{S_SC}:{S_SC+3}], s{S_FBG} offen")
    e(f"buffer_load_dwordx2 v[{r0+2}:{r0+3}], v{V_SCO}, s[{S_Z}:{S_Z+3}], s{S_FBG} offen")
    for i in range(8):
        r = qreg(FB_STAGE, i, 0)
        e(f"buffer_load_dwordx4 v[{r}:{r+3}], v{V_QOFF+i}, s[{S_Q}:{S_Q+3}], s{S_FBQ} offen")
    for c in range(4):
        e(f"v_add_u32 v{T+8+c}, s{S_FBL}, v{V_WR+c}")
    e("s_waitcnt vmcnt(0)")
    for op in dequant_ops(FB_STAGE):
        if isinstance(op, tuple):
            e(f"ds_write_b128 v{T+8+op[1]}, v[{V_P+4*op[1]}:{V_P+4*op[1]+3}]")
        else:
            e(op)
    e("s_waitcnt lgkmcnt(0)")
    e(f"s_setpc_b64 s[{S_RET}:{S_RET+1}]")

    e.label("L_fin")
    if STAMP:
        stamp(e)
        e("s_waitcnt vmcnt(0)")
        stamp(e)
        stamp(e, True)
        e("s_mov_b32 s64, s52")
        e("s_and_b32 s65, s53, 0xffff")
        e("s_mov_b32 s66, 0x10000000")
        e("s_mov_b32 s67, 0x00020000")
        e("v_lshlrev_b32 v1, 2, v0")
        e("s_lshl_b32 s24, s2, 11")
        e(f"s_add_u32 s24, s24, {WS_STAMP}")
        e(f"buffer_store_dword v{C_ST}, v1, s[64:67], s24 offen")
    e.label("L_end")
    e("s_endpgm")

    out += e.lines
    out.append('.section .rodata,"a"')
    out.append(".p2align 6")
    out.append(".amdhsa_kernel standalone__w4a16_gemm_dequant__prompt_kernel")
    out.append("  .amdhsa_next_free_vgpr 256")
    out.append("  .amdhsa_next_free_sgpr 102")
    out.append("  .amdhsa_accum_offset 256")
    out.append("  .amdhsa_group_segment_fixed_size 0")
    out.append("  .amdhsa_kernarg_size 56")
    out.append("  .amdhsa_user_sgpr_count 2")
    out.append("  .amdhsa_user_sgpr_kernarg_segment_ptr 1")
    out.append("  .amdhsa_system_sgpr_workgroup_id_x 1")
    out.append("  .amdhsa_float_denorm_mode_32 3")
    out.append("  .amdhsa_float_denorm_mode_16_64 3")
    out.append(".end_amdhsa_kernel")
    return "\n".join(out) + "\n"


if __name__ == "__main__":
    dst = sys.argv[1] if len(sys.argv) > 1 else "standalone__w4a16_gemm_dequant__prompt.s"
    open(dst, "w").write(gen())
    print("wrote", dst)
```

```python
import sys, os
CPF = int(os.environ.get('CPF', '11'))
STAMP = bool(os.environ.get('STAMP'))
S2 = bool(os.environ.get('STAMP2'))
PRIO = int(os.environ.get('PRIO', '3'))
H = int(os.environ.get('H', '2'))
SPIN = int(os.environ.get('SPIN', '64'))
FORCEFB = int(os.environ.get('FORCEFB', '0'))
WLEAD = int(os.environ.get('WLEAD', '2'))
WSTART = int(os.environ.get('WSTART', '1'))
STAG = 1
TLBT = 0
XP0 = int(os.environ.get('XP0', '1'))
XMAP = int(os.environ.get('XMAP', '0'))
STG2 = int(os.environ.get('STG2', '0'))
CXPOS = int(os.environ.get('CXPOS', '1'))
NONON = int(os.environ.get('NONON', '0'))
EPI2 = int(os.environ.get('EPI2', '1'))
SHNT = ' nt' if int(os.environ.get('SHNT', '1')) else ''
QNT = ' nt' if int(os.environ.get('QNT', '1')) else ''
SH1AT = int(os.environ.get('SH1AT', '-1'))
XPF = int(os.environ.get('XPF', '1'))
R1 = int(os.environ.get('R1', '0'))
PUB1 = int(os.environ.get('PUB1', '1'))
assert H in (2,)

M, N, K = 2048, 3584, 1024
BM, BN, BK = 256, 112, 64
QROW = N * 4
XROW = K * 2
OROW = N * 2
XBUF = BM * BK * 2
WBUF = BN * BK * 2
XR, WR = 3, 4
LDS_W = XR * XBUF
LDS_TOTAL = LDS_W + WR * WBUF
ESTRIDE = 240
EBASE = 32768
NPAIR = (16 - H) // 2
WS_FLAG = 8 << 20
WS_BYTES = WS_FLAG + 256 * 8 * 128
WS_STAMP = 16 << 20

C_RDW = 2
C_RDX = 4
C_ST = 8
ACC = 16
def acc(t, m):
    b = ACC + (t * 4 + m) * 4
    return f"v[{b}:{b+3}]"
def acc1(t, m, r): return ACC + (t * 4 + m) * 4 + r
C_WF = 128
C_XF = 184
C_E = 220
def wf(s, t): b = C_WF + s * 28 + t * 4; return f"v[{b}:{b+3}]"
def xf(s, m): b = C_XF + s * 16 + m * 4; return f"v[{b}:{b+3}]"
V_XOFF = 16
V_QOFF = 24
V_S = 32
V_P = 40
V_WR = 60
V_SOFF = 64
V_GW = 72
V_T = 76
V_SCO = 92
V_RAW = 96
V_Q = 116
V_DUM = 244
V_L16, V_FADDR, V_NONCE, V_FLAG, V_Z, V_NADDR = 2, 3, 4, 5, 6, 7
FB_STAGE = 3
def qreg(stage, i, c): return V_Q + stage * 32 + i * 4 + c
def raw(stage): return V_RAW + 4 * stage

S_X, S_Q, S_O, S_SC, S_Z, S_WS, S_DBG = 4, 8, 12, 16, 20, 64, 84
S_C24, S_M0B = 34, 38
S_M0, S_N0, S_W, S_MT, S_NT = 35, 36, 37, 39, 33
S_READY, S_FBK, S_IMGB, S_WM0, S_SHQ, S_SHW, S_FLG, S_SHS = 68, 69, 70, 71, 72, 73, 74, 75
S_RET = 76
S_FBQ, S_FBL, S_FBG = 78, 79, 80
S_CNT, S_NON = 81, 82
S_XO, S_WO, S_IT, S_XKQ, S_WSRC, S_MASK, S_ST = 94, 95, 96, 97, 98, 99, 100
C_CUR = 9


class Emit:
    def __init__(self):
        self.lines = []
    def __call__(self, s):
        self.lines.append("    " + s)
    def label(self, s):
        self.lines.append(s + ":")


def stamp(e, real=False):
    if not STAMP: return
    e("s_memrealtime s[60:61]" if real else "s_memtime s[60:61]")
    e("s_waitcnt lgkmcnt(0)")
    e("s_mov_b32 m0, s58")
    e("s_nop 0")
    e(f"v_writelane_b32 v{C_ST}, s60, m0")
    e("s_add_u32 s58, s58, 1")
def stamp2(e):
    if S2: stamp(e)


def dequant_ops(stage):
    ops = []
    r0 = raw(stage)
    ops.append(f"v_lshlrev_b32 v{V_S}, 16, v{r0}")
    ops.append(f"v_and_b32 v{V_S+1}, 0xffff0000, v{r0}")
    ops.append(f"v_lshlrev_b32 v{V_S+2}, 16, v{r0+1}")
    ops.append(f"v_and_b32 v{V_S+3}, 0xffff0000, v{r0+1}")
    ops.append(f"v_lshlrev_b32 v{V_S+4}, 16, v{r0+2}")
    ops.append(f"v_and_b32 v{V_S+5}, 0xffff0000, v{r0+2}")
    ops.append(f"v_lshlrev_b32 v{V_S+6}, 16, v{r0+3}")
    ops.append(f"v_and_b32 v{V_S+7}, 0xffff0000, v{r0+3}")
    for c in range(4):
        for i in range(8):
            r = qreg(stage, i, c)
            ops.append(f"v_fma_mix_f32 v{r}, v{r}, s{S_C24}, -v{V_S+4+c} op_sel_hi:[1,0,0]")
        for j in range(4):
            ops.append(f"v_cvt_pk_bf16_f32 v{V_P+4*c+j}, v{qreg(stage,2*j,c)}, v{qreg(stage,2*j+1,c)}")
        for j in range(4):
            ops.append(f"v_lshlrev_b32 v{qreg(stage,2*j,c)}, 16, v{V_P+4*c+j}")
            ops.append(f"v_and_b32 v{qreg(stage,2*j+1,c)}, 0xffff0000, v{V_P+4*c+j}")
        for i in range(8):
            r = qreg(stage, i, c)
            ops.append(f"v_mul_f32 v{r}, v{r}, v{V_S+c}")
        for j in range(4):
            ops.append(f"v_cvt_pk_bf16_f32 v{V_P+4*c+j}, v{qreg(stage,2*j,c)}, v{qreg(stage,2*j+1,c)}")
        ops.append(("W", c))
    return ops


def gen():
    e = Emit()
    hdr = open("standalone__w4a16_gemm_dequant__prompt.s.ref").read().split("\n")
    out = []
    for l in hdr:
        if l.startswith("; @launch"):
            out.append(f"; @launch grid=(256,1,1) block=(512,1,1) lds={LDS_TOTAL}")
            break
        out.append(l)
    out.append('.amdgcn_target "amdgcn-amd-amdhsa--gfx950"')
    out.append(".text")
    out.append(".globl standalone__w4a16_gemm_dequant__prompt_kernel")
    out.append(".p2align 8")
    out.append(".type standalone__w4a16_gemm_dequant__prompt_kernel,@function")
    out.append("standalone__w4a16_gemm_dequant__prompt_kernel:")

    def srd(d, lo, nbytes):
        e(f"s_mov_b32 s{d}, s{lo}")
        e(f"s_and_b32 s{d+1}, s{lo+1}, 0xffff")
        e(f"s_mov_b32 s{d+2}, {nbytes}")
        e(f"s_mov_b32 s{d+3}, 0x00020000")

    vm = []
    def issue(lst):
        for f in lst:
            if isinstance(f, tuple):
                e(f[0])
                if f[1] is not None: vm.append(f[1])
            else:
                e(f)
    def need(tag):
        c = [i for i, t in enumerate(vm) if t.rstrip('!') == tag]
        assert c, tag
        return min(63, sum(1 for t in vm[max(c) + 1:] if not t.endswith('!')))
    def groups(lst):
        g_ = []; cur = []
        for f in lst:
            cur.append(f)
            if isinstance(f, tuple) and f[1] is not None:
                g_.append(cur); cur = []
        if cur:
            g_[-1] += cur
        return g_
    def work(ops, seq):
        n = len(ops); k = len(seq); gi = 0
        for i, op in enumerate(ops):
            while gi < k and gi * n <= i * k:
                issue(seq[gi]); gi += 1
            issue([op])
        while gi < k:
            issue(seq[gi]); gi += 1
    def dq_lds(stage, slot):
        return [f"ds_write_b128 v{V_WR+op[1]}, v[{V_P+4*op[1]}:{V_P+4*op[1]+3}] offset:{slot*WBUF}" if isinstance(op, tuple) else op
                for op in dequant_ops(stage)]
    def SC(stage, soff, tag):
        r0 = raw(stage)
        return [(f"buffer_load_dwordx2 v[{r0}:{r0+1}], v{V_SCO}, s[{S_SC}:{S_SC+3}], {soff} offen", tag),
                (f"buffer_load_dwordx2 v[{r0+2}:{r0+3}], v{V_SCO}, s[{S_Z}:{S_Z+3}], {soff} offen", tag)]

    T = V_T
    e("s_cmp_ge_u32 s2, 256")
    e("s_cbranch_scc1 L_end")
    if CPF:
        e("s_getpc_b64 s[90:91]")
        e("v_lshlrev_b32 v2, 7, v0")
        e(f"v_cmp_gt_u32 vcc, {CPF*1024}, v2")
        e("s_and_saveexec_b64 s[92:93], vcc")
        e("s_cbranch_execz L_nocpf")
        e("global_load_dword v255, v2, s[90:91]")
        e.label("L_nocpf")
        e("s_mov_b64 exec, s[92:93]")
    e("s_load_dwordx8 s[40:47], s[0:1], 0")
    e("s_load_dwordx4 s[48:51], s[0:1], 32")
    e("s_load_dwordx2 s[52:53], s[0:1], 48")
    e("s_memrealtime s[54:55]")
    if STAMP:
        e("s_mov_b32 s58, 0")
        e(f"v_mov_b32 v{C_ST}, 0")
        stamp(e, True)
        stamp(e)
    e("s_and_b32 s24, s2, 7")
    e("s_lshr_b32 s25, s2, 3")
    e("s_and_b32 s26, s25, 3")
    e("s_lshl_b32 s24, s24, 2")
    e(f"s_add_u32 s{S_NT}, s24, s26")
    e(f"s_lshr_b32 s{S_MT}, s25, 2")
    if XMAP == 1:
        e(f"s_and_b32 s{S_MT}, s2, 7")
        e(f"s_lshr_b32 s{S_NT}, s2, 3")
    if XMAP == 2:
        e(f"s_and_b32 s24, s2, 1")
        e(f"s_lshl_b32 s24, s24, 2")
        e(f"s_bfe_u32 s25, s2, 0x20003")
        e(f"s_add_u32 s{S_MT}, s24, s25")
        e(f"s_bfe_u32 s24, s2, 0x20001")
        e(f"s_lshl_b32 s24, s24, 3")
        e(f"s_lshr_b32 s25, s2, 5")
        e(f"s_add_u32 s{S_NT}, s24, s25")
    e(f"s_mul_i32 s{S_N0}, s{S_NT}, {BN}")
    e(f"s_lshl_b32 s{S_M0}, s{S_MT}, 8")
    e("v_lshrrev_b32 v1, 6, v0")
    e("v_and_b32 v10, 255, v0")
    e(f"v_readfirstlane_b32 s{S_W}, v1")
    e("v_lshrrev_b32 v11, 5, v10")
    e("v_and_b32 v12, 31, v10")
    e("v_min_u32 v12, 27, v12")
    e(f"s_lshl_b32 s28, s{S_N0}, 2")
    e("v_lshl_add_u32 v14, v12, 4, s28")
    e(f"v_lshrrev_b32 v{V_SCO}, 1, v14")
    e(f"s_mov_b32 s{S_C24}, 0x4b800000")
    e(f"s_cmp_ge_u32 s{S_W}, 4")
    e("s_cbranch_scc1 L_prod")

    def qoff_wr_setup():
        e(f"s_mov_b32 s27, {8*QROW}")
        e(f"v_mul_lo_u32 v13, v11, s27")
        e(f"v_add_u32 v{V_QOFF}, v14, v13")
        for i in range(1, 8):
            e(f"v_add_u32 v{V_QOFF+i}, {i*QROW}, v{V_QOFF}")
    def wr_setup():
        e(f"v_lshrrev_b32 v{T+8}, 2, v12")
        e(f"v_and_b32 v{T+9}, 3, v12")
        e(f"v_and_b32 v{T+10}, 1, v{T+8}")
        e(f"v_lshlrev_b32 v{T+10}, 1, v{T+10}")
        e(f"v_lshrrev_b32 v{T+11}, 1, v{T+9}")
        e(f"v_add_u32 v{T+10}, v{T+10}, v{T+11}")
        e(f"v_lshlrev_b32 v{T+8}, 8, v{T+8}")
        e(f"v_lshl_add_u32 v{T+8}, v{T+9}, 6, v{T+8}")
        e(f"v_mul_u32_u24 v{T+12}, 1792, v11")
        e(f"v_add_u32 v{T+12}, v{T+12}, v{T+8}")
        e(f"v_add_u32 v{T+12}, {LDS_W}, v{T+12}")
        for c in range(4):
            e(f"v_xor_b32 v{T+11}, {c}, v{T+10}")
            e(f"v_lshl_add_u32 v{V_WR+c}, v{T+11}, 4, v{T+12}")
    def Q(st, stage):
        ins = [f"s_mov_b32 s24, {st*BK*QROW}"]
        for i in range(8):
            r = qreg(stage, i, 0)
            ins.append((f"buffer_load_dwordx4 v[{r}:{r+3}], v{V_QOFF+i}, s[{S_Q}:{S_Q+3}], s24 offen{QNT}", f"q{st}"))
        return groups(ins)

    def X(st):
        if st >= 16: return []
        ins = [f"s_mov_b32 s25, {st*128}"]
        for a in range(8):
            if a % 4 == 0:
                ins.append(f"s_add_u32 m0, s{S_M0B}, {(st%XR)*XBUF + (a//4)*4096}")
                ins.append("s_nop 0")
            ins.append((f"buffer_load_dwordx4 v{V_XOFF+a}, s[{S_X}:{S_X+3}], s25 offen offset:{(a%4)*1024} lds", f"x{st}"))
        return groups(ins)
    def xoff_setup():
        e(f"v_and_b32 v{T+1}, 63, v0")
        e(f"v_bfe_u32 v{T+3}, v0, 4, 2")
        e(f"v_and_b32 v{T+2}, 3, v1")
        e(f"v_lshrrev_b32 v{T+8}, 3, v{T+1}")
        e(f"v_lshl_add_u32 v{T+8}, v{T+2}, 6, v{T+8}")
        e(f"v_add_u32 v{T+8}, s{S_M0}, v{T+8}")
        e(f"v_lshlrev_b32 v{T+8}, 11, v{T+8}")
        e(f"v_and_b32 v{T+9}, 7, v{T+1}")
        e(f"v_xor_b32 v{T+9}, v{T+9}, v{T+3}")
        e(f"v_xor_b32 v{T+10}, 4, v{T+9}")
        e(f"v_lshl_add_u32 v{T+9}, v{T+9}, 4, v{T+8}")
        e(f"v_lshl_add_u32 v{T+10}, v{T+10}, 4, v{T+8}")
        for a in range(8):
            e(f"v_add_u32 v{V_XOFF+a}, {a*8*XROW - (a%4)*1024}, v{T+9+(a&1)}")
        e(f"s_and_b32 s24, s{S_W}, 3")
        e(f"s_lshl_b32 s{S_M0B}, s24, 13")

    qoff_wr_setup()
    e("s_waitcnt lgkmcnt(0)")
    srd(S_SC, 44, 8 * N * 2)
    srd(S_Z, 46, 8 * N * 2)
    srd(S_Q, 42, K * N * 4)
    if XP0:
        srd(S_X, 40, M * K * 2)
        e(f"v_bfe_u32 v{T+15}, v0, 3, 3")
        e("s_lshl_b32 s24, s2, 3")
        e(f"v_add_u32 v{T+15}, s24, v{T+15}")
        e(f"v_lshlrev_b32 v{T+15}, 11, v{T+15}")
        e(f"v_and_b32 v{T+14}, 7, v0")
        e(f"v_lshl_add_u32 v{T+15}, v{T+14}, 4, v{T+15}")
        e(f"v_lshl_add_u32 v{T+15}, v1, 7, v{T+15}")
        for i in range(XP0):
            e(f"s_mov_b32 s24, {i*512}")
            issue([(f"buffer_load_dwordx4 v[{V_DUM}:{V_DUM+3}], v{T+15}, s[{S_X}:{S_X+3}], s24 offen", "pf")])
    issue(SC(0, "0", "q0"))
    for g_ in Q(0, 0): issue(g_)
    for g_ in Q(1, 1): issue(g_)
    srd(S_O, 48, M * N * 2)
    srd(S_X, 40, M * K * 2)
    xoff_setup()
    if CXPOS == 0:
        for g_ in X(0) + X(1): issue(g_)
    if TLBT:
        srd(S_WS, 52, WS_BYTES)
        e("v_and_b32 v10, 63, v0")
        e("v_lshl_add_u32 v10, v1, 6, v10")
        e(f"v_add_u32 v10, s{S_M0}, v10")
        e(f"s_mov_b32 s27, {OROW}")
        e("v_mul_lo_u32 v10, v10, s27")
        e(f"s_lshl_b32 s27, s{S_N0}, 1")
        e("s_mov_b64 exec, 1")
        issue([(f"buffer_load_dword v{V_DUM}, v10, s[{S_O}:{S_O+3}], s27 offen", "tl")])
        e(f"s_mul_i32 s27, s{S_NT}, {16*WBUF}")
        e(f"s_cmp_eq_u32 s{S_W}, 1")
        e(f"s_cselect_b32 s27, {WS_FLAG}, s27")
        e(f"v_mov_b32 v10, 0")
        issue([(f"buffer_load_dword v{V_DUM}, v10, s[{S_WS}:{S_WS+3}], s27 offen sc1", "tl")])
        e("s_mov_b64 exec, -1")
    wr_setup()
    e("v_and_b32 v14, 15, v0")
    e("v_bfe_u32 v15, v0, 4, 2")
    e("v_lshrrev_b32 v10, 3, v14")
    e("v_xor_b32 v10, v10, v14")
    e("v_mul_u32_u24 v11, 1792, v15")
    e(f"v_add_u32 v11, {LDS_W}, v11")
    e(f"v_lshl_add_u32 v{C_RDW}, v10, 4, v11")
    e("v_xor_b32 v10, 2, v10")
    e(f"v_lshl_add_u32 v{C_RDW+1}, v10, 4, v11")
    e("v_lshrrev_b32 v10, 1, v14")
    e("v_xor_b32 v10, v10, v15")
    e("v_lshlrev_b32 v11, 13, v1")
    e("v_lshl_add_u32 v11, v14, 7, v11")
    e(f"v_lshl_add_u32 v{C_RDX}, v10, 4, v11")
    e(f"v_xor_b32 v{C_RDX+1}, 64, v{C_RDX}")
    e(f"v_add_u32 v{C_RDX+2}, {2*XBUF}, v{C_RDX}")
    e(f"v_add_u32 v{C_RDX+3}, {2*XBUF}, v{C_RDX+1}")
    stamp(e)
    e(f"s_waitcnt vmcnt({need('q0')})")
    for r in range(4):
        e(f"v_mov_b32 v{raw(1)+r}, v{raw(0)+r}")
    work(dq_lds(0, 0), X(0) if CXPOS else [])
    e(f"s_waitcnt vmcnt({need('q1')})")
    work(dq_lds(1, 1), X(1) if CXPOS else [])
    e("s_waitcnt lgkmcnt(0)")
    for i in range(0, 112, 2):
        e(f"v_mov_b64 v[{ACC+i}:{ACC+i+1}], 0")
    for i in range(0, 28, 2):
        e(f"v_mov_b64 v[{C_WF+28+i}:{C_WF+28+i+1}], 0")
    for i in range(0, 16, 2):
        e(f"v_mov_b64 v[{C_XF+16+i}:{C_XF+16+i+1}], 0")
    e(f"s_mov_b32 s{S_XO}, 0")
    e(f"s_mov_b32 s{S_WO}, 0")
    e(f"s_mov_b32 s{S_IT}, 0")
    e(f"v_mov_b32 v{C_CUR}, v{C_RDX}")
    e(f"v_mov_b32 v{C_CUR+1}, v{C_RDX+1}")
    e(f"v_mov_b32 v{C_CUR+2}, v{C_RDW}")
    e(f"v_mov_b32 v{C_CUR+3}, v{C_RDW+1}")
    e(f"s_setprio {PRIO}")
    e("s_waitcnt vmcnt(0)")
    stamp(e)
    def wread(s_set, t, s):
        return f"ds_read_b128 {wf(s_set,t)}, v{C_CUR+2+(t&1)} offset:{s*7168+t*256}"
    def xread(s_set, m, s):
        return f"ds_read_b128 {xf(s_set,m)}, v{C_CUR+s} offset:{m*2048}"
    def mfmas(s_set, ts):
        return [f"v_mfma_f32_16x16x32_bf16 {acc(t,m)}, {wf(s_set,t)}, {xf(s_set,m)}, {acc(t,m)}" for t in ts for m in range(4)]
    def interleave(mf, fill):
        j = 0
        for m_ in mf:
            e(m_)
            if j < len(fill):
                e(fill[j]); j += 1
        while j < len(fill):
            e(fill[j]); j += 1
    e.label("L_cloop")
    e("s_barrier")
    fill = [xread(0, m, 0) for m in range(4)] + [wread(0, t, 0) for t in range(7)]
    for f in fill[:3]: e(f)
    interleave(mfmas(1, [4, 5, 6]), fill[3:])
    e("s_waitcnt lgkmcnt(0)")
    fill = [xread(1, m, 1) for m in range(4)] + [wread(1, t, 1) for t in range(7)]
    interleave(mfmas(0, range(7)), fill)
    e("s_waitcnt lgkmcnt(0)")
    adv = [f"s_add_u32 s{S_XO}, s{S_XO}, {XBUF}",
           f"s_cmp_eq_u32 s{S_XO}, {XR*XBUF}",
           f"s_cselect_b32 s{S_XO}, 0, s{S_XO}",
           f"s_add_u32 s{S_WO}, s{S_WO}, {WBUF}",
           f"s_cmp_eq_u32 s{S_WO}, {WR*WBUF}",
           f"s_cselect_b32 s{S_WO}, 0, s{S_WO}",
           f"v_add_u32 v{C_CUR}, s{S_XO}, v{C_RDX}",
           f"v_add_u32 v{C_CUR+1}, s{S_XO}, v{C_RDX+1}",
           f"v_add_u32 v{C_CUR+2}, s{S_WO}, v{C_RDW}",
           f"v_add_u32 v{C_CUR+3}, s{S_WO}, v{C_RDW+1}",
           f"s_add_u32 s{S_IT}, s{S_IT}, 1"]
    mf = mfmas(1, [0, 1, 2, 3])
    interleave(mf[:-2], adv)
    stamp(e)
    e(f"s_cmp_lt_u32 s{S_IT}, 15")
    for m_ in mf[-2:]: e(m_)
    e("s_cbranch_scc1 L_cloop")
    e("s_barrier")
    fill = [xread(0, m, 0) for m in range(4)] + [wread(0, t, 0) for t in range(7)]
    for f in fill[:3]: e(f)
    interleave(mfmas(1, [4, 5, 6]), fill[3:])
    for f in [xread(1, m, 1) for m in range(4)] + [wread(1, t, 1) for t in range(7)]: e(f)
    e(f"s_mov_b32 s27, {ESTRIDE}")
    e("v_lshl_add_u32 v13, v1, 6, v14")
    e("v_mul_lo_u32 v13, v13, s27")
    e("v_lshl_add_u32 v13, v15, 3, v13")
    e(f"v_add_u32 v13, {EBASE}, v13")
    def mf_m(m):
        return [f"v_mfma_f32_16x16x32_bf16 {acc(t,m)}, {wf(s_,t)}, {xf(s_,m)}, {acc(t,m)}" for s_ in range(2) for t in range(7)]
    def conv(m):
        o = []
        for t in range(7):
            b = C_E + t * 2
            o.append(f"v_cvt_pk_bf16_f32 v{b}, v{acc1(t,m,0)}, v{acc1(t,m,1)}")
            o.append(f"v_cvt_pk_bf16_f32 v{b+1}, v{acc1(t,m,2)}, v{acc1(t,m,3)}")
            o.append(f"ds_write_b64 v13, v[{b}:{b+1}] offset:{m*16*ESTRIDE + t*32}")
        return o
    e("s_waitcnt lgkmcnt(11)")
    mm = mf_m(0)
    for m_ in mm[:7]: e(m_)
    e("s_waitcnt lgkmcnt(0)")
    for m_ in mm[7:]: e(m_)
    for m in range(1, 4):
        mm = mf_m(m); cv = conv(m - 1)
        for m_ in mm[:2]: e(m_)
        j = 0
        for m_ in mm[2:]:
            e(m_)
            for _ in range(2):
                if j < len(cv):
                    e(cv[j]); j += 1
        e("s_waitcnt lgkmcnt(0)")
        e("s_barrier")
    e("s_nop 7")
    for c_ in conv(3): e(c_)
    e("s_waitcnt lgkmcnt(0)")
    e("s_barrier")
    stamp(e)
    e("s_branch L_fin")

    e.label("L_prod")
    vm.clear()
    def SH(rnd, stage):
        ins = [f"s_add_u32 s27, s{S_SHS}, {rnd*4*N*2}"] + SC(stage, "s27", f"sh{rnd}")
        ins.append(f"s_add_u32 s26, s{S_SHQ}, {rnd*8*BK*QROW}")
        for i in range(8):
            r = qreg(stage, i, 0)
            ins.append((f"buffer_load_dwordx4 v[{r}:{r+3}], v{V_SOFF+i}, s[{S_Q}:{S_Q+3}], s26 offen{SHNT}", f"sh{rnd}"))
        return groups(ins)
    e(f"v_and_b32 v{T+1}, 63, v0")
    e(f"s_and_b32 s{S_W}, s{S_W}, 3")
    e(f"v_lshrrev_b32 v{T+4}, 5, v{T+1}")
    e(f"s_mov_b32 s27, {64*QROW}")
    e(f"v_mul_lo_u32 v{T+5}, v{T+4}, s27")
    e(f"s_mul_i32 s27, s{S_MT}, {8*QROW}")
    e(f"v_add3_u32 v{V_SOFF}, v{T+5}, s27, v14")
    for i in range(1, 8):
        e(f"v_add_u32 v{V_SOFF+i}, {i*QROW}, v{V_SOFF}")
    e(f"s_mul_i32 s{S_SHQ}, s{S_W}, {2*BK*QROW}")
    e(f"s_add_u32 s{S_SHQ}, s{S_SHQ}, {H*BK*QROW}")
    e(f"s_mul_i32 s{S_SHS}, s{S_W}, {N*2}")
    e(f"s_add_u32 s{S_SHS}, s{S_SHS}, {(H//2)*N*2}")
    e(f"s_lshl_b32 s24, s{S_NT}, 2")
    e(f"v_mov_b32 v{V_NADDR}, s24")
    e(f"s_or_b32 s25, s{S_W}, s{S_MT}")
    e(f"s_cmp_eq_u32 s25, 0")
    e("s_cselect_b32 s24, s24, 0x1000")
    if NONON: e("s_mov_b32 s24, 0x1000")
    e(f"v_mov_b32 v{T+6}, s24")
    e("s_waitcnt lgkmcnt(0)")
    stamp2(e)
    srd(S_DBG, 50, 256)
    e("s_or_b32 s54, s54, 1")
    e(f"v_mov_b32 v{T+7}, s54")
    e("s_mov_b64 exec, 1")
    issue([(f"buffer_store_dword v{T+7}, v{T+6}, s[{S_DBG}:{S_DBG+3}], 0 offen sc1", "ns")])
    e("s_mov_b64 exec, -1")
    srd(S_SC, 44, 8 * N * 2)
    srd(S_Z, 46, 8 * N * 2)
    srd(S_Q, 42, K * N * 4)
    srd(S_X, 40, M * K * 2)
    for g_ in SH(0, 0): issue(g_)
    xoff_setup()
    e(f"v_lshrrev_b32 v{T+8}, 3, v{T+1}")
    e("s_lshl_b32 s24, s2, 3")
    e(f"v_add_u32 v{T+8}, s24, v{T+8}")
    e(f"v_lshlrev_b32 v{T+8}, 11, v{T+8}")
    e(f"v_and_b32 v{T+9}, 7, v{T+1}")
    e(f"v_lshl_add_u32 v{T+8}, v{T+9}, 4, v{T+8}")
    e(f"v_lshl_add_u32 v{T+15}, v{T+2}, 7, v{T+8}")
    def xpf(st):
        return [[f"s_mov_b32 s24, {st*128}",
                 (f"buffer_load_dwordx4 v[{V_DUM}:{V_DUM+3}], v{T+15}, s[{S_X}:{S_X+3}], s24 offen", "pf")]]
    stamp2(e)
    srd(S_O, 48, M * N * 2)
    srd(S_WS, 52, WS_BYTES)
    qoff_wr_setup()
    wr_setup()
    for pc in range(4):
        e(f"v_add_u32 v{T+11}, {pc*64}, v{T+1}")
        e(f"v_lshlrev_b32 v{V_GW+pc}, 4, v{T+11}")
        e(f"v_add_u32 v{T+13}, {WBUF-1792}, v{V_GW+pc}")
        e(f"v_cmp_le_u32 vcc, 112, v{T+11}")
        e("s_nop 1")
        e(f"v_cndmask_b32 v{V_GW+pc}, v{V_GW+pc}, v{T+13}, vcc")
    e(f"v_lshlrev_b32 v{V_L16}, 4, v{T+1}")
    e(f"s_mul_i32 s{S_IMGB}, s{S_NT}, {16*WBUF}")
    e(f"s_mul_i32 s24, s{S_MT}, 1792")
    e(f"s_add_u32 s{S_SHW}, s{S_IMGB}, s24")
    e(f"s_mul_i32 s24, s{S_W}, {2*WBUF}")
    e(f"s_add_u32 s{S_SHW}, s{S_SHW}, s24")
    e(f"s_add_u32 s{S_SHW}, s{S_SHW}, {H*WBUF}")
    e(f"s_mul_i32 s24, s{S_W}, 3584")
    e(f"s_add_u32 s{S_IMGB}, s{S_IMGB}, s24")
    e(f"s_add_u32 s{S_WM0}, s24, {LDS_W}")
    e(f"v_add_u32 v{T+14}, s{S_WM0}, v{V_L16}")
    e(f"s_lshl_b32 s24, s{S_NT}, 3")
    e(f"s_add_u32 s25, s24, s{S_MT}")
    e(f"s_lshl_b32 s25, s25, 3")
    e(f"s_add_u32 s25, s25, s{S_W}")
    e(f"s_lshl_b32 s25, s25, 7")
    e(f"s_add_u32 s{S_FLG}, s25, {WS_FLAG}")
    e(f"v_and_b32 v{T+8}, 1, v{T+1}")
    e(f"v_lshl_add_u32 v{T+8}, v{T+2}, 1, v{T+8}")
    e(f"v_add_u32 v{T+8}, s24, v{T+8}")
    e(f"v_lshrrev_b32 v{T+9}, 1, v{T+1}")
    e(f"v_min_u32 v{T+9}, {NPAIR-1}, v{T+9}")
    e(f"v_lshl_add_u32 v{T+8}, v{T+8}, 3, v{T+9}")
    e(f"v_lshlrev_b32 v{T+8}, 7, v{T+8}")
    e(f"v_add_u32 v{V_FADDR}, {WS_FLAG}, v{T+8}")
    e(f"v_mov_b32 v{V_Z}, 0")
    e(f"s_mov_b32 s{S_READY}, 0")
    e(f"s_mov_b32 s{S_FBK}, 0")
    uid = [0]
    def share_out(rnd, slot):
        e("s_waitcnt lgkmcnt(0)")
        for pc in range(4):
            e(f"ds_read_b128 v[{V_P+4*pc}:{V_P+4*pc+3}], v{T+14} offset:{slot*WBUF+pc*1024}")
        e(f"s_add_u32 s27, s{S_SHW}, {rnd*8*WBUF}")
        for pc in range(4):
            e(f"s_waitcnt lgkmcnt({3-pc})")
            if pc == 3: e("s_mov_b32 exec_hi, 0")
            issue([(f"buffer_store_dwordx4 v[{V_P+4*pc}:{V_P+4*pc+3}], v{V_GW+pc}, s[{S_WS}:{S_WS+3}], s27 offen sc1", f"st{rnd}")])
            if pc == 3: e("s_mov_b32 exec_hi, -1")
    def has_round(rnd):
        return max(0, min(4, NPAIR - 4 * rnd))
    def publish(rnd):
        nw = has_round(rnd)
        e(f"s_waitcnt vmcnt({need(f'st{rnd}')})")
        e(f"s_add_u32 s27, s{S_FLG}, {rnd*4*128}")
        if nw < 4:
            e(f"s_cmp_lt_u32 s{S_W}, {nw}")
            e(f"s_cselect_b32 s27, s27, 0x40000000")
        if FORCEFB:
            e(f"s_cmp_eq_u32 s{S_MT}, {FORCEFB-1}")
            e(f"s_cselect_b32 s27, 0x40000000, s27")
        e("s_mov_b64 exec, 1")
        issue([(f"buffer_store_dword v{V_NONCE}, v{V_Z}, s[{S_WS}:{S_WS+3}], s27 offen sc1", "fl")])
        e("s_mov_b64 exec, -1")
    def Wd(st):
        if st >= 16: return
        j = (st - H) // 2
        mask = 3 << (2 * j)
        uid[0] += 1
        u = uid[0]
        e(f"s_and_b32 s24, s{S_READY}, {mask}")
        e(f"s_cmp_eq_u32 s24, {mask}")
        e(f"s_cbranch_scc1 L_rdy{u}")
        e(f"s_cmp_eq_u32 s{S_NON}, 0")
        e(f"s_cbranch_scc1 L_fb{u}")
        e(f"s_mov_b32 s{S_CNT}, s{S_FBK}")
        e.label(f"L_poll{u}")
        e(f"buffer_load_dword v{V_FLAG}, v{V_FADDR}, s[{S_WS}:{S_WS+3}], 0 offen sc1")
        e("s_waitcnt vmcnt(0)")
        e(f"v_cmp_eq_u32 vcc, v{V_FLAG}, v{V_NONCE}")
        e(f"s_mov_b32 s{S_READY}, vcc_lo")
        e(f"s_and_b32 s24, s{S_READY}, {mask}")
        e(f"s_cmp_eq_u32 s24, {mask}")
        e(f"s_cbranch_scc1 L_rdy{u}")
        e("s_sleep 2")
        e(f"s_add_u32 s{S_CNT}, s{S_CNT}, 1")
        e(f"s_cmp_lt_u32 s{S_CNT}, {SPIN}")
        e(f"s_cbranch_scc1 L_poll{u}")
        e.label(f"L_fb{u}")
        e(f"s_mov_b32 s{S_FBK}, {SPIN}")
        e(f"s_mov_b32 s{S_FBQ}, {st*BK*QROW}")
        e(f"s_mov_b32 s{S_FBL}, {(st%WR)*WBUF}")
        e(f"s_mov_b32 s{S_FBG}, {(st//2)*N*2}")
        e(f"s_call_b64 s[{S_RET}:{S_RET+1}], L_fallback")
        e(f"s_branch L_done{u}")
        e.label(f"L_rdy{u}")
        e(f"s_add_u32 s27, s{S_IMGB}, {st*WBUF}")
        e(f"s_add_u32 m0, s{S_WM0}, {(st%WR)*WBUF}")
        e("s_nop 0")
        for pce in range(3):
            e(f"buffer_load_dwordx4 v{V_L16}, s[{S_WS}:{S_WS+3}], s27 offen offset:{pce*1024} sc1 lds")
        e("s_mov_b32 exec_hi, 0")
        e(f"buffer_load_dwordx4 v{V_L16}, s[{S_WS}:{S_WS+3}], s27 offen offset:3072 sc1 lds")
        e("s_mov_b32 exec_hi, -1")
        e.label(f"L_done{u}")
        for _ in range(4): vm.append(f"w{st}")

    e("s_waitcnt vmcnt(0)")
    stamp2(e)
    work(dq_lds(0, 3), [])
    stamp2(e)
    share_out(0, 3)
    issue([(f"buffer_load_dword v{V_NONCE}, v{V_NADDR}, s[{S_DBG}:{S_DBG+3}], 0 offen sc1", "nl")])
    stamp2(e)
    for g_ in SH(1, 1) + (sum([xpf(4*i) for i in range(XP0, 4)], []) if XP0 else (xpf(3) + xpf(7) + xpf(11) + xpf(15))) + X(2): issue(g_)
    stamp(e)
    e("s_barrier")
    stamp(e)
    e(f"s_waitcnt vmcnt({need('nl')})")
    e(f"v_readfirstlane_b32 s{S_NON}, v{V_NONCE}")
    e(f"s_cmp_lg_u32 s{S_NON}, 0")
    e("s_cbranch_scc1 L_n_got")
    e(f"s_mov_b32 s{S_CNT}, 0")
    e.label("L_n_poll")
    e(f"buffer_load_dword v{V_NONCE}, v{V_NADDR}, s[{S_DBG}:{S_DBG+3}], 0 offen sc1")
    e("s_waitcnt vmcnt(0)")
    e(f"v_readfirstlane_b32 s{S_NON}, v{V_NONCE}")
    e(f"s_cmp_lg_u32 s{S_NON}, 0")
    e("s_cbranch_scc1 L_n_got")
    e("s_sleep 2")
    e(f"s_add_u32 s{S_CNT}, s{S_CNT}, 1")
    e(f"s_cmp_lt_u32 s{S_CNT}, {SPIN}")
    e("s_cbranch_scc1 L_n_poll")
    e.label("L_n_got")
    publish(0)
    stamp(e)
    e("s_barrier")
    for g_ in X(3): issue(g_)
    e(f"s_waitcnt vmcnt({need('sh1')})")
    work(dq_lds(1, 0), [])
    Wd(2); Wd(3)
    share_out(1, 0)
    stamp(e)
    e(f"s_waitcnt vmcnt({min(need('x2'), need('w2'))})")
    e("s_barrier")
    publish(1)
    e(f"s_mov_b32 s{S_ST}, 4")
    e(f"s_mov_b32 s{S_XO}, {(4 % XR) * XBUF}")
    e(f"s_mov_b32 s{S_WO}, {(4 % WR) * WBUF}")
    e(f"s_mov_b32 s{S_XKQ}, {4*128}")
    e(f"s_add_u32 s{S_WSRC}, s{S_IMGB}, {4*WBUF}")
    e.label("L_ploop")
    e(f"s_sub_u32 s24, s{S_ST}, {H}")
    e(f"s_and_b32 s24, s24, 0xfe")
    e(f"s_lshl_b32 s{S_MASK}, 3, s24")
    e(f"s_and_b32 s24, s{S_READY}, s{S_MASK}")
    e(f"s_cmp_eq_u32 s24, s{S_MASK}")
    e("s_cbranch_scc1 L_rdyL")
    e(f"s_cmp_eq_u32 s{S_NON}, 0")
    e("s_cbranch_scc1 L_fbL")
    e(f"s_mov_b32 s{S_CNT}, s{S_FBK}")
    e.label("L_pollL")
    e(f"buffer_load_dword v{V_FLAG}, v{V_FADDR}, s[{S_WS}:{S_WS+3}], 0 offen sc1")
    e("s_waitcnt vmcnt(0)")
    e(f"v_cmp_eq_u32 vcc, v{V_FLAG}, v{V_NONCE}")
    e(f"s_mov_b32 s{S_READY}, vcc_lo")
    e(f"s_and_b32 s24, s{S_READY}, s{S_MASK}")
    e(f"s_cmp_eq_u32 s24, s{S_MASK}")
    e("s_cbranch_scc1 L_rdyL")
    e("s_sleep 2")
    e(f"s_add_u32 s{S_CNT}, s{S_CNT}, 1")
    e(f"s_cmp_lt_u32 s{S_CNT}, {SPIN}")
    e("s_cbranch_scc1 L_pollL")
    e.label("L_fbL")
    e(f"s_mov_b32 s{S_FBK}, {SPIN}")
    e(f"s_mul_i32 s{S_FBQ}, s{S_ST}, {BK*QROW}")
    e(f"s_mov_b32 s{S_FBL}, s{S_WO}")
    e(f"s_lshr_b32 s24, s{S_ST}, 1")
    e(f"s_mul_i32 s{S_FBG}, s24, {N*2}")
    e(f"s_call_b64 s[{S_RET}:{S_RET+1}], L_fallback")
    e("s_branch L_doneL")
    e.label("L_rdyL")
    e(f"s_add_u32 m0, s{S_WM0}, s{S_WO}")
    e("s_nop 0")
    for pce in range(3):
        e(f"buffer_load_dwordx4 v{V_L16}, s[{S_WS}:{S_WS+3}], s{S_WSRC} offen offset:{pce*1024} sc1 lds")
    e("s_mov_b32 exec_hi, 0")
    e(f"buffer_load_dwordx4 v{V_L16}, s[{S_WS}:{S_WS+3}], s{S_WSRC} offen offset:3072 sc1 lds")
    e("s_mov_b32 exec_hi, -1")
    e.label("L_doneL")
    e(f"s_add_u32 s24, s{S_M0B}, s{S_XO}")
    for a in range(8):
        if a % 4 == 0:
            e(f"s_add_u32 m0, s24, {(a//4)*4096}")
            e("s_nop 0")
        e(f"buffer_load_dwordx4 v{V_XOFF+a}, s[{S_X}:{S_X+3}], s{S_XKQ} offen offset:{(a%4)*1024} lds")
    e(f"s_add_u32 s{S_XO}, s{S_XO}, {XBUF}")
    e(f"s_cmp_eq_u32 s{S_XO}, {XR*XBUF}")
    e(f"s_cselect_b32 s{S_XO}, 0, s{S_XO}")
    e(f"s_add_u32 s{S_WO}, s{S_WO}, {WBUF}")
    e(f"s_cmp_eq_u32 s{S_WO}, {WR*WBUF}")
    e(f"s_cselect_b32 s{S_WO}, 0, s{S_WO}")
    e(f"s_add_u32 s{S_XKQ}, s{S_XKQ}, 128")
    e(f"s_add_u32 s{S_WSRC}, s{S_WSRC}, {WBUF}")
    stamp(e)
    e(f"s_add_u32 s{S_ST}, s{S_ST}, 1")
    e(f"s_cmp_lt_u32 s{S_ST}, 16")
    e("s_waitcnt vmcnt(12)")
    e("s_barrier")
    e("s_cbranch_scc1 L_ploop")
    stamp(e)
    e("s_waitcnt vmcnt(0)")
    e("s_barrier")
    stamp(e)
    e("v_and_b32 v10, 63, v0")
    e("v_mul_u32_u24 v11, 0x1250, v10")
    e("v_lshrrev_b32 v11, 16, v11")
    e("v_mul_u32_u24 v12, 14, v11")
    e("v_sub_u32 v12, v10, v12")
    e("v_and_b32 v13, 3, v1")
    e("v_lshl_add_u32 v13, v13, 6, v11")
    e(f"s_mov_b32 s27, {ESTRIDE}")
    e("v_mul_lo_u32 v14, v13, s27")
    e("v_lshl_add_u32 v14, v12, 4, v14")
    e(f"v_add_u32 v14, {EBASE}, v14")
    e(f"v_add_u32 v13, s{S_M0}, v13")
    e(f"s_mov_b32 s27, {OROW}")
    e("v_mul_lo_u32 v13, v13, s27")
    e(f"s_lshl_b32 s28, s{S_N0}, 1")
    e("v_lshl_add_u32 v13, v12, 4, v13")
    e("v_add_u32 v13, s28, v13")
    e("v_cmp_gt_u32 vcc, 56, v10")
    e("s_and_b64 exec, exec, vcc")
    for m in range(4):
        e("s_barrier")
        for i in range(4):
            b = 128 + m * 16 + i * 4
            e(f"ds_read_b128 v[{b}:{b+3}], v14 offset:{(m*16+i*4)*ESTRIDE}")
        for i in range(4):
            b = 128 + m * 16 + i * 4
            e(f"s_mov_b32 s24, {(m*16+i*4)*OROW}")
            e(f"s_waitcnt lgkmcnt({3-i})")
            e(f"buffer_store_dwordx4 v[{b}:{b+3}], v13, s[{S_O}:{S_O+3}], s24 offen")
    e("s_mov_b64 exec, -1")
    e("s_branch L_fin")

    e.label("L_fallback")
    r0 = raw(FB_STAGE)
    e(f"buffer_load_dwordx2 v[{r0}:{r0+1}], v{V_SCO}, s[{S_SC}:{S_SC+3}], s{S_FBG} offen")
    e(f"buffer_load_dwordx2 v[{r0+2}:{r0+3}], v{V_SCO}, s[{S_Z}:{S_Z+3}], s{S_FBG} offen")
    for i in range(8):
        r = qreg(FB_STAGE, i, 0)
        e(f"buffer_load_dwordx4 v[{r}:{r+3}], v{V_QOFF+i}, s[{S_Q}:{S_Q+3}], s{S_FBQ} offen")
    for c in range(4):
        e(f"v_add_u32 v{T+8+c}, s{S_FBL}, v{V_WR+c}")
    e("s_waitcnt vmcnt(0)")
    for op in dequant_ops(FB_STAGE):
        if isinstance(op, tuple):
            e(f"ds_write_b128 v{T+8+op[1]}, v[{V_P+4*op[1]}:{V_P+4*op[1]+3}]")
        else:
            e(op)
    e("s_waitcnt lgkmcnt(0)")
    e(f"s_setpc_b64 s[{S_RET}:{S_RET+1}]")

    e.label("L_fin")
    if STAMP:
        stamp(e)
        e("s_waitcnt vmcnt(0)")
        stamp(e)
        stamp(e, True)
        e("s_mov_b32 s64, s52")
        e("s_and_b32 s65, s53, 0xffff")
        e("s_mov_b32 s66, 0x10000000")
        e("s_mov_b32 s67, 0x00020000")
        e("v_lshlrev_b32 v1, 2, v0")
        e("s_lshl_b32 s24, s2, 11")
        e(f"s_add_u32 s24, s24, {WS_STAMP}")
        e(f"buffer_store_dword v{C_ST}, v1, s[64:67], s24 offen")
    e.label("L_end")
    e("s_endpgm")

    out += e.lines
    out.append('.section .rodata,"a"')
    out.append(".p2align 6")
    out.append(".amdhsa_kernel standalone__w4a16_gemm_dequant__prompt_kernel")
    out.append("  .amdhsa_next_free_vgpr 256")
    out.append("  .amdhsa_next_free_sgpr 102")
    out.append("  .amdhsa_accum_offset 256")
    out.append("  .amdhsa_group_segment_fixed_size 0")
    out.append("  .amdhsa_kernarg_size 56")
    out.append("  .amdhsa_user_sgpr_count 2")
    out.append("  .amdhsa_user_sgpr_kernarg_segment_ptr 1")
    out.append("  .amdhsa_system_sgpr_workgroup_id_x 1")
    out.append("  .amdhsa_float_denorm_mode_32 3")
    out.append("  .amdhsa_float_denorm_mode_16_64 3")
    out.append(".end_amdhsa_kernel")
    return "\n".join(out) + "\n"


if __name__ == "__main__":
    dst = sys.argv[1] if len(sys.argv) > 1 else "standalone__w4a16_gemm_dequant__prompt.s"
    open(dst, "w").write(gen())
    print("wrote", dst)
```

```python
import sys, os
STAMP = bool(os.environ.get('STAMP'))
S2 = bool(os.environ.get('STAMP2'))
PRIO = int(os.environ.get('PRIO', '3'))
SPIN = int(os.environ.get('SPIN', '64'))
FORCEFB = int(os.environ.get('FORCEFB', '0'))
NONON = int(os.environ.get('NONON', '0'))
XPF = int(os.environ.get('XPF', '1'))
CPF = int(os.environ.get('CPF', '6'))
XMAP = int(os.environ.get('XMAP', '0'))
XPOS = int(os.environ.get('XPOS', '1'))
XPE = int(os.environ.get('XPE', '0'))
SO_AT = int(os.environ.get('SO_AT', '2'))
PRE2 = int(os.environ.get('PRE2', '1'))
SHNT = ' nt' if int(os.environ.get('SHNT', '1')) else ''

M, N, K = 2048, 3584, 1024
BM, BN, BK = 256, 112, 64
QROW = N * 4
XROW = K * 2
OROW = N * 2
XBUF = BM * BK * 2
WBUF = BN * BK * 2
XR, WR = 3, 4
LDS_W = XR * XBUF
LDS_TOTAL = LDS_W + WR * WBUF
ESTRIDE = 240
EBASE = 32768
WS_FLAG = 8 << 20
WS_BYTES = WS_FLAG + 32 * 16 * 4 * 128
WS_STAMP = 16 << 20

C_RDW = 2
C_RDX = 4
C_ST = 8
C_CUR = 9
ACC = 16
def acc(t, m):
    b = ACC + (t * 4 + m) * 4
    return f"v[{b}:{b+3}]"
def acc1(t, m, r): return ACC + (t * 4 + m) * 4 + r
C_WF = 128
C_XF = 184
C_E = 220
def wf(s, t): b = C_WF + s * 28 + t * 4; return f"v[{b}:{b+3}]"
def xf(s, m): b = C_XF + s * 16 + m * 4; return f"v[{b}:{b+3}]"
V_XOFF = 16
V_QOFF = 24
V_S = 32
V_P = 40
V_WR = 60
V_T = 76
V_SCO = 92
V_RAW = 96
V_Q = 100
V_DUM = 244
V_L16, V_FADDR, V_NONCE, V_FLAG, V_Z, V_NADDR = 236, 237, 238, 239, 240, 241
def qreg(i, c): return V_Q + i * 4 + c

S_X, S_Q, S_O, S_SC, S_Z, S_WS, S_DBG = 4, 8, 12, 16, 20, 64, 84
S_C24, S_M0B = 34, 38
S_M0, S_N0, S_W, S_MT, S_NT, S_W8 = 35, 36, 37, 39, 33, 31
S_READY, S_FBK, S_IMGB, S_WM0, S_FLG = 68, 69, 70, 71, 74
S_RET = 76
S_FBQ, S_FBL, S_FBG = 78, 79, 80
S_CNT, S_NON = 81, 82
S_XO, S_WO, S_IT, S_G, S_G0 = 94, 95, 96, 97, 98


class Emit:
    def __init__(self): self.lines = []
    def __call__(self, s): self.lines.append("    " + s)
    def label(self, s): self.lines.append(s + ":")

def stamp(e, real=False):
    if not STAMP: return
    e("s_memrealtime s[60:61]" if real else "s_memtime s[60:61]")
    e("s_waitcnt lgkmcnt(0)")
    e("s_mov_b32 m0, s58")
    e("s_nop 0")
    e(f"v_writelane_b32 v{C_ST}, s60, m0")
    e("s_add_u32 s58, s58, 1")
def stamp2(e):
    if S2: stamp(e)

def dequant_ops():
    ops = []
    r0 = V_RAW
    ops.append(f"v_lshlrev_b32 v{V_S}, 16, v{r0}")
    ops.append(f"v_and_b32 v{V_S+1}, 0xffff0000, v{r0}")
    ops.append(f"v_lshlrev_b32 v{V_S+2}, 16, v{r0+1}")
    ops.append(f"v_and_b32 v{V_S+3}, 0xffff0000, v{r0+1}")
    ops.append(f"v_lshlrev_b32 v{V_S+4}, 16, v{r0+2}")
    ops.append(f"v_and_b32 v{V_S+5}, 0xffff0000, v{r0+2}")
    ops.append(f"v_lshlrev_b32 v{V_S+6}, 16, v{r0+3}")
    ops.append(f"v_and_b32 v{V_S+7}, 0xffff0000, v{r0+3}")
    for c in range(4):
        for i in range(8):
            r = qreg(i, c)
            ops.append(f"v_fma_mix_f32 v{r}, v{r}, s{S_C24}, -v{V_S+4+c} op_sel_hi:[1,0,0]")
        for j in range(4):
            ops.append(f"v_cvt_pk_bf16_f32 v{V_P+4*c+j}, v{qreg(2*j,c)}, v{qreg(2*j+1,c)}")
        for j in range(4):
            ops.append(f"v_lshlrev_b32 v{qreg(2*j,c)}, 16, v{V_P+4*c+j}")
            ops.append(f"v_and_b32 v{qreg(2*j+1,c)}, 0xffff0000, v{V_P+4*c+j}")
        for i in range(8):
            r = qreg(i, c)
            ops.append(f"v_mul_f32 v{r}, v{r}, v{V_S+c}")
        for j in range(4):
            ops.append(f"v_cvt_pk_bf16_f32 v{V_P+4*c+j}, v{qreg(2*j,c)}, v{qreg(2*j+1,c)}")
        ops.append(f"ds_write_b128 v{V_T+8+c}, v[{V_P+4*c}:{V_P+4*c+3}]")
    return ops


def gen():
    e = Emit()
    hdr = open("standalone__w4a16_gemm_dequant__prompt.s.ref").read().split("\n")
    out = []
    for l in hdr:
        if l.startswith("; @launch"):
            out.append(f"; @launch grid=(256,1,1) block=(512,1,1) lds={LDS_TOTAL}")
            break
        out.append(l)
    out.append('.amdgcn_target "amdgcn-amd-amdhsa--gfx950"')
    out.append(".text")
    out.append(".globl standalone__w4a16_gemm_dequant__prompt_kernel")
    out.append(".p2align 8")
    out.append(".type standalone__w4a16_gemm_dequant__prompt_kernel,@function")
    out.append("standalone__w4a16_gemm_dequant__prompt_kernel:")

    def srd(d, lo, nbytes):
        e(f"s_mov_b32 s{d}, s{lo}")
        e(f"s_and_b32 s{d+1}, s{lo+1}, 0xffff")
        e(f"s_mov_b32 s{d+2}, {nbytes}")
        e(f"s_mov_b32 s{d+3}, 0x00020000")
    T = V_T
    def xdma(kreg, slot_off):
        e(f"s_add_u32 s24, s{S_M0B}, {slot_off}")
        for a in range(8):
            if a % 4 == 0:
                e(f"s_add_u32 m0, s24, {(a//4)*4096}")
                e("s_nop 0")
            e(f"buffer_load_dwordx4 v{V_XOFF+a}, s[{S_X}:{S_X+3}], s{kreg} offen offset:{(a%4)*1024} lds")

    e("s_cmp_ge_u32 s2, 256")
    e("s_cbranch_scc1 L_end")
    e("s_load_dwordx8 s[40:47], s[0:1], 0")
    e("s_load_dwordx4 s[48:51], s[0:1], 32")
    e("s_load_dwordx2 s[52:53], s[0:1], 48")
    if CPF:
        e("s_getpc_b64 s[90:91]")
        e("v_lshlrev_b32 v4, 7, v0")
        e("v_mov_b32 v3, s91")
        e("v_add_co_u32 v2, vcc, s90, v4")
        e("s_nop 1")
        e("v_addc_co_u32 v3, vcc, 0, v3, vcc")
        e(f"v_cmp_gt_u32 vcc, {CPF*1024}, v4")
        e("s_and_saveexec_b64 s[92:93], vcc")
        e("s_cbranch_execz L_nocpf")
        e("global_load_dword v255, v[2:3], off")
        e.label("L_nocpf")
        e("s_mov_b64 exec, s[92:93]")
    e("s_memrealtime s[54:55]")
    if STAMP:
        e("s_mov_b32 s58, 0")
        e(f"v_mov_b32 v{C_ST}, 0")
        stamp(e, True); stamp(e)
    e("s_and_b32 s24, s2, 7")
    e("s_lshr_b32 s25, s2, 3")
    e("s_and_b32 s26, s25, 3")
    e("s_lshl_b32 s24, s24, 2")
    e(f"s_add_u32 s{S_NT}, s24, s26")
    e(f"s_lshr_b32 s{S_MT}, s25, 2")
    if XMAP == 1:
        e(f"s_and_b32 s{S_MT}, s2, 7")
        e(f"s_lshr_b32 s{S_NT}, s2, 3")
    e(f"s_mul_i32 s{S_N0}, s{S_NT}, {BN}")
    e(f"s_lshl_b32 s{S_M0}, s{S_MT}, 8")
    e("v_lshrrev_b32 v1, 6, v0")
    e("v_and_b32 v10, 255, v0")
    e(f"v_readfirstlane_b32 s{S_W8}, v1")
    e("v_lshrrev_b32 v11, 5, v10")
    e("v_and_b32 v12, 31, v10")
    e("v_min_u32 v12, 27, v12")
    e(f"s_lshl_b32 s28, s{S_N0}, 2")
    e("v_lshl_add_u32 v14, v12, 4, s28")
    e(f"v_lshrrev_b32 v{V_SCO}, 1, v14")
    e(f"s_mov_b32 s27, {8*QROW}")
    e(f"v_mul_lo_u32 v13, v11, s27")
    e(f"v_add_u32 v{V_QOFF}, v14, v13")
    for i in range(1, 8):
        e(f"v_add_u32 v{V_QOFF+i}, {i*QROW}, v{V_QOFF}")
    e(f"s_mov_b32 s{S_C24}, 0x4b800000")
    e(f"s_and_b32 s{S_W}, s{S_W8}, 3")
    e(f"s_lshr_b32 s26, s{S_W8}, 2")
    e(f"s_lshl_b32 s{S_G}, s{S_MT}, 1")
    e(f"s_add_u32 s25, s{S_G}, s26")
    e(f"s_mul_i32 s{S_FBQ}, s25, {BK*QROW}")
    e(f"s_mul_i32 s{S_FBL}, s26, {WBUF}")
    e(f"s_mul_i32 s{S_FBG}, s{S_MT}, {N*2}")
    e(f"s_lshl_b32 s24, s{S_NT}, 4")
    e(f"s_add_u32 s24, s24, s25")
    e(f"s_mul_i32 s30, s24, {WBUF}")
    e(f"s_lshl_b32 s24, s24, 2")
    e(f"s_add_u32 s24, s24, s{S_W}")
    e(f"s_lshl_b32 s24, s24, 7")
    e(f"s_add_u32 s{S_FLG}, s24, {WS_FLAG}")
    if FORCEFB:
        e(f"s_cmp_eq_u32 s{S_MT}, {FORCEFB-1}")
        e(f"s_cselect_b32 s{S_FLG}, 0x40000000, s{S_FLG}")
    e(f"s_lshl_b32 s24, s{S_NT}, 2")
    e(f"v_mov_b32 v{V_NADDR}, s24")
    e(f"s_or_b32 s25, s{S_W8}, s{S_MT}")
    e(f"s_cmp_eq_u32 s25, 0")
    e("s_cselect_b32 s24, s24, 0x1000")
    if NONON: e("s_mov_b32 s24, 0x1000")
    e(f"v_mov_b32 v{T+6}, s24")
    e("s_waitcnt lgkmcnt(0)")
    stamp2(e)
    srd(S_SC, 44, 8 * N * 2)
    srd(S_Z, 46, 8 * N * 2)
    srd(S_Q, 42, K * N * 4)
    e(f"buffer_load_dwordx2 v[{V_RAW}:{V_RAW+1}], v{V_SCO}, s[{S_SC}:{S_SC+3}], s{S_FBG} offen")
    e(f"buffer_load_dwordx2 v[{V_RAW+2}:{V_RAW+3}], v{V_SCO}, s[{S_Z}:{S_Z+3}], s{S_FBG} offen")
    for i in range(8):
        r = qreg(i, 0)
        e(f"buffer_load_dwordx4 v[{r}:{r+3}], v{V_QOFF+i}, s[{S_Q}:{S_Q+3}], s{S_FBQ} offen{SHNT}")
    srd(S_DBG, 50, 256)
    e("s_or_b32 s54, s54, 1")
    e(f"v_mov_b32 v{T+7}, s54")
    e("s_mov_b64 exec, 1")
    e(f"buffer_store_dword v{T+7}, v{T+6}, s[{S_DBG}:{S_DBG+3}], 0 offen sc1")
    e("s_mov_b64 exec, -1")
    srd(S_X, 40, M * K * 2)
    srd(S_O, 48, M * N * 2)
    srd(S_WS, 52, WS_BYTES)
    e(f"v_and_b32 v{T+1}, 63, v0")
    e(f"v_bfe_u32 v{T+3}, v0, 4, 2")
    e(f"v_and_b32 v{T+2}, 3, v1")
    e(f"v_lshrrev_b32 v{T+8}, 3, v{T+1}")
    e(f"v_lshl_add_u32 v{T+8}, v{T+2}, 6, v{T+8}")
    e(f"v_add_u32 v{T+8}, s{S_M0}, v{T+8}")
    e(f"v_lshlrev_b32 v{T+8}, 11, v{T+8}")
    e(f"v_and_b32 v{T+9}, 7, v{T+1}")
    e(f"v_xor_b32 v{T+9}, v{T+9}, v{T+3}")
    e(f"v_xor_b32 v{T+10}, 4, v{T+9}")
    e(f"v_lshl_add_u32 v{T+9}, v{T+9}, 4, v{T+8}")
    e(f"v_lshl_add_u32 v{T+10}, v{T+10}, 4, v{T+8}")
    for a in range(8):
        e(f"v_add_u32 v{V_XOFF+a}, {a*8*XROW - (a%4)*1024}, v{T+9+(a&1)}")
    e(f"s_lshl_b32 s{S_M0B}, s{S_W}, 13")
    e(f"s_lshr_b32 s26, s{S_W8}, 2")
    e(f"s_add_u32 s29, s{S_G}, s26")
    e(f"s_lshl_b32 s29, s29, 7")
    e(f"s_lshl_b32 s28, s26, 15")
    if XPOS == 0: xdma(29, "s28")
    if XPE:
        e(f"v_lshrrev_b32 v{T+15}, 3, v{T+1}")
        e(f"s_lshl_b32 s24, s{S_NT}, 3")
        e(f"s_add_u32 s24, s24, s{S_M0}")
        e(f"v_add_u32 v{T+15}, s24, v{T+15}")
        e(f"v_lshlrev_b32 v{T+15}, 11, v{T+15}")
        e(f"v_and_b32 v{T+13}, 7, v{T+1}")
        e(f"v_lshl_add_u32 v{T+15}, v{T+13}, 4, v{T+15}")
        e(f"s_add_u32 s24, s{S_G}, s{S_W8}")
        e(f"s_and_b32 s24, s24, 15")
        e(f"s_lshl_b32 s24, s24, 7")
        e(f"buffer_load_dwordx4 v[{V_DUM}:{V_DUM+3}], v{T+15}, s[{S_X}:{S_X+3}], s24 offen")
        e(f"s_xor_b32 s24, s24, 1024")
        e(f"buffer_load_dwordx4 v[{V_DUM}:{V_DUM+3}], v{T+15}, s[{S_X}:{S_X+3}], s24 offen")
    e(f"v_lshrrev_b32 v{T+8}, 2, v12")
    e(f"v_and_b32 v{T+9}, 3, v12")
    e(f"v_and_b32 v{T+10}, 1, v{T+8}")
    e(f"v_lshlrev_b32 v{T+10}, 1, v{T+10}")
    e(f"v_lshrrev_b32 v{T+11}, 1, v{T+9}")
    e(f"v_add_u32 v{T+10}, v{T+10}, v{T+11}")
    e(f"v_lshlrev_b32 v{T+8}, 8, v{T+8}")
    e(f"v_lshl_add_u32 v{T+8}, v{T+9}, 6, v{T+8}")
    e(f"v_mul_u32_u24 v{T+12}, 1792, v11")
    e(f"v_add_u32 v{T+12}, v{T+12}, v{T+8}")
    e(f"v_add_u32 v{T+12}, {LDS_W}, v{T+12}")
    for c in range(4):
        e(f"v_xor_b32 v{T+11}, {c}, v{T+10}")
        e(f"v_lshl_add_u32 v{V_WR+c}, v{T+11}, 4, v{T+12}")
    e(f"v_lshlrev_b32 v{V_L16}, 4, v{T+1}")
    e(f"s_mul_i32 s24, s{S_W}, 3584")
    e(f"s_add_u32 s30, s30, s24")
    e(f"s_mul_i32 s{S_IMGB}, s{S_NT}, {16*WBUF}")
    e(f"s_add_u32 s{S_IMGB}, s{S_IMGB}, s24")
    e(f"s_add_u32 s{S_WM0}, s24, {LDS_W}")
    e(f"s_add_u32 s24, s{S_WM0}, s{S_FBL}")
    e(f"v_add_u32 v{T+14}, s24, v{V_L16}")
    e(f"v_mov_b32 v{V_Z}, 0")
    stamp2(e)
    e(f"s_waitcnt vmcnt({(9 if XPOS == 0 else 1) + (2 if XPE else 0)})")
    stamp2(e)
    e(f"s_call_b64 s[{S_RET}:{S_RET+1}], L_dq")
    stamp2(e)
    def share_out():
        for pc in range(4):
            e(f"ds_read_b128 v[{V_P+4*pc}:{V_P+4*pc+3}], v{T+14} offset:{pc*1024}")
        for pc in range(4):
            e(f"s_waitcnt lgkmcnt({3-pc})")
            if pc == 3: e("s_mov_b32 exec_hi, 0")
            e(f"buffer_store_dwordx4 v[{V_P+4*pc}:{V_P+4*pc+3}], v{V_L16}, s[{S_WS}:{S_WS+3}], s30 offen offset:{pc*1024} sc1")
            if pc == 3: e("s_mov_b32 exec_hi, -1")
    e(f"s_cmp_ge_u32 s{S_W8}, 4")
    e("s_cbranch_scc1 L_prod")
    share_out()
    e(f"buffer_load_dword v{V_NONCE}, v{V_NADDR}, s[{S_DBG}:{S_DBG+3}], 0 offen sc1")
    xdma(29, "s28")
    stamp2(e)

    def publish(tagl, store=True):
        e(f"v_readfirstlane_b32 s{S_NON}, v{V_NONCE}")
        e(f"s_cmp_lg_u32 s{S_NON}, 0")
        e(f"s_cbranch_scc1 L_n_got{tagl}")
        e(f"s_mov_b32 s{S_CNT}, 0")
        e.label(f"L_n_poll{tagl}")
        e(f"buffer_load_dword v{V_NONCE}, v{V_NADDR}, s[{S_DBG}:{S_DBG+3}], 0 offen sc1")
        e("s_waitcnt vmcnt(0)")
        e(f"v_readfirstlane_b32 s{S_NON}, v{V_NONCE}")
        e(f"s_cmp_lg_u32 s{S_NON}, 0")
        e(f"s_cbranch_scc1 L_n_got{tagl}")
        e("s_sleep 2")
        e(f"s_add_u32 s{S_CNT}, s{S_CNT}, 1")
        e(f"s_cmp_lt_u32 s{S_CNT}, {SPIN}")
        e(f"s_cbranch_scc1 L_n_poll{tagl}")
        e.label(f"L_n_got{tagl}")
        if store: flag()
    def flag():
        e("s_mov_b64 exec, 1")
        e(f"buffer_store_dword v{V_NONCE}, v{V_Z}, s[{S_WS}:{S_WS+3}], s{S_FLG} offen sc1")
        e("s_mov_b64 exec, -1")

    e("v_and_b32 v14, 15, v0")
    e("v_bfe_u32 v15, v0, 4, 2")
    e("v_lshrrev_b32 v10, 3, v14")
    e("v_xor_b32 v10, v10, v14")
    e("v_mul_u32_u24 v11, 1792, v15")
    e(f"v_add_u32 v11, {LDS_W}, v11")
    e(f"v_lshl_add_u32 v{C_RDW}, v10, 4, v11")
    e("v_xor_b32 v10, 2, v10")
    e(f"v_lshl_add_u32 v{C_RDW+1}, v10, 4, v11")
    e("v_lshrrev_b32 v10, 1, v14")
    e("v_xor_b32 v10, v10, v15")
    e("v_lshlrev_b32 v11, 13, v1")
    e("v_lshl_add_u32 v11, v14, 7, v11")
    e(f"v_lshl_add_u32 v{C_RDX}, v10, 4, v11")
    e(f"v_xor_b32 v{C_RDX+1}, 64, v{C_RDX}")
    for i in range(0, 112, 2):
        if not (V_P <= ACC + i < V_P + 16): e(f"v_mov_b64 v[{ACC+i}:{ACC+i+1}], 0")
    for i in range(0, 28, 2):
        e(f"v_mov_b64 v[{C_WF+28+i}:{C_WF+28+i+1}], 0")
    for i in range(0, 16, 2):
        e(f"v_mov_b64 v[{C_XF+16+i}:{C_XF+16+i+1}], 0")
    e(f"s_mov_b32 s{S_XO}, 0")
    e(f"s_mov_b32 s{S_WO}, 0")
    e(f"s_mov_b32 s{S_IT}, 0")
    e(f"v_mov_b32 v{C_CUR}, v{C_RDX}")
    e(f"v_mov_b32 v{C_CUR+1}, v{C_RDX+1}")
    e(f"v_mov_b32 v{C_CUR+2}, v{C_RDW}")
    e(f"v_mov_b32 v{C_CUR+3}, v{C_RDW+1}")
    e("s_waitcnt vmcnt(8)")
    for i in range(0, 16, 2):
        e(f"v_mov_b64 v[{V_P+i}:{V_P+i+1}], 0")
    publish("c")
    e(f"s_setprio {PRIO}")
    e("s_waitcnt vmcnt(1)")
    stamp(e); stamp(e)
    def wread(s_set, t, s): return f"ds_read_b128 {wf(s_set,t)}, v{C_CUR+2+(t&1)} offset:{s*7168+t*256}"
    def xread(s_set, m, s): return f"ds_read_b128 {xf(s_set,m)}, v{C_CUR+s} offset:{m*2048}"
    def mfmas(s_set, ts):
        return [f"v_mfma_f32_16x16x32_bf16 {acc(t,m)}, {wf(s_set,t)}, {xf(s_set,m)}, {acc(t,m)}" for t in ts for m in range(4)]
    def interleave(mf, fill):
        j = 0
        for m_ in mf:
            e(m_)
            if j < len(fill):
                e(fill[j]); j += 1
        while j < len(fill):
            e(fill[j]); j += 1
    adv = [f"s_add_u32 s{S_XO}, s{S_XO}, {XBUF}", f"s_cmp_eq_u32 s{S_XO}, {XR*XBUF}", f"s_cselect_b32 s{S_XO}, 0, s{S_XO}",
           f"s_add_u32 s{S_WO}, s{S_WO}, {WBUF}", f"s_cmp_eq_u32 s{S_WO}, {WR*WBUF}", f"s_cselect_b32 s{S_WO}, 0, s{S_WO}"]
    e.label("L_cloop")
    e("s_barrier")
    fill = [xread(0, m, 0) for m in range(4)] + [wread(0, t, 0) for t in range(7)]
    for f in fill[:3]: e(f)
    interleave(mfmas(1, [4, 5, 6]), fill[3:])
    e("s_waitcnt lgkmcnt(0)")
    fill = [xread(1, m, 1) for m in range(4)] + [wread(1, t, 1) for t in range(7)]
    interleave(mfmas(0, range(7)), fill)
    e("s_waitcnt lgkmcnt(0)")
    mf = mfmas(1, [0, 1, 2, 3])
    interleave(mf[:-2], adv + [f"v_add_u32 v{C_CUR}, s{S_XO}, v{C_RDX}", f"v_add_u32 v{C_CUR+1}, s{S_XO}, v{C_RDX+1}",
                               f"v_add_u32 v{C_CUR+2}, s{S_WO}, v{C_RDW}", f"v_add_u32 v{C_CUR+3}, s{S_WO}, v{C_RDW+1}",
                               f"s_add_u32 s{S_IT}, s{S_IT}, 1"])
    stamp(e)
    e(f"s_cmp_lt_u32 s{S_IT}, 15")
    for m_ in mf[-2:]: e(m_)
    e("s_cbranch_scc1 L_cloop")
    e("s_barrier")
    fill = [xread(0, m, 0) for m in range(4)] + [wread(0, t, 0) for t in range(7)]
    for f in fill[:3]: e(f)
    interleave(mfmas(1, [4, 5, 6]), fill[3:])
    for f in [xread(1, m, 1) for m in range(4)] + [wread(1, t, 1) for t in range(7)]: e(f)
    e(f"s_mov_b32 s27, {ESTRIDE}")
    e("v_lshl_add_u32 v13, v1, 6, v14")
    e("v_mul_lo_u32 v13, v13, s27")
    e("v_lshl_add_u32 v13, v15, 3, v13")
    e(f"v_add_u32 v13, {EBASE}, v13")
    def mf_m(m):
        return [f"v_mfma_f32_16x16x32_bf16 {acc(t,m)}, {wf(s_,t)}, {xf(s_,m)}, {acc(t,m)}" for s_ in range(2) for t in range(7)]
    def conv(m):
        o = []
        for t in range(7):
            b = C_E + t * 2
            o.append(f"v_cvt_pk_bf16_f32 v{b}, v{acc1(t,m,0)}, v{acc1(t,m,1)}")
            o.append(f"v_cvt_pk_bf16_f32 v{b+1}, v{acc1(t,m,2)}, v{acc1(t,m,3)}")
            o.append(f"ds_write_b64 v13, v[{b}:{b+1}] offset:{m*16*ESTRIDE + t*32}")
        return o
    e("s_waitcnt lgkmcnt(11)")
    mm = mf_m(0)
    for m_ in mm[:7]: e(m_)
    e("s_waitcnt lgkmcnt(0)")
    for m_ in mm[7:]: e(m_)
    for m in range(1, 4):
        mm = mf_m(m); cv = conv(m - 1)
        for m_ in mm[:2]: e(m_)
        j = 0
        for m_ in mm[2:]:
            e(m_)
            for _ in range(2):
                if j < len(cv):
                    e(cv[j]); j += 1
        e("s_waitcnt lgkmcnt(0)")
        e("s_barrier")
    e("s_nop 7")
    for c_ in conv(3): e(c_)
    e("s_waitcnt lgkmcnt(0)")
    e("s_barrier")
    stamp(e)
    e("s_branch L_fin")

    e.label("L_prod")
    e(f"buffer_load_dword v{V_NONCE}, v{V_NADDR}, s[{S_DBG}:{S_DBG+3}], 0 offen sc1")
    xdma(29, "s28")
    stamp2(e)
    e(f"v_min_u32 v{T+8}, 15, v{T+1}")
    e(f"s_lshl_b32 s24, s{S_NT}, 4")
    e(f"v_add_u32 v{T+8}, s24, v{T+8}")
    e(f"v_lshl_add_u32 v{T+8}, v{T+8}, 2, v{T+2}")
    e(f"v_lshlrev_b32 v{T+8}, 7, v{T+8}")
    e(f"v_add_u32 v{V_FADDR}, {WS_FLAG}, v{T+8}")
    e(f"s_mov_b32 s{S_READY}, 0")
    e(f"s_mov_b32 s{S_FBK}, 0")
    if XPF:
        e(f"v_lshrrev_b32 v{T+15}, 3, v{T+1}")
        e(f"s_lshl_b32 s24, s{S_NT}, 3")
        e(f"s_add_u32 s24, s24, s{S_M0}")
        e(f"v_add_u32 v{T+15}, s24, v{T+15}")
        e(f"v_lshlrev_b32 v{T+15}, 11, v{T+15}")
        e(f"v_and_b32 v{T+13}, 7, v{T+1}")
        e(f"v_lshl_add_u32 v{T+15}, v{T+13}, 4, v{T+15}")
        e(f"v_lshl_add_u32 v{T+15}, v{T+2}, 7, v{T+15}")
    e("s_waitcnt vmcnt(8)")
    publish("p", store=False)
    e(f"s_mov_b32 s{S_G0}, s{S_G}")
    e(f"s_mov_b32 s{S_IT}, 2")
    e(f"s_add_u32 s{S_G}, s{S_G}, 2")
    e(f"s_and_b32 s{S_G}, s{S_G}, 15")
    e(f"s_mov_b32 s{S_XO}, {2*XBUF}")
    e(f"s_mov_b32 s{S_WO}, {2*WBUF}")
    stamp(e)
    e("s_barrier")
    stamp(e)
    e.label("L_ploop")
    e(f"s_bitcmp1_b32 s{S_READY}, s{S_G}")
    e("s_cbranch_scc1 L_rdyL")
    e(f"s_cmp_eq_u32 s{S_NON}, 0")
    e("s_cbranch_scc1 L_fbL")
    e(f"s_mov_b32 s{S_CNT}, s{S_FBK}")
    e.label("L_pollL")
    e(f"buffer_load_dword v{V_FLAG}, v{V_FADDR}, s[{S_WS}:{S_WS+3}], 0 offen sc1")
    e("s_waitcnt vmcnt(0)")
    e(f"v_cmp_eq_u32 vcc, v{V_FLAG}, v{V_NONCE}")
    e(f"s_mov_b32 s{S_READY}, vcc_lo")
    e(f"s_bitcmp1_b32 s{S_READY}, s{S_G}")
    e("s_cbranch_scc1 L_rdyL")
    e("s_sleep 2")
    e(f"s_add_u32 s{S_CNT}, s{S_CNT}, 1")
    e(f"s_cmp_lt_u32 s{S_CNT}, {SPIN}")
    e("s_cbranch_scc1 L_pollL")
    e.label("L_fbL")
    e(f"s_mov_b32 s{S_FBK}, {SPIN}")
    e(f"s_mul_i32 s{S_FBQ}, s{S_G}, {BK*QROW}")
    e(f"s_mov_b32 s{S_FBL}, s{S_WO}")
    e(f"s_lshr_b32 s24, s{S_G}, 1")
    e(f"s_mul_i32 s{S_FBG}, s24, {N*2}")
    e(f"buffer_load_dwordx2 v[{V_RAW}:{V_RAW+1}], v{V_SCO}, s[{S_SC}:{S_SC+3}], s{S_FBG} offen")
    e(f"buffer_load_dwordx2 v[{V_RAW+2}:{V_RAW+3}], v{V_SCO}, s[{S_Z}:{S_Z+3}], s{S_FBG} offen")
    for i in range(8):
        r = qreg(i, 0)
        e(f"buffer_load_dwordx4 v[{r}:{r+3}], v{V_QOFF+i}, s[{S_Q}:{S_Q+3}], s{S_FBQ} offen")
    e("s_waitcnt vmcnt(0)")
    e(f"s_call_b64 s[{S_RET}:{S_RET+1}], L_dq")
    e("s_branch L_doneL")
    e.label("L_rdyL")
    e(f"s_mul_i32 s27, s{S_G}, {WBUF}")
    e(f"s_add_u32 s27, s27, s{S_IMGB}")
    e(f"s_add_u32 m0, s{S_WM0}, s{S_WO}")
    e("s_nop 0")
    for pce in range(3):
        e(f"buffer_load_dwordx4 v{V_L16}, s[{S_WS}:{S_WS+3}], s27 offen offset:{pce*1024} sc1 lds")
    e("s_mov_b32 exec_hi, 0")
    e(f"buffer_load_dwordx4 v{V_L16}, s[{S_WS}:{S_WS+3}], s27 offen offset:3072 sc1 lds")
    e("s_mov_b32 exec_hi, -1")
    e.label("L_doneL")
    e(f"s_lshl_b32 s29, s{S_G}, 7")
    xdma(29, f"s{S_XO}")
    for a_ in adv: e(a_)
    e(f"s_add_u32 s{S_G}, s{S_G}, 2")
    e(f"s_and_b32 s{S_G}, s{S_G}, 15")
    e(f"s_add_u32 s24, s{S_G}, 3")
    e(f"s_and_b32 s24, s24, 15")
    e(f"s_cmp_eq_u32 s{S_G}, s{S_G0}")
    e(f"s_cselect_b32 s{S_G}, s24, s{S_G}")
    stamp(e)
    e("s_waitcnt vmcnt(12)")
    e(f"s_cmp_lg_u32 s{S_IT}, {SO_AT}")
    e("s_cbranch_scc1 L_noso")
    share_out()
    if XPF:
        for i in range(4):
            e(f"s_mov_b32 s24, {i*512}")
            e(f"buffer_load_dwordx4 v[{V_DUM}:{V_DUM+3}], v{T+15}, s[{S_X}:{S_X+3}], s24 offen")
    e.label("L_noso")
    e(f"s_cmp_lg_u32 s{S_IT}, {SO_AT+1}")
    e("s_cbranch_scc1 L_nofl")
    flag()
    e.label("L_nofl")
    e(f"s_add_u32 s{S_IT}, s{S_IT}, 1")
    e(f"s_cmp_lt_u32 s{S_IT}, 16")
    e("s_barrier")
    e("s_cbranch_scc1 L_ploop")
    stamp(e)
    e("s_waitcnt vmcnt(0)")
    e("s_barrier")
    stamp(e)
    e("v_and_b32 v10, 63, v0")
    e("v_mul_u32_u24 v11, 0x1250, v10")
    e("v_lshrrev_b32 v11, 16, v11")
    e("v_mul_u32_u24 v12, 14, v11")
    e("v_sub_u32 v12, v10, v12")
    e("v_and_b32 v13, 3, v1")
    e("v_lshl_add_u32 v13, v13, 6, v11")
    e(f"s_mov_b32 s27, {ESTRIDE}")
    e("v_mul_lo_u32 v14, v13, s27")
    e("v_lshl_add_u32 v14, v12, 4, v14")
    e(f"v_add_u32 v14, {EBASE}, v14")
    e(f"v_add_u32 v13, s{S_M0}, v13")
    e(f"s_mov_b32 s27, {OROW}")
    e("v_mul_lo_u32 v13, v13, s27")
    e(f"s_lshl_b32 s28, s{S_N0}, 1")
    e("v_lshl_add_u32 v13, v12, 4, v13")
    e("v_add_u32 v13, s28, v13")
    e("v_cmp_gt_u32 vcc, 56, v10")
    e("s_and_b64 exec, exec, vcc")
    for m in range(4):
        e("s_barrier")
        for i in range(4):
            b = 128 + m * 16 + i * 4
            e(f"ds_read_b128 v[{b}:{b+3}], v14 offset:{(m*16+i*4)*ESTRIDE}")
        for i in range(4):
            b = 128 + m * 16 + i * 4
            e(f"s_mov_b32 s24, {(m*16+i*4)*OROW}")
            e(f"s_waitcnt lgkmcnt({3-i})")
            e(f"buffer_store_dwordx4 v[{b}:{b+3}], v13, s[{S_O}:{S_O+3}], s24 offen")
    e("s_mov_b64 exec, -1")
    e("s_branch L_fin")

    e.label("L_dq")
    for c in range(4):
        e(f"v_add_u32 v{T+8+c}, s{S_FBL}, v{V_WR+c}")
    for op in dequant_ops(): e(op)
    e("s_waitcnt lgkmcnt(0)")
    e(f"s_setpc_b64 s[{S_RET}:{S_RET+1}]")

    e.label("L_fin")
    if STAMP:
        stamp(e)
        e("s_waitcnt vmcnt(0)")
        stamp(e); stamp(e, True)
        e("s_mov_b32 s64, s52")
        e("s_and_b32 s65, s53, 0xffff")
        e("s_mov_b32 s66, 0x10000000")
        e("s_mov_b32 s67, 0x00020000")
        e("v_lshlrev_b32 v1, 2, v0")
        e("s_lshl_b32 s24, s2, 11")
        e(f"s_add_u32 s24, s24, {WS_STAMP}")
        e(f"buffer_store_dword v{C_ST}, v1, s[64:67], s24 offen")
    e.label("L_end")
    e("s_endpgm")

    out += e.lines
    out.append('.section .rodata,"a"')
    out.append(".p2align 6")
    out.append(".amdhsa_kernel standalone__w4a16_gemm_dequant__prompt_kernel")
    out.append("  .amdhsa_next_free_vgpr 256")
    out.append("  .amdhsa_next_free_sgpr 102")
    out.append("  .amdhsa_accum_offset 256")
    out.append("  .amdhsa_group_segment_fixed_size 0")
    out.append("  .amdhsa_kernarg_size 56")
    out.append("  .amdhsa_user_sgpr_count 2")
    out.append("  .amdhsa_user_sgpr_kernarg_segment_ptr 1")
    out.append("  .amdhsa_system_sgpr_workgroup_id_x 1")
    out.append("  .amdhsa_float_denorm_mode_32 3")
    out.append("  .amdhsa_float_denorm_mode_16_64 3")
    out.append(".end_amdhsa_kernel")
    return "\n".join(out) + "\n"


if __name__ == "__main__":
    dst = sys.argv[1] if len(sys.argv) > 1 else "standalone__w4a16_gemm_dequant__prompt.s"
    open(dst, "w").write(gen())
    print("wrote", dst)
```

```python
import sys, os
STAMP = bool(os.environ.get('STAMP'))
S2 = bool(os.environ.get('STAMP2'))
PRIO = int(os.environ.get('PRIO', '3'))
SPIN = int(os.environ.get('SPIN', '64'))
FORCEFB = int(os.environ.get('FORCEFB', '0'))
NONON = int(os.environ.get('NONON', '0'))
XPF = int(os.environ.get('XPF', '1'))
CPF = int(os.environ.get('CPF', '6'))
XMAP = int(os.environ.get('XMAP', '0'))
XPOS = int(os.environ.get('XPOS', '1'))
XPE = int(os.environ.get('XPE', '0'))
SO_AT = int(os.environ.get('SO_AT', '2'))
PRE2 = int(os.environ.get('PRE2', '1'))
SHNT = ' nt' if int(os.environ.get('SHNT', '1')) else ''

M, N, K = 2048, 3584, 1024
BM, BN, BK = 256, 112, 64
QROW = N * 4
XROW = K * 2
OROW = N * 2
XBUF = BM * BK * 2
WBUF = BN * BK * 2
XR, WR = 3, 4
LDS_W = XR * XBUF
LDS_TOTAL = LDS_W + WR * WBUF
ESTRIDE = 240
EBASE = 32768
WS_FLAG = 8 << 20
WS_BYTES = WS_FLAG + 32 * 16 * 4 * 128
WS_STAMP = 16 << 20

C_RDW = 2
C_RDX = 4
C_ST = 8
C_CUR = 9
ACC = 16
def acc(t, m):
    b = ACC + (t * 4 + m) * 4
    return f"v[{b}:{b+3}]"
def acc1(t, m, r): return ACC + (t * 4 + m) * 4 + r
C_WF = 128
C_XF = 184
C_E = 220
def wf(s, t): b = C_WF + s * 28 + t * 4; return f"v[{b}:{b+3}]"
def xf(s, m): b = C_XF + s * 16 + m * 4; return f"v[{b}:{b+3}]"
V_XOFF = 16
V_QOFF = 24
V_S = 32
V_P = 40
V_WR = 60
V_T = 76
V_SCO = 92
V_RAW = 96
V_Q = 100
V_DUM = 244
V_L16, V_FADDR, V_NONCE, V_FLAG, V_Z, V_NADDR = 236, 237, 238, 239, 240, 241
def qreg(i, c): return V_Q + i * 4 + c

S_X, S_Q, S_O, S_SC, S_Z, S_WS, S_DBG = 4, 8, 12, 16, 20, 64, 84
S_C24, S_M0B = 34, 38
S_M0, S_N0, S_W, S_MT, S_NT, S_W8 = 35, 36, 37, 39, 33, 31
S_READY, S_FBK, S_IMGB, S_WM0, S_FLG = 68, 69, 70, 71, 74
S_RET = 76
S_FBQ, S_FBL, S_FBG = 78, 79, 80
S_CNT, S_NON = 81, 82
S_XO, S_WO, S_IT, S_G, S_G0 = 94, 95, 96, 97, 98


class Emit:
    def __init__(self): self.lines = []
    def __call__(self, s): self.lines.append("    " + s)
    def label(self, s): self.lines.append(s + ":")

def stamp(e, real=False):
    if not STAMP: return
    e("s_memrealtime s[60:61]" if real else "s_memtime s[60:61]")
    e("s_waitcnt lgkmcnt(0)")
    e("s_mov_b32 m0, s58")
    e("s_nop 0")
    e(f"v_writelane_b32 v{C_ST}, s60, m0")
    e("s_add_u32 s58, s58, 1")
def stamp2(e):
    if S2: stamp(e)

def dequant_ops():
    ops = []
    r0 = V_RAW
    ops.append(f"v_lshlrev_b32 v{V_S}, 16, v{r0}")
    ops.append(f"v_and_b32 v{V_S+1}, 0xffff0000, v{r0}")
    ops.append(f"v_lshlrev_b32 v{V_S+2}, 16, v{r0+1}")
    ops.append(f"v_and_b32 v{V_S+3}, 0xffff0000, v{r0+1}")
    ops.append(f"v_lshlrev_b32 v{V_S+4}, 16, v{r0+2}")
    ops.append(f"v_and_b32 v{V_S+5}, 0xffff0000, v{r0+2}")
    ops.append(f"v_lshlrev_b32 v{V_S+6}, 16, v{r0+3}")
    ops.append(f"v_and_b32 v{V_S+7}, 0xffff0000, v{r0+3}")
    for c in range(4):
        for i in range(8):
            r = qreg(i, c)
            ops.append(f"v_fma_mix_f32 v{r}, v{r}, s{S_C24}, -v{V_S+4+c} op_sel_hi:[1,0,0]")
        for j in range(4):
            ops.append(f"v_cvt_pk_bf16_f32 v{V_P+4*c+j}, v{qreg(2*j,c)}, v{qreg(2*j+1,c)}")
        for j in range(4):
            ops.append(f"v_lshlrev_b32 v{qreg(2*j,c)}, 16, v{V_P+4*c+j}")
            ops.append(f"v_and_b32 v{qreg(2*j+1,c)}, 0xffff0000, v{V_P+4*c+j}")
        for i in range(8):
            r = qreg(i, c)
            ops.append(f"v_mul_f32 v{r}, v{r}, v{V_S+c}")
        for j in range(4):
            ops.append(f"v_cvt_pk_bf16_f32 v{V_P+4*c+j}, v{qreg(2*j,c)}, v{qreg(2*j+1,c)}")
        ops.append(f"ds_write_b128 v{V_T+8+c}, v[{V_P+4*c}:{V_P+4*c+3}]")
    return ops


def gen():
    e = Emit()
    hdr = open("standalone__w4a16_gemm_dequant__prompt.s.ref").read().split("\n")
    out = []
    for l in hdr:
        if l.startswith("; @launch"):
            out.append(f"; @launch grid=(256,1,1) block=(512,1,1) lds={LDS_TOTAL}")
            break
        out.append(l)
    out.append('.amdgcn_target "amdgcn-amd-amdhsa--gfx950"')
    out.append(".text")
    out.append(".globl standalone__w4a16_gemm_dequant__prompt_kernel")
    out.append(".p2align 8")
    out.append(".type standalone__w4a16_gemm_dequant__prompt_kernel,@function")
    out.append("standalone__w4a16_gemm_dequant__prompt_kernel:")

    def srd(d, lo, nbytes):
        e(f"s_mov_b32 s{d}, s{lo}")
        e(f"s_and_b32 s{d+1}, s{lo+1}, 0xffff")
        e(f"s_mov_b32 s{d+2}, {nbytes}")
        e(f"s_mov_b32 s{d+3}, 0x00020000")
    T = V_T
    def xdma(kreg, slot_off):
        e(f"s_add_u32 s24, s{S_M0B}, {slot_off}")
        for a in range(8):
            if a % 4 == 0:
                e(f"s_add_u32 m0, s24, {(a//4)*4096}")
                e("s_nop 0")
            e(f"buffer_load_dwordx4 v{V_XOFF+a}, s[{S_X}:{S_X+3}], s{kreg} offen offset:{(a%4)*1024} lds")

    e("s_cmp_ge_u32 s2, 256")
    e("s_cbranch_scc1 L_end")
    e("s_load_dwordx8 s[40:47], s[0:1], 0")
    e("s_load_dwordx4 s[48:51], s[0:1], 32")
    e("s_load_dwordx2 s[52:53], s[0:1], 48")
    if CPF:
        e("s_getpc_b64 s[90:91]")
        e("v_lshlrev_b32 v4, 7, v0")
        e("v_mov_b32 v3, s91")
        e("v_add_co_u32 v2, vcc, s90, v4")
        e("s_nop 1")
        e("v_addc_co_u32 v3, vcc, 0, v3, vcc")
        e(f"v_cmp_gt_u32 vcc, {CPF*1024}, v4")
        e("s_and_saveexec_b64 s[92:93], vcc")
        e("s_cbranch_execz L_nocpf")
        e("global_load_dword v255, v[2:3], off")
        e.label("L_nocpf")
        e("s_mov_b64 exec, s[92:93]")
    e("s_memrealtime s[54:55]")
    if STAMP:
        e("s_mov_b32 s58, 0")
        e(f"v_mov_b32 v{C_ST}, 0")
        stamp(e, True); stamp(e)
    e("s_and_b32 s24, s2, 7")
    e("s_lshr_b32 s25, s2, 3")
    e("s_and_b32 s26, s25, 3")
    e("s_lshl_b32 s24, s24, 2")
    e(f"s_add_u32 s{S_NT}, s24, s26")
    e(f"s_lshr_b32 s{S_MT}, s25, 2")
    if XMAP == 1:
        e(f"s_and_b32 s{S_MT}, s2, 7")
        e(f"s_lshr_b32 s{S_NT}, s2, 3")
    if XMAP == 2:
        e(f"s_and_b32 s24, s2, 1")
        e(f"s_lshl_b32 s24, s24, 2")
        e(f"s_bfe_u32 s25, s2, 0x20003")
        e(f"s_add_u32 s{S_MT}, s24, s25")
        e(f"s_bfe_u32 s24, s2, 0x20001")
        e(f"s_lshl_b32 s24, s24, 3")
        e(f"s_lshr_b32 s25, s2, 5")
        e(f"s_add_u32 s{S_NT}, s24, s25")
    if XMAP == 3:
        e(f"s_and_b32 s24, s2, 3")
        e(f"s_lshl_b32 s24, s24, 1")
        e(f"s_bfe_u32 s25, s2, 0x10003")
        e(f"s_add_u32 s{S_MT}, s24, s25")
        e(f"s_bfe_u32 s24, s2, 0x10002")
        e(f"s_lshl_b32 s24, s24, 4")
        e(f"s_lshr_b32 s25, s2, 4")
        e(f"s_add_u32 s{S_NT}, s24, s25")
    e(f"s_mul_i32 s{S_N0}, s{S_NT}, {BN}")
    e(f"s_lshl_b32 s{S_M0}, s{S_MT}, 8")
    e("v_lshrrev_b32 v1, 6, v0")
    e("v_and_b32 v10, 255, v0")
    e(f"v_readfirstlane_b32 s{S_W8}, v1")
    e("v_lshrrev_b32 v11, 5, v10")
    e("v_and_b32 v12, 31, v10")
    e("v_min_u32 v12, 27, v12")
    e(f"s_lshl_b32 s28, s{S_N0}, 2")
    e("v_lshl_add_u32 v14, v12, 4, s28")
    e(f"v_lshrrev_b32 v{V_SCO}, 1, v14")
    e(f"s_mov_b32 s27, {8*QROW}")
    e(f"v_mul_lo_u32 v13, v11, s27")
    e(f"v_add_u32 v{V_QOFF}, v14, v13")
    for i in range(1, 8):
        e(f"v_add_u32 v{V_QOFF+i}, {i*QROW}, v{V_QOFF}")
    e(f"s_mov_b32 s{S_C24}, 0x4b800000")
    e(f"s_and_b32 s{S_W}, s{S_W8}, 3")
    e(f"s_lshr_b32 s26, s{S_W8}, 2")
    e(f"s_lshl_b32 s{S_G}, s{S_MT}, 1")
    e(f"s_add_u32 s25, s{S_G}, s26")
    e(f"s_mul_i32 s{S_FBQ}, s25, {BK*QROW}")
    e(f"s_mul_i32 s{S_FBL}, s26, {WBUF}")
    e(f"s_mul_i32 s{S_FBG}, s{S_MT}, {N*2}")
    e(f"s_lshl_b32 s24, s{S_NT}, 4")
    e(f"s_add_u32 s24, s24, s25")
    e(f"s_mul_i32 s30, s24, {WBUF}")
    e(f"s_lshl_b32 s24, s24, 2")
    e(f"s_add_u32 s24, s24, s{S_W}")
    e(f"s_lshl_b32 s24, s24, 7")
    e(f"s_add_u32 s{S_FLG}, s24, {WS_FLAG}")
    if FORCEFB:
        e(f"s_cmp_eq_u32 s{S_MT}, {FORCEFB-1}")
        e(f"s_cselect_b32 s{S_FLG}, 0x40000000, s{S_FLG}")
    e(f"s_lshl_b32 s24, s{S_NT}, 2")
    e(f"v_mov_b32 v{V_NADDR}, s24")
    e(f"s_or_b32 s25, s{S_W8}, s{S_MT}")
    e(f"s_cmp_eq_u32 s25, 0")
    e("s_cselect_b32 s24, s24, 0x1000")
    if NONON: e("s_mov_b32 s24, 0x1000")
    e(f"v_mov_b32 v{T+6}, s24")
    e("s_waitcnt lgkmcnt(0)")
    stamp2(e)
    srd(S_SC, 44, 8 * N * 2)
    srd(S_Z, 46, 8 * N * 2)
    srd(S_Q, 42, K * N * 4)
    e(f"buffer_load_dwordx2 v[{V_RAW}:{V_RAW+1}], v{V_SCO}, s[{S_SC}:{S_SC+3}], s{S_FBG} offen")
    e(f"buffer_load_dwordx2 v[{V_RAW+2}:{V_RAW+3}], v{V_SCO}, s[{S_Z}:{S_Z+3}], s{S_FBG} offen")
    for i in range(8):
        r = qreg(i, 0)
        e(f"buffer_load_dwordx4 v[{r}:{r+3}], v{V_QOFF+i}, s[{S_Q}:{S_Q+3}], s{S_FBQ} offen{SHNT}")
    srd(S_DBG, 50, 256)
    e("s_or_b32 s54, s54, 1")
    e(f"v_mov_b32 v{T+7}, s54")
    e("s_mov_b64 exec, 1")
    e(f"buffer_store_dword v{T+7}, v{T+6}, s[{S_DBG}:{S_DBG+3}], 0 offen sc1")
    e("s_mov_b64 exec, -1")
    srd(S_X, 40, M * K * 2)
    srd(S_O, 48, M * N * 2)
    srd(S_WS, 52, WS_BYTES)
    e(f"v_and_b32 v{T+1}, 63, v0")
    e(f"v_bfe_u32 v{T+3}, v0, 4, 2")
    e(f"v_and_b32 v{T+2}, 3, v1")
    e(f"v_lshrrev_b32 v{T+8}, 3, v{T+1}")
    e(f"v_lshl_add_u32 v{T+8}, v{T+2}, 6, v{T+8}")
    e(f"v_add_u32 v{T+8}, s{S_M0}, v{T+8}")
    e(f"v_lshlrev_b32 v{T+8}, 11, v{T+8}")
    e(f"v_and_b32 v{T+9}, 7, v{T+1}")
    e(f"v_xor_b32 v{T+9}, v{T+9}, v{T+3}")
    e(f"v_xor_b32 v{T+10}, 4, v{T+9}")
    e(f"v_lshl_add_u32 v{T+9}, v{T+9}, 4, v{T+8}")
    e(f"v_lshl_add_u32 v{T+10}, v{T+10}, 4, v{T+8}")
    for a in range(8):
        e(f"v_add_u32 v{V_XOFF+a}, {a*8*XROW - (a%4)*1024}, v{T+9+(a&1)}")
    e(f"s_lshl_b32 s{S_M0B}, s{S_W}, 13")
    e(f"s_lshr_b32 s26, s{S_W8}, 2")
    e(f"s_add_u32 s29, s{S_G}, s26")
    e(f"s_lshl_b32 s29, s29, 7")
    e(f"s_lshl_b32 s28, s26, 15")
    if XPOS == 0: xdma(29, "s28")
    if XPE:
        e(f"v_lshrrev_b32 v{T+15}, 3, v{T+1}")
        e(f"s_lshl_b32 s24, s{S_NT}, 3")
        e(f"s_add_u32 s24, s24, s{S_M0}")
        e(f"v_add_u32 v{T+15}, s24, v{T+15}")
        e(f"v_lshlrev_b32 v{T+15}, 11, v{T+15}")
        e(f"v_and_b32 v{T+13}, 7, v{T+1}")
        e(f"v_lshl_add_u32 v{T+15}, v{T+13}, 4, v{T+15}")
        e(f"s_add_u32 s24, s{S_G}, s{S_W8}")
        e(f"s_and_b32 s24, s24, 15")
        e(f"s_lshl_b32 s24, s24, 7")
        e(f"buffer_load_dwordx4 v[{V_DUM}:{V_DUM+3}], v{T+15}, s[{S_X}:{S_X+3}], s24 offen")
        e(f"s_xor_b32 s24, s24, 1024")
        e(f"buffer_load_dwordx4 v[{V_DUM}:{V_DUM+3}], v{T+15}, s[{S_X}:{S_X+3}], s24 offen")
    e(f"v_lshrrev_b32 v{T+8}, 2, v12")
    e(f"v_and_b32 v{T+9}, 3, v12")
    e(f"v_and_b32 v{T+10}, 1, v{T+8}")
    e(f"v_lshlrev_b32 v{T+10}, 1, v{T+10}")
    e(f"v_lshrrev_b32 v{T+11}, 1, v{T+9}")
    e(f"v_add_u32 v{T+10}, v{T+10}, v{T+11}")
    e(f"v_lshlrev_b32 v{T+8}, 8, v{T+8}")
    e(f"v_lshl_add_u32 v{T+8}, v{T+9}, 6, v{T+8}")
    e(f"v_mul_u32_u24 v{T+12}, 1792, v11")
    e(f"v_add_u32 v{T+12}, v{T+12}, v{T+8}")
    e(f"v_add_u32 v{T+12}, {LDS_W}, v{T+12}")
    for c in range(4):
        e(f"v_xor_b32 v{T+11}, {c}, v{T+10}")
        e(f"v_lshl_add_u32 v{V_WR+c}, v{T+11}, 4, v{T+12}")
    e(f"v_lshlrev_b32 v{V_L16}, 4, v{T+1}")
    e(f"s_mul_i32 s24, s{S_W}, 3584")
    e(f"s_add_u32 s30, s30, s24")
    e(f"s_mul_i32 s{S_IMGB}, s{S_NT}, {16*WBUF}")
    e(f"s_add_u32 s{S_IMGB}, s{S_IMGB}, s24")
    e(f"s_add_u32 s{S_WM0}, s24, {LDS_W}")
    e(f"s_add_u32 s24, s{S_WM0}, s{S_FBL}")
    e(f"v_add_u32 v{T+14}, s24, v{V_L16}")
    e(f"v_mov_b32 v{V_Z}, 0")
    stamp2(e)
    e(f"s_waitcnt vmcnt({(9 if XPOS == 0 else 1) + (2 if XPE else 0)})")
    stamp2(e)
    e(f"s_call_b64 s[{S_RET}:{S_RET+1}], L_dq")
    stamp2(e)
    def share_out():
        for pc in range(4):
            e(f"ds_read_b128 v[{V_P+4*pc}:{V_P+4*pc+3}], v{T+14} offset:{pc*1024}")
        for pc in range(4):
            e(f"s_waitcnt lgkmcnt({3-pc})")
            if pc == 3: e("s_mov_b32 exec_hi, 0")
            e(f"buffer_store_dwordx4 v[{V_P+4*pc}:{V_P+4*pc+3}], v{V_L16}, s[{S_WS}:{S_WS+3}], s30 offen offset:{pc*1024} sc1")
            if pc == 3: e("s_mov_b32 exec_hi, -1")
    e(f"s_cmp_ge_u32 s{S_W8}, 4")
    e("s_cbranch_scc1 L_prod")
    share_out()
    e(f"buffer_load_dword v{V_NONCE}, v{V_NADDR}, s[{S_DBG}:{S_DBG+3}], 0 offen sc1")
    xdma(29, "s28")
    stamp2(e)

    def publish(tagl, store=True):
        e(f"v_readfirstlane_b32 s{S_NON}, v{V_NONCE}")
        e(f"s_cmp_lg_u32 s{S_NON}, 0")
        e(f"s_cbranch_scc1 L_n_got{tagl}")
        e(f"s_mov_b32 s{S_CNT}, 0")
        e.label(f"L_n_poll{tagl}")
        e(f"buffer_load_dword v{V_NONCE}, v{V_NADDR}, s[{S_DBG}:{S_DBG+3}], 0 offen sc1")
        e("s_waitcnt vmcnt(0)")
        e(f"v_readfirstlane_b32 s{S_NON}, v{V_NONCE}")
        e(f"s_cmp_lg_u32 s{S_NON}, 0")
        e(f"s_cbranch_scc1 L_n_got{tagl}")
        e("s_sleep 2")
        e(f"s_add_u32 s{S_CNT}, s{S_CNT}, 1")
        e(f"s_cmp_lt_u32 s{S_CNT}, {SPIN}")
        e(f"s_cbranch_scc1 L_n_poll{tagl}")
        e.label(f"L_n_got{tagl}")
        if store: flag()
    def flag():
        e("s_mov_b64 exec, 1")
        e(f"buffer_store_dword v{V_NONCE}, v{V_Z}, s[{S_WS}:{S_WS+3}], s{S_FLG} offen sc1")
        e("s_mov_b64 exec, -1")

    e("v_and_b32 v14, 15, v0")
    e("v_bfe_u32 v15, v0, 4, 2")
    e("v_lshrrev_b32 v10, 3, v14")
    e("v_xor_b32 v10, v10, v14")
    e("v_mul_u32_u24 v11, 1792, v15")
    e(f"v_add_u32 v11, {LDS_W}, v11")
    e(f"v_lshl_add_u32 v{C_RDW}, v10, 4, v11")
    e("v_xor_b32 v10, 2, v10")
    e(f"v_lshl_add_u32 v{C_RDW+1}, v10, 4, v11")
    e("v_lshrrev_b32 v10, 1, v14")
    e("v_xor_b32 v10, v10, v15")
    e("v_lshlrev_b32 v11, 13, v1")
    e("v_lshl_add_u32 v11, v14, 7, v11")
    e(f"v_lshl_add_u32 v{C_RDX}, v10, 4, v11")
    e(f"v_xor_b32 v{C_RDX+1}, 64, v{C_RDX}")
    for i in range(0, 112, 2):
        if not (V_P <= ACC + i < V_P + 16): e(f"v_mov_b64 v[{ACC+i}:{ACC+i+1}], 0")
    for i in range(0, 28, 2):
        e(f"v_mov_b64 v[{C_WF+28+i}:{C_WF+28+i+1}], 0")
    for i in range(0, 16, 2):
        e(f"v_mov_b64 v[{C_XF+16+i}:{C_XF+16+i+1}], 0")
    e(f"s_mov_b32 s{S_XO}, 0")
    e(f"s_mov_b32 s{S_WO}, 0")
    e(f"s_mov_b32 s{S_IT}, 0")
    e(f"v_mov_b32 v{C_CUR}, v{C_RDX}")
    e(f"v_mov_b32 v{C_CUR+1}, v{C_RDX+1}")
    e(f"v_mov_b32 v{C_CUR+2}, v{C_RDW}")
    e(f"v_mov_b32 v{C_CUR+3}, v{C_RDW+1}")
    e("s_waitcnt vmcnt(8)")
    for i in range(0, 16, 2):
        e(f"v_mov_b64 v[{V_P+i}:{V_P+i+1}], 0")
    publish("c")
    e(f"s_setprio {PRIO}")
    e("s_waitcnt vmcnt(1)")
    stamp(e); stamp(e)
    def wread(s_set, t, s): return f"ds_read_b128 {wf(s_set,t)}, v{C_CUR+2+(t&1)} offset:{s*7168+t*256}"
    def xread(s_set, m, s): return f"ds_read_b128 {xf(s_set,m)}, v{C_CUR+s} offset:{m*2048}"
    def mfmas(s_set, ts):
        return [f"v_mfma_f32_16x16x32_bf16 {acc(t,m)}, {wf(s_set,t)}, {xf(s_set,m)}, {acc(t,m)}" for t in ts for m in range(4)]
    def interleave(mf, fill):
        j = 0
        for m_ in mf:
            e(m_)
            if j < len(fill):
                e(fill[j]); j += 1
        while j < len(fill):
            e(fill[j]); j += 1
    adv = [f"s_add_u32 s{S_XO}, s{S_XO}, {XBUF}", f"s_cmp_eq_u32 s{S_XO}, {XR*XBUF}", f"s_cselect_b32 s{S_XO}, 0, s{S_XO}",
           f"s_add_u32 s{S_WO}, s{S_WO}, {WBUF}", f"s_cmp_eq_u32 s{S_WO}, {WR*WBUF}", f"s_cselect_b32 s{S_WO}, 0, s{S_WO}"]
    e.label("L_cloop")
    e("s_barrier")
    fill = [xread(0, m, 0) for m in range(4)] + [wread(0, t, 0) for t in range(7)]
    for f in fill[:3]: e(f)
    interleave(mfmas(1, [4, 5, 6]), fill[3:])
    e("s_waitcnt lgkmcnt(0)")
    fill = [xread(1, m, 1) for m in range(4)] + [wread(1, t, 1) for t in range(7)]
    interleave(mfmas(0, range(7)), fill)
    e("s_waitcnt lgkmcnt(0)")
    mf = mfmas(1, [0, 1, 2, 3])
    interleave(mf[:-2], adv + [f"v_add_u32 v{C_CUR}, s{S_XO}, v{C_RDX}", f"v_add_u32 v{C_CUR+1}, s{S_XO}, v{C_RDX+1}",
                               f"v_add_u32 v{C_CUR+2}, s{S_WO}, v{C_RDW}", f"v_add_u32 v{C_CUR+3}, s{S_WO}, v{C_RDW+1}",
                               f"s_add_u32 s{S_IT}, s{S_IT}, 1"])
    stamp(e)
    e(f"s_cmp_lt_u32 s{S_IT}, 15")
    for m_ in mf[-2:]: e(m_)
    e("s_cbranch_scc1 L_cloop")
    e("s_barrier")
    fill = [xread(0, m, 0) for m in range(4)] + [wread(0, t, 0) for t in range(7)]
    for f in fill[:3]: e(f)
    interleave(mfmas(1, [4, 5, 6]), fill[3:])
    for f in [xread(1, m, 1) for m in range(4)] + [wread(1, t, 1) for t in range(7)]: e(f)
    e(f"s_mov_b32 s27, {ESTRIDE}")
    e("v_lshl_add_u32 v13, v1, 6, v14")
    e("v_mul_lo_u32 v13, v13, s27")
    e("v_lshl_add_u32 v13, v15, 3, v13")
    e(f"v_add_u32 v13, {EBASE}, v13")
    def mf_m(m):
        return [f"v_mfma_f32_16x16x32_bf16 {acc(t,m)}, {wf(s_,t)}, {xf(s_,m)}, {acc(t,m)}" for s_ in range(2) for t in range(7)]
    def conv(m):
        o = []
        for t in range(7):
            b = C_E + t * 2
            o.append(f"v_cvt_pk_bf16_f32 v{b}, v{acc1(t,m,0)}, v{acc1(t,m,1)}")
            o.append(f"v_cvt_pk_bf16_f32 v{b+1}, v{acc1(t,m,2)}, v{acc1(t,m,3)}")
            o.append(f"ds_write_b64 v13, v[{b}:{b+1}] offset:{m*16*ESTRIDE + t*32}")
        return o
    e("s_waitcnt lgkmcnt(11)")
    mm = mf_m(0)
    for m_ in mm[:7]: e(m_)
    e("s_waitcnt lgkmcnt(0)")
    for m_ in mm[7:]: e(m_)
    for m in range(1, 4):
        mm = mf_m(m); cv = conv(m - 1)
        for m_ in mm[:2]: e(m_)
        j = 0
        for m_ in mm[2:]:
            e(m_)
            for _ in range(2):
                if j < len(cv):
                    e(cv[j]); j += 1
        e("s_waitcnt lgkmcnt(0)")
        e("s_barrier")
    e("s_nop 7")
    for c_ in conv(3): e(c_)
    e("s_waitcnt lgkmcnt(0)")
    e("s_barrier")
    stamp(e)
    e("s_branch L_fin")

    e.label("L_prod")
    e(f"buffer_load_dword v{V_NONCE}, v{V_NADDR}, s[{S_DBG}:{S_DBG+3}], 0 offen sc1")
    xdma(29, "s28")
    stamp2(e)
    e(f"v_min_u32 v{T+8}, 15, v{T+1}")
    e(f"s_lshl_b32 s24, s{S_NT}, 4")
    e(f"v_add_u32 v{T+8}, s24, v{T+8}")
    e(f"v_lshl_add_u32 v{T+8}, v{T+8}, 2, v{T+2}")
    e(f"v_lshlrev_b32 v{T+8}, 7, v{T+8}")
    e(f"v_add_u32 v{V_FADDR}, {WS_FLAG}, v{T+8}")
    e(f"s_mov_b32 s{S_READY}, 0")
    e(f"s_mov_b32 s{S_FBK}, 0")
    if XPF:
        e(f"v_lshrrev_b32 v{T+15}, 3, v{T+1}")
        e(f"s_lshl_b32 s24, s{S_NT}, 3")
        e(f"s_add_u32 s24, s24, s{S_M0}")
        e(f"v_add_u32 v{T+15}, s24, v{T+15}")
        e(f"v_lshlrev_b32 v{T+15}, 11, v{T+15}")
        e(f"v_and_b32 v{T+13}, 7, v{T+1}")
        e(f"v_lshl_add_u32 v{T+15}, v{T+13}, 4, v{T+15}")
        e(f"v_lshl_add_u32 v{T+15}, v{T+2}, 7, v{T+15}")
    e("s_waitcnt vmcnt(8)")
    publish("p", store=False)
    e(f"s_mov_b32 s{S_G0}, s{S_G}")
    e(f"s_mov_b32 s{S_IT}, 2")
    e(f"s_add_u32 s{S_G}, s{S_G}, 2")
    e(f"s_and_b32 s{S_G}, s{S_G}, 15")
    e(f"s_mov_b32 s{S_XO}, {2*XBUF}")
    e(f"s_mov_b32 s{S_WO}, {2*WBUF}")
    stamp(e)
    e("s_barrier")
    stamp(e)
    e.label("L_ploop")
    e(f"s_bitcmp1_b32 s{S_READY}, s{S_G}")
    e("s_cbranch_scc1 L_rdyL")
    e(f"s_cmp_eq_u32 s{S_NON}, 0")
    e("s_cbranch_scc1 L_fbL")
    e(f"s_mov_b32 s{S_CNT}, s{S_FBK}")
    e.label("L_pollL")
    e(f"buffer_load_dword v{V_FLAG}, v{V_FADDR}, s[{S_WS}:{S_WS+3}], 0 offen sc1")
    e("s_waitcnt vmcnt(0)")
    e(f"v_cmp_eq_u32 vcc, v{V_FLAG}, v{V_NONCE}")
    e(f"s_mov_b32 s{S_READY}, vcc_lo")
    e(f"s_bitcmp1_b32 s{S_READY}, s{S_G}")
    e("s_cbranch_scc1 L_rdyL")
    e("s_sleep 2")
    e(f"s_add_u32 s{S_CNT}, s{S_CNT}, 1")
    e(f"s_cmp_lt_u32 s{S_CNT}, {SPIN}")
    e("s_cbranch_scc1 L_pollL")
    e.label("L_fbL")
    e(f"s_mov_b32 s{S_FBK}, {SPIN}")
    e(f"s_mul_i32 s{S_FBQ}, s{S_G}, {BK*QROW}")
    e(f"s_mov_b32 s{S_FBL}, s{S_WO}")
    e(f"s_lshr_b32 s24, s{S_G}, 1")
    e(f"s_mul_i32 s{S_FBG}, s24, {N*2}")
    e(f"buffer_load_dwordx2 v[{V_RAW}:{V_RAW+1}], v{V_SCO}, s[{S_SC}:{S_SC+3}], s{S_FBG} offen")
    e(f"buffer_load_dwordx2 v[{V_RAW+2}:{V_RAW+3}], v{V_SCO}, s[{S_Z}:{S_Z+3}], s{S_FBG} offen")
    for i in range(8):
        r = qreg(i, 0)
        e(f"buffer_load_dwordx4 v[{r}:{r+3}], v{V_QOFF+i}, s[{S_Q}:{S_Q+3}], s{S_FBQ} offen")
    e("s_waitcnt vmcnt(0)")
    e(f"s_call_b64 s[{S_RET}:{S_RET+1}], L_dq")
    e("s_branch L_doneL")
    e.label("L_rdyL")
    e(f"s_mul_i32 s27, s{S_G}, {WBUF}")
    e(f"s_add_u32 s27, s27, s{S_IMGB}")
    e(f"s_add_u32 m0, s{S_WM0}, s{S_WO}")
    e("s_nop 0")
    for pce in range(3):
        e(f"buffer_load_dwordx4 v{V_L16}, s[{S_WS}:{S_WS+3}], s27 offen offset:{pce*1024} sc1 lds")
    e("s_mov_b32 exec_hi, 0")
    e(f"buffer_load_dwordx4 v{V_L16}, s[{S_WS}:{S_WS+3}], s27 offen offset:3072 sc1 lds")
    e("s_mov_b32 exec_hi, -1")
    e.label("L_doneL")
    e(f"s_lshl_b32 s29, s{S_G}, 7")
    xdma(29, f"s{S_XO}")
    for a_ in adv: e(a_)
    e(f"s_add_u32 s{S_G}, s{S_G}, 2")
    e(f"s_and_b32 s{S_G}, s{S_G}, 15")
    e(f"s_add_u32 s24, s{S_G}, 3")
    e(f"s_and_b32 s24, s24, 15")
    e(f"s_cmp_eq_u32 s{S_G}, s{S_G0}")
    e(f"s_cselect_b32 s{S_G}, s24, s{S_G}")
    stamp(e)
    e("s_waitcnt vmcnt(12)")
    e(f"s_cmp_lg_u32 s{S_IT}, {SO_AT}")
    e("s_cbranch_scc1 L_noso")
    share_out()
    if XPF:
        for i in range(4):
            e(f"s_mov_b32 s24, {i*512}")
            e(f"buffer_load_dwordx4 v[{V_DUM}:{V_DUM+3}], v{T+15}, s[{S_X}:{S_X+3}], s24 offen")
    e.label("L_noso")
    e(f"s_cmp_lg_u32 s{S_IT}, {SO_AT+1}")
    e("s_cbranch_scc1 L_nofl")
    flag()
    e.label("L_nofl")
    e(f"s_add_u32 s{S_IT}, s{S_IT}, 1")
    e(f"s_cmp_lt_u32 s{S_IT}, 16")
    e("s_barrier")
    e("s_cbranch_scc1 L_ploop")
    stamp(e)
    e("s_waitcnt vmcnt(0)")
    e("s_barrier")
    stamp(e)
    e("v_and_b32 v10, 63, v0")
    e("v_mul_u32_u24 v11, 0x1250, v10")
    e("v_lshrrev_b32 v11, 16, v11")
    e("v_mul_u32_u24 v12, 14, v11")
    e("v_sub_u32 v12, v10, v12")
    e("v_and_b32 v13, 3, v1")
    e("v_lshl_add_u32 v13, v13, 6, v11")
    e(f"s_mov_b32 s27, {ESTRIDE}")
    e("v_mul_lo_u32 v14, v13, s27")
    e("v_lshl_add_u32 v14, v12, 4, v14")
    e(f"v_add_u32 v14, {EBASE}, v14")
    e(f"v_add_u32 v13, s{S_M0}, v13")
    e(f"s_mov_b32 s27, {OROW}")
    e("v_mul_lo_u32 v13, v13, s27")
    e(f"s_lshl_b32 s28, s{S_N0}, 1")
    e("v_lshl_add_u32 v13, v12, 4, v13")
    e("v_add_u32 v13, s28, v13")
    e("v_cmp_gt_u32 vcc, 56, v10")
    e("s_and_b64 exec, exec, vcc")
    for m in range(4):
        e("s_barrier")
        for i in range(4):
            b = 128 + m * 16 + i * 4
            e(f"ds_read_b128 v[{b}:{b+3}], v14 offset:{(m*16+i*4)*ESTRIDE}")
        for i in range(4):
            b = 128 + m * 16 + i * 4
            e(f"s_mov_b32 s24, {(m*16+i*4)*OROW}")
            e(f"s_waitcnt lgkmcnt({3-i})")
            e(f"buffer_store_dwordx4 v[{b}:{b+3}], v13, s[{S_O}:{S_O+3}], s24 offen")
    e("s_mov_b64 exec, -1")
    e("s_branch L_fin")

    e.label("L_dq")
    for c in range(4):
        e(f"v_add_u32 v{T+8+c}, s{S_FBL}, v{V_WR+c}")
    for op in dequant_ops(): e(op)
    e("s_waitcnt lgkmcnt(0)")
    e(f"s_setpc_b64 s[{S_RET}:{S_RET+1}]")

    e.label("L_fin")
    if STAMP:
        stamp(e)
        e("s_waitcnt vmcnt(0)")
        stamp(e); stamp(e, True)
        e("s_mov_b32 s64, s52")
        e("s_and_b32 s65, s53, 0xffff")
        e("s_mov_b32 s66, 0x10000000")
        e("s_mov_b32 s67, 0x00020000")
        e("v_lshlrev_b32 v1, 2, v0")
        e("s_lshl_b32 s24, s2, 11")
        e(f"s_add_u32 s24, s24, {WS_STAMP}")
        e(f"buffer_store_dword v{C_ST}, v1, s[64:67], s24 offen")
    e.label("L_end")
    e("s_endpgm")

    out += e.lines
    out.append('.section .rodata,"a"')
    out.append(".p2align 6")
    out.append(".amdhsa_kernel standalone__w4a16_gemm_dequant__prompt_kernel")
    out.append("  .amdhsa_next_free_vgpr 256")
    out.append("  .amdhsa_next_free_sgpr 102")
    out.append("  .amdhsa_accum_offset 256")
    out.append("  .amdhsa_group_segment_fixed_size 0")
    out.append("  .amdhsa_kernarg_size 56")
    out.append("  .amdhsa_user_sgpr_count 2")
    out.append("  .amdhsa_user_sgpr_kernarg_segment_ptr 1")
    out.append("  .amdhsa_system_sgpr_workgroup_id_x 1")
    out.append("  .amdhsa_float_denorm_mode_32 3")
    out.append("  .amdhsa_float_denorm_mode_16_64 3")
    out.append(".end_amdhsa_kernel")
    return "\n".join(out) + "\n"


if __name__ == "__main__":
    dst = sys.argv[1] if len(sys.argv) > 1 else "standalone__w4a16_gemm_dequant__prompt.s"
    open(dst, "w").write(gen())
    print("wrote", dst)
```

```python
import sys, os
STAMP = bool(os.environ.get('STAMP'))
S2 = bool(os.environ.get('STAMP2'))
PRIO = int(os.environ.get('PRIO', '3'))
SPIN = int(os.environ.get('SPIN', '64'))
FORCEFB = int(os.environ.get('FORCEFB', '0'))
NONON = int(os.environ.get('NONON', '0'))
XPF = int(os.environ.get('XPF', '1'))
CPF = int(os.environ.get('CPF', '6'))
XMAP = int(os.environ.get('XMAP', '2'))
NLE = int(os.environ.get('NLE', '0'))
XPOS = int(os.environ.get('XPOS', '1'))
XPE = int(os.environ.get('XPE', '0'))
SO_AT = int(os.environ.get('SO_AT', '2'))
PRE2 = int(os.environ.get('PRE2', '1'))
SHNT = ' nt' if int(os.environ.get('SHNT', '1')) else ''

M, N, K = 2048, 3584, 1024
BM, BN, BK = 256, 112, 64
QROW = N * 4
XROW = K * 2
OROW = N * 2
XBUF = BM * BK * 2
WBUF = BN * BK * 2
XR, WR = 3, 4
LDS_W = XR * XBUF
LDS_TOTAL = LDS_W + WR * WBUF
ESTRIDE = 240
EBASE = 32768
WS_FLAG = 8 << 20
WS_BYTES = WS_FLAG + 32 * 16 * 4 * 128
WS_STAMP = 16 << 20

C_RDW = 2
C_RDX = 4
C_ST = 8
C_CUR = 9
ACC = 16
def acc(t, m):
    b = ACC + (t * 4 + m) * 4
    return f"v[{b}:{b+3}]"
def acc1(t, m, r): return ACC + (t * 4 + m) * 4 + r
C_WF = 128
C_XF = 184
C_E = 220
def wf(s, t): b = C_WF + s * 28 + t * 4; return f"v[{b}:{b+3}]"
def xf(s, m): b = C_XF + s * 16 + m * 4; return f"v[{b}:{b+3}]"
V_XOFF = 16
V_QOFF = 24
V_S = 32
V_P = 40
V_WR = 60
V_T = 76
V_SCO = 92
V_RAW = 96
V_Q = 100
V_DUM = 244
V_L16, V_FADDR, V_NONCE, V_FLAG, V_Z, V_NADDR = 236, 237, 238, 239, 240, 241
def qreg(i, c): return V_Q + i * 4 + c

S_X, S_Q, S_O, S_SC, S_Z, S_WS, S_DBG = 4, 8, 12, 16, 20, 64, 84
S_C24, S_M0B = 34, 38
S_M0, S_N0, S_W, S_MT, S_NT, S_W8 = 35, 36, 37, 39, 33, 31
S_READY, S_FBK, S_IMGB, S_WM0, S_FLG = 68, 69, 70, 71, 74
S_RET = 76
S_FBQ, S_FBL, S_FBG = 78, 79, 80
S_CNT, S_NON = 81, 82
S_XO, S_WO, S_IT, S_G, S_G0 = 94, 95, 96, 97, 98


class Emit:
    def __init__(self): self.lines = []
    def __call__(self, s): self.lines.append("    " + s)
    def label(self, s): self.lines.append(s + ":")

def stamp(e, real=False):
    if not STAMP: return
    e("s_memrealtime s[60:61]" if real else "s_memtime s[60:61]")
    e("s_waitcnt lgkmcnt(0)")
    e("s_mov_b32 m0, s58")
    e("s_nop 0")
    e(f"v_writelane_b32 v{C_ST}, s60, m0")
    e("s_add_u32 s58, s58, 1")
def stamp2(e):
    if S2: stamp(e)

def dequant_ops():
    ops = []
    r0 = V_RAW
    ops.append(f"v_lshlrev_b32 v{V_S}, 16, v{r0}")
    ops.append(f"v_and_b32 v{V_S+1}, 0xffff0000, v{r0}")
    ops.append(f"v_lshlrev_b32 v{V_S+2}, 16, v{r0+1}")
    ops.append(f"v_and_b32 v{V_S+3}, 0xffff0000, v{r0+1}")
    ops.append(f"v_lshlrev_b32 v{V_S+4}, 16, v{r0+2}")
    ops.append(f"v_and_b32 v{V_S+5}, 0xffff0000, v{r0+2}")
    ops.append(f"v_lshlrev_b32 v{V_S+6}, 16, v{r0+3}")
    ops.append(f"v_and_b32 v{V_S+7}, 0xffff0000, v{r0+3}")
    for c in range(4):
        for i in range(8):
            r = qreg(i, c)
            ops.append(f"v_fma_mix_f32 v{r}, v{r}, s{S_C24}, -v{V_S+4+c} op_sel_hi:[1,0,0]")
        for j in range(4):
            ops.append(f"v_cvt_pk_bf16_f32 v{V_P+4*c+j}, v{qreg(2*j,c)}, v{qreg(2*j+1,c)}")
        for j in range(4):
            ops.append(f"v_lshlrev_b32 v{qreg(2*j,c)}, 16, v{V_P+4*c+j}")
            ops.append(f"v_and_b32 v{qreg(2*j+1,c)}, 0xffff0000, v{V_P+4*c+j}")
        for i in range(8):
            r = qreg(i, c)
            ops.append(f"v_mul_f32 v{r}, v{r}, v{V_S+c}")
        for j in range(4):
            ops.append(f"v_cvt_pk_bf16_f32 v{V_P+4*c+j}, v{qreg(2*j,c)}, v{qreg(2*j+1,c)}")
        ops.append(f"ds_write_b128 v{V_T+8+c}, v[{V_P+4*c}:{V_P+4*c+3}]")
    return ops


def gen():
    e = Emit()
    hdr = open("standalone__w4a16_gemm_dequant__prompt.s.ref").read().split("\n")
    out = []
    for l in hdr:
        if l.startswith("; @launch"):
            out.append(f"; @launch grid=(256,1,1) block=(512,1,1) lds={LDS_TOTAL}")
            break
        out.append(l)
    out.append('.amdgcn_target "amdgcn-amd-amdhsa--gfx950"')
    out.append(".text")
    out.append(".globl standalone__w4a16_gemm_dequant__prompt_kernel")
    out.append(".p2align 8")
    out.append(".type standalone__w4a16_gemm_dequant__prompt_kernel,@function")
    out.append("standalone__w4a16_gemm_dequant__prompt_kernel:")

    def srd(d, lo, nbytes):
        e(f"s_mov_b32 s{d}, s{lo}")
        e(f"s_and_b32 s{d+1}, s{lo+1}, 0xffff")
        e(f"s_mov_b32 s{d+2}, {nbytes}")
        e(f"s_mov_b32 s{d+3}, 0x00020000")
    T = V_T
    def xdma(kreg, slot_off):
        e(f"s_add_u32 s24, s{S_M0B}, {slot_off}")
        for a in range(8):
            if a % 4 == 0:
                e(f"s_add_u32 m0, s24, {(a//4)*4096}")
                e("s_nop 0")
            e(f"buffer_load_dwordx4 v{V_XOFF+a}, s[{S_X}:{S_X+3}], s{kreg} offen offset:{(a%4)*1024} lds")

    e("s_cmp_ge_u32 s2, 256")
    e("s_cbranch_scc1 L_end")
    e("s_load_dwordx8 s[40:47], s[0:1], 0")
    e("s_load_dwordx4 s[48:51], s[0:1], 32")
    e("s_load_dwordx2 s[52:53], s[0:1], 48")
    if CPF:
        e("s_getpc_b64 s[90:91]")
        e("v_lshlrev_b32 v4, 7, v0")
        e("v_mov_b32 v3, s91")
        e("v_add_co_u32 v2, vcc, s90, v4")
        e("s_nop 1")
        e("v_addc_co_u32 v3, vcc, 0, v3, vcc")
        e(f"v_cmp_gt_u32 vcc, {CPF*1024}, v4")
        e("s_and_saveexec_b64 s[92:93], vcc")
        e("s_cbranch_execz L_nocpf")
        e("global_load_dword v255, v[2:3], off")
        e.label("L_nocpf")
        e("s_mov_b64 exec, s[92:93]")
    e("s_memrealtime s[54:55]")
    if STAMP:
        e("s_mov_b32 s58, 0")
        e(f"v_mov_b32 v{C_ST}, 0")
        stamp(e, True); stamp(e)
    e("s_and_b32 s24, s2, 7")
    e("s_lshr_b32 s25, s2, 3")
    e("s_and_b32 s26, s25, 3")
    e("s_lshl_b32 s24, s24, 2")
    e(f"s_add_u32 s{S_NT}, s24, s26")
    e(f"s_lshr_b32 s{S_MT}, s25, 2")
    if XMAP == 1:
        e(f"s_and_b32 s{S_MT}, s2, 7")
        e(f"s_lshr_b32 s{S_NT}, s2, 3")
    if XMAP == 2:
        e(f"s_and_b32 s24, s2, 1")
        e(f"s_lshl_b32 s24, s24, 2")
        e(f"s_bfe_u32 s25, s2, 0x20003")
        e(f"s_add_u32 s{S_MT}, s24, s25")
        e(f"s_bfe_u32 s24, s2, 0x20001")
        e(f"s_lshl_b32 s24, s24, 3")
        e(f"s_lshr_b32 s25, s2, 5")
        e(f"s_add_u32 s{S_NT}, s24, s25")
    if XMAP == 3:
        e(f"s_and_b32 s24, s2, 3")
        e(f"s_lshl_b32 s24, s24, 1")
        e(f"s_bfe_u32 s25, s2, 0x10003")
        e(f"s_add_u32 s{S_MT}, s24, s25")
        e(f"s_bfe_u32 s24, s2, 0x10002")
        e(f"s_lshl_b32 s24, s24, 4")
        e(f"s_lshr_b32 s25, s2, 4")
        e(f"s_add_u32 s{S_NT}, s24, s25")
    e(f"s_mul_i32 s{S_N0}, s{S_NT}, {BN}")
    e(f"s_lshl_b32 s{S_M0}, s{S_MT}, 8")
    e("v_lshrrev_b32 v1, 6, v0")
    e("v_and_b32 v10, 255, v0")
    e(f"v_readfirstlane_b32 s{S_W8}, v1")
    e("v_lshrrev_b32 v11, 5, v10")
    e("v_and_b32 v12, 31, v10")
    e("v_min_u32 v12, 27, v12")
    e(f"s_lshl_b32 s28, s{S_N0}, 2")
    e("v_lshl_add_u32 v14, v12, 4, s28")
    e(f"v_lshrrev_b32 v{V_SCO}, 1, v14")
    e(f"s_mov_b32 s27, {8*QROW}")
    e(f"v_mul_lo_u32 v13, v11, s27")
    e(f"v_add_u32 v{V_QOFF}, v14, v13")
    for i in range(1, 8):
        e(f"v_add_u32 v{V_QOFF+i}, {i*QROW}, v{V_QOFF}")
    e(f"s_mov_b32 s{S_C24}, 0x4b800000")
    e(f"s_and_b32 s{S_W}, s{S_W8}, 3")
    e(f"s_lshr_b32 s26, s{S_W8}, 2")
    e(f"s_lshl_b32 s{S_G}, s{S_MT}, 1")
    e(f"s_add_u32 s25, s{S_G}, s26")
    e(f"s_mul_i32 s{S_FBQ}, s25, {BK*QROW}")
    e(f"s_mul_i32 s{S_FBL}, s26, {WBUF}")
    e(f"s_mul_i32 s{S_FBG}, s{S_MT}, {N*2}")
    e(f"s_lshl_b32 s24, s{S_NT}, 4")
    e(f"s_add_u32 s24, s24, s25")
    e(f"s_mul_i32 s30, s24, {WBUF}")
    e(f"s_lshl_b32 s24, s24, 2")
    e(f"s_add_u32 s24, s24, s{S_W}")
    e(f"s_lshl_b32 s24, s24, 7")
    e(f"s_add_u32 s{S_FLG}, s24, {WS_FLAG}")
    if FORCEFB:
        e(f"s_cmp_eq_u32 s{S_MT}, {FORCEFB-1}")
        e(f"s_cselect_b32 s{S_FLG}, 0x40000000, s{S_FLG}")
    e(f"s_lshl_b32 s24, s{S_NT}, 2")
    e(f"v_mov_b32 v{V_NADDR}, s24")
    e(f"s_or_b32 s25, s{S_W8}, s{S_MT}")
    e(f"s_cmp_eq_u32 s25, 0")
    e("s_cselect_b32 s24, s24, 0x1000")
    if NONON: e("s_mov_b32 s24, 0x1000")
    e(f"v_mov_b32 v{T+6}, s24")
    e("s_waitcnt lgkmcnt(0)")
    stamp2(e)
    srd(S_SC, 44, 8 * N * 2)
    srd(S_Z, 46, 8 * N * 2)
    srd(S_Q, 42, K * N * 4)
    e(f"buffer_load_dwordx2 v[{V_RAW}:{V_RAW+1}], v{V_SCO}, s[{S_SC}:{S_SC+3}], s{S_FBG} offen")
    e(f"buffer_load_dwordx2 v[{V_RAW+2}:{V_RAW+3}], v{V_SCO}, s[{S_Z}:{S_Z+3}], s{S_FBG} offen")
    for i in range(8):
        r = qreg(i, 0)
        e(f"buffer_load_dwordx4 v[{r}:{r+3}], v{V_QOFF+i}, s[{S_Q}:{S_Q+3}], s{S_FBQ} offen{SHNT}")
    srd(S_DBG, 50, 256)
    e("s_or_b32 s54, s54, 1")
    e(f"v_mov_b32 v{T+7}, s54")
    e("s_mov_b64 exec, 1")
    e(f"buffer_store_dword v{T+7}, v{T+6}, s[{S_DBG}:{S_DBG+3}], 0 offen sc1")
    e("s_mov_b64 exec, -1")
    srd(S_X, 40, M * K * 2)
    srd(S_O, 48, M * N * 2)
    srd(S_WS, 52, WS_BYTES)
    e(f"v_and_b32 v{T+1}, 63, v0")
    e(f"v_bfe_u32 v{T+3}, v0, 4, 2")
    e(f"v_and_b32 v{T+2}, 3, v1")
    e(f"v_lshrrev_b32 v{T+8}, 3, v{T+1}")
    e(f"v_lshl_add_u32 v{T+8}, v{T+2}, 6, v{T+8}")
    e(f"v_add_u32 v{T+8}, s{S_M0}, v{T+8}")
    e(f"v_lshlrev_b32 v{T+8}, 11, v{T+8}")
    e(f"v_and_b32 v{T+9}, 7, v{T+1}")
    e(f"v_xor_b32 v{T+9}, v{T+9}, v{T+3}")
    e(f"v_xor_b32 v{T+10}, 4, v{T+9}")
    e(f"v_lshl_add_u32 v{T+9}, v{T+9}, 4, v{T+8}")
    e(f"v_lshl_add_u32 v{T+10}, v{T+10}, 4, v{T+8}")
    for a in range(8):
        e(f"v_add_u32 v{V_XOFF+a}, {a*8*XROW - (a%4)*1024}, v{T+9+(a&1)}")
    e(f"s_lshl_b32 s{S_M0B}, s{S_W}, 13")
    e(f"s_lshr_b32 s26, s{S_W8}, 2")
    e(f"s_add_u32 s29, s{S_G}, s26")
    e(f"s_lshl_b32 s29, s29, 7")
    e(f"s_lshl_b32 s28, s26, 15")
    if XPOS == 0: xdma(29, "s28")
    if XPE:
        e(f"v_lshrrev_b32 v{T+15}, 3, v{T+1}")
        e(f"s_lshl_b32 s24, s{S_NT}, 3")
        e(f"s_add_u32 s24, s24, s{S_M0}")
        e(f"v_add_u32 v{T+15}, s24, v{T+15}")
        e(f"v_lshlrev_b32 v{T+15}, 11, v{T+15}")
        e(f"v_and_b32 v{T+13}, 7, v{T+1}")
        e(f"v_lshl_add_u32 v{T+15}, v{T+13}, 4, v{T+15}")
        e(f"s_add_u32 s24, s{S_G}, s{S_W8}")
        e(f"s_and_b32 s24, s24, 15")
        e(f"s_lshl_b32 s24, s24, 7")
        e(f"buffer_load_dwordx4 v[{V_DUM}:{V_DUM+3}], v{T+15}, s[{S_X}:{S_X+3}], s24 offen")
        e(f"s_xor_b32 s24, s24, 1024")
        e(f"buffer_load_dwordx4 v[{V_DUM}:{V_DUM+3}], v{T+15}, s[{S_X}:{S_X+3}], s24 offen")
    e(f"v_lshrrev_b32 v{T+8}, 2, v12")
    e(f"v_and_b32 v{T+9}, 3, v12")
    e(f"v_and_b32 v{T+10}, 1, v{T+8}")
    e(f"v_lshlrev_b32 v{T+10}, 1, v{T+10}")
    e(f"v_lshrrev_b32 v{T+11}, 1, v{T+9}")
    e(f"v_add_u32 v{T+10}, v{T+10}, v{T+11}")
    e(f"v_lshlrev_b32 v{T+8}, 8, v{T+8}")
    e(f"v_lshl_add_u32 v{T+8}, v{T+9}, 6, v{T+8}")
    e(f"v_mul_u32_u24 v{T+12}, 1792, v11")
    e(f"v_add_u32 v{T+12}, v{T+12}, v{T+8}")
    e(f"v_add_u32 v{T+12}, {LDS_W}, v{T+12}")
    for c in range(4):
        e(f"v_xor_b32 v{T+11}, {c}, v{T+10}")
        e(f"v_lshl_add_u32 v{V_WR+c}, v{T+11}, 4, v{T+12}")
    e(f"v_lshlrev_b32 v{V_L16}, 4, v{T+1}")
    e(f"s_mul_i32 s24, s{S_W}, 3584")
    e(f"s_add_u32 s30, s30, s24")
    e(f"s_mul_i32 s{S_IMGB}, s{S_NT}, {16*WBUF}")
    e(f"s_add_u32 s{S_IMGB}, s{S_IMGB}, s24")
    e(f"s_add_u32 s{S_WM0}, s24, {LDS_W}")
    e(f"s_add_u32 s24, s{S_WM0}, s{S_FBL}")
    e(f"v_add_u32 v{T+14}, s24, v{V_L16}")
    e(f"v_mov_b32 v{V_Z}, 0")
    if NLE: e(f"buffer_load_dword v{V_NONCE}, v{V_NADDR}, s[{S_DBG}:{S_DBG+3}], 0 offen sc1")
    stamp2(e)
    e(f"s_waitcnt vmcnt({(9 if XPOS == 0 else 1) + (2 if XPE else 0) + NLE})")
    stamp2(e)
    e(f"s_call_b64 s[{S_RET}:{S_RET+1}], L_dq")
    stamp2(e)
    def share_out():
        for pc in range(4):
            e(f"ds_read_b128 v[{V_P+4*pc}:{V_P+4*pc+3}], v{T+14} offset:{pc*1024}")
        for pc in range(4):
            e(f"s_waitcnt lgkmcnt({3-pc})")
            if pc == 3: e("s_mov_b32 exec_hi, 0")
            e(f"buffer_store_dwordx4 v[{V_P+4*pc}:{V_P+4*pc+3}], v{V_L16}, s[{S_WS}:{S_WS+3}], s30 offen offset:{pc*1024} sc1")
            if pc == 3: e("s_mov_b32 exec_hi, -1")
    e(f"s_cmp_ge_u32 s{S_W8}, 4")
    e("s_cbranch_scc1 L_prod")
    share_out()
    if not NLE: e(f"buffer_load_dword v{V_NONCE}, v{V_NADDR}, s[{S_DBG}:{S_DBG+3}], 0 offen sc1")
    xdma(29, "s28")
    stamp2(e)

    def publish(tagl, store=True):
        e(f"v_readfirstlane_b32 s{S_NON}, v{V_NONCE}")
        e(f"s_cmp_lg_u32 s{S_NON}, 0")
        e(f"s_cbranch_scc1 L_n_got{tagl}")
        e(f"s_mov_b32 s{S_CNT}, 0")
        e.label(f"L_n_poll{tagl}")
        e(f"buffer_load_dword v{V_NONCE}, v{V_NADDR}, s[{S_DBG}:{S_DBG+3}], 0 offen sc1")
        e("s_waitcnt vmcnt(0)")
        e(f"v_readfirstlane_b32 s{S_NON}, v{V_NONCE}")
        e(f"s_cmp_lg_u32 s{S_NON}, 0")
        e(f"s_cbranch_scc1 L_n_got{tagl}")
        e("s_sleep 2")
        e(f"s_add_u32 s{S_CNT}, s{S_CNT}, 1")
        e(f"s_cmp_lt_u32 s{S_CNT}, {SPIN}")
        e(f"s_cbranch_scc1 L_n_poll{tagl}")
        e.label(f"L_n_got{tagl}")
        if store: flag()
    def flag():
        e("s_mov_b64 exec, 1")
        e(f"buffer_store_dword v{V_NONCE}, v{V_Z}, s[{S_WS}:{S_WS+3}], s{S_FLG} offen sc1")
        e("s_mov_b64 exec, -1")

    e("v_and_b32 v14, 15, v0")
    e("v_bfe_u32 v15, v0, 4, 2")
    e("v_lshrrev_b32 v10, 3, v14")
    e("v_xor_b32 v10, v10, v14")
    e("v_mul_u32_u24 v11, 1792, v15")
    e(f"v_add_u32 v11, {LDS_W}, v11")
    e(f"v_lshl_add_u32 v{C_RDW}, v10, 4, v11")
    e("v_xor_b32 v10, 2, v10")
    e(f"v_lshl_add_u32 v{C_RDW+1}, v10, 4, v11")
    e("v_lshrrev_b32 v10, 1, v14")
    e("v_xor_b32 v10, v10, v15")
    e("v_lshlrev_b32 v11, 13, v1")
    e("v_lshl_add_u32 v11, v14, 7, v11")
    e(f"v_lshl_add_u32 v{C_RDX}, v10, 4, v11")
    e(f"v_xor_b32 v{C_RDX+1}, 64, v{C_RDX}")
    for i in range(0, 112, 2):
        if not (V_P <= ACC + i < V_P + 16): e(f"v_mov_b64 v[{ACC+i}:{ACC+i+1}], 0")
    for i in range(0, 28, 2):
        e(f"v_mov_b64 v[{C_WF+28+i}:{C_WF+28+i+1}], 0")
    for i in range(0, 16, 2):
        e(f"v_mov_b64 v[{C_XF+16+i}:{C_XF+16+i+1}], 0")
    e(f"s_mov_b32 s{S_XO}, 0")
    e(f"s_mov_b32 s{S_WO}, 0")
    e(f"s_mov_b32 s{S_IT}, 0")
    e(f"v_mov_b32 v{C_CUR}, v{C_RDX}")
    e(f"v_mov_b32 v{C_CUR+1}, v{C_RDX+1}")
    e(f"v_mov_b32 v{C_CUR+2}, v{C_RDW}")
    e(f"v_mov_b32 v{C_CUR+3}, v{C_RDW+1}")
    e("s_waitcnt vmcnt(8)")
    for i in range(0, 16, 2):
        e(f"v_mov_b64 v[{V_P+i}:{V_P+i+1}], 0")
    publish("c")
    e(f"s_setprio {PRIO}")
    e("s_waitcnt vmcnt(1)")
    stamp(e); stamp(e)
    def wread(s_set, t, s): return f"ds_read_b128 {wf(s_set,t)}, v{C_CUR+2+(t&1)} offset:{s*7168+t*256}"
    def xread(s_set, m, s): return f"ds_read_b128 {xf(s_set,m)}, v{C_CUR+s} offset:{m*2048}"
    def mfmas(s_set, ts):
        return [f"v_mfma_f32_16x16x32_bf16 {acc(t,m)}, {wf(s_set,t)}, {xf(s_set,m)}, {acc(t,m)}" for t in ts for m in range(4)]
    def interleave(mf, fill):
        j = 0
        for m_ in mf:
            e(m_)
            if j < len(fill):
                e(fill[j]); j += 1
        while j < len(fill):
            e(fill[j]); j += 1
    adv = [f"s_add_u32 s{S_XO}, s{S_XO}, {XBUF}", f"s_cmp_eq_u32 s{S_XO}, {XR*XBUF}", f"s_cselect_b32 s{S_XO}, 0, s{S_XO}",
           f"s_add_u32 s{S_WO}, s{S_WO}, {WBUF}", f"s_cmp_eq_u32 s{S_WO}, {WR*WBUF}", f"s_cselect_b32 s{S_WO}, 0, s{S_WO}"]
    e.label("L_cloop")
    e("s_barrier")
    fill = [xread(0, m, 0) for m in range(4)] + [wread(0, t, 0) for t in range(7)]
    for f in fill[:3]: e(f)
    interleave(mfmas(1, [4, 5, 6]), fill[3:])
    e("s_waitcnt lgkmcnt(0)")
    fill = [xread(1, m, 1) for m in range(4)] + [wread(1, t, 1) for t in range(7)]
    interleave(mfmas(0, range(7)), fill)
    e("s_waitcnt lgkmcnt(0)")
    mf = mfmas(1, [0, 1, 2, 3])
    interleave(mf[:-2], adv + [f"v_add_u32 v{C_CUR}, s{S_XO}, v{C_RDX}", f"v_add_u32 v{C_CUR+1}, s{S_XO}, v{C_RDX+1}",
                               f"v_add_u32 v{C_CUR+2}, s{S_WO}, v{C_RDW}", f"v_add_u32 v{C_CUR+3}, s{S_WO}, v{C_RDW+1}",
                               f"s_add_u32 s{S_IT}, s{S_IT}, 1"])
    stamp(e)
    e(f"s_cmp_lt_u32 s{S_IT}, 15")
    for m_ in mf[-2:]: e(m_)
    e("s_cbranch_scc1 L_cloop")
    e("s_barrier")
    fill = [xread(0, m, 0) for m in range(4)] + [wread(0, t, 0) for t in range(7)]
    for f in fill[:3]: e(f)
    interleave(mfmas(1, [4, 5, 6]), fill[3:])
    for f in [xread(1, m, 1) for m in range(4)] + [wread(1, t, 1) for t in range(7)]: e(f)
    e(f"s_mov_b32 s27, {ESTRIDE}")
    e("v_lshl_add_u32 v13, v1, 6, v14")
    e("v_mul_lo_u32 v13, v13, s27")
    e("v_lshl_add_u32 v13, v15, 3, v13")
    e(f"v_add_u32 v13, {EBASE}, v13")
    def mf_m(m):
        return [f"v_mfma_f32_16x16x32_bf16 {acc(t,m)}, {wf(s_,t)}, {xf(s_,m)}, {acc(t,m)}" for s_ in range(2) for t in range(7)]
    def conv(m):
        o = []
        for t in range(7):
            b = C_E + t * 2
            o.append(f"v_cvt_pk_bf16_f32 v{b}, v{acc1(t,m,0)}, v{acc1(t,m,1)}")
            o.append(f"v_cvt_pk_bf16_f32 v{b+1}, v{acc1(t,m,2)}, v{acc1(t,m,3)}")
            o.append(f"ds_write_b64 v13, v[{b}:{b+1}] offset:{m*16*ESTRIDE + t*32}")
        return o
    e("s_waitcnt lgkmcnt(11)")
    mm = mf_m(0)
    for m_ in mm[:7]: e(m_)
    e("s_waitcnt lgkmcnt(0)")
    for m_ in mm[7:]: e(m_)
    for m in range(1, 4):
        mm = mf_m(m); cv = conv(m - 1)
        for m_ in mm[:2]: e(m_)
        j = 0
        for m_ in mm[2:]:
            e(m_)
            for _ in range(2):
                if j < len(cv):
                    e(cv[j]); j += 1
        e("s_waitcnt lgkmcnt(0)")
        e("s_barrier")
    e("s_nop 7")
    for c_ in conv(3): e(c_)
    e("s_waitcnt lgkmcnt(0)")
    e("s_barrier")
    stamp(e)
    e("s_branch L_fin")

    e.label("L_prod")
    if not NLE: e(f"buffer_load_dword v{V_NONCE}, v{V_NADDR}, s[{S_DBG}:{S_DBG+3}], 0 offen sc1")
    xdma(29, "s28")
    stamp2(e)
    e(f"v_min_u32 v{T+8}, 15, v{T+1}")
    e(f"s_lshl_b32 s24, s{S_NT}, 4")
    e(f"v_add_u32 v{T+8}, s24, v{T+8}")
    e(f"v_lshl_add_u32 v{T+8}, v{T+8}, 2, v{T+2}")
    e(f"v_lshlrev_b32 v{T+8}, 7, v{T+8}")
    e(f"v_add_u32 v{V_FADDR}, {WS_FLAG}, v{T+8}")
    e(f"s_mov_b32 s{S_READY}, 0")
    e(f"s_mov_b32 s{S_FBK}, 0")
    if XPF:
        e(f"v_lshrrev_b32 v{T+15}, 3, v{T+1}")
        e(f"s_lshl_b32 s24, s{S_NT}, 3")
        e(f"s_add_u32 s24, s24, s{S_M0}")
        e(f"v_add_u32 v{T+15}, s24, v{T+15}")
        e(f"v_lshlrev_b32 v{T+15}, 11, v{T+15}")
        e(f"v_and_b32 v{T+13}, 7, v{T+1}")
        e(f"v_lshl_add_u32 v{T+15}, v{T+13}, 4, v{T+15}")
        e(f"v_lshl_add_u32 v{T+15}, v{T+2}, 7, v{T+15}")
    e("s_waitcnt vmcnt(8)")
    publish("p", store=False)
    e(f"s_mov_b32 s{S_G0}, s{S_G}")
    e(f"s_mov_b32 s{S_IT}, 2")
    e(f"s_add_u32 s{S_G}, s{S_G}, 2")
    e(f"s_and_b32 s{S_G}, s{S_G}, 15")
    e(f"s_mov_b32 s{S_XO}, {2*XBUF}")
    e(f"s_mov_b32 s{S_WO}, {2*WBUF}")
    stamp(e)
    e("s_barrier")
    stamp(e)
    e.label("L_ploop")
    e(f"s_bitcmp1_b32 s{S_READY}, s{S_G}")
    e("s_cbranch_scc1 L_rdyL")
    e(f"s_cmp_eq_u32 s{S_NON}, 0")
    e("s_cbranch_scc1 L_fbL")
    e(f"s_mov_b32 s{S_CNT}, s{S_FBK}")
    e.label("L_pollL")
    e(f"buffer_load_dword v{V_FLAG}, v{V_FADDR}, s[{S_WS}:{S_WS+3}], 0 offen sc1")
    e("s_waitcnt vmcnt(0)")
    e(f"v_cmp_eq_u32 vcc, v{V_FLAG}, v{V_NONCE}")
    e(f"s_mov_b32 s{S_READY}, vcc_lo")
    e(f"s_bitcmp1_b32 s{S_READY}, s{S_G}")
    e("s_cbranch_scc1 L_rdyL")
    e("s_sleep 2")
    e(f"s_add_u32 s{S_CNT}, s{S_CNT}, 1")
    e(f"s_cmp_lt_u32 s{S_CNT}, {SPIN}")
    e("s_cbranch_scc1 L_pollL")
    e.label("L_fbL")
    e(f"s_mov_b32 s{S_FBK}, {SPIN}")
    e(f"s_mul_i32 s{S_FBQ}, s{S_G}, {BK*QROW}")
    e(f"s_mov_b32 s{S_FBL}, s{S_WO}")
    e(f"s_lshr_b32 s24, s{S_G}, 1")
    e(f"s_mul_i32 s{S_FBG}, s24, {N*2}")
    e(f"buffer_load_dwordx2 v[{V_RAW}:{V_RAW+1}], v{V_SCO}, s[{S_SC}:{S_SC+3}], s{S_FBG} offen")
    e(f"buffer_load_dwordx2 v[{V_RAW+2}:{V_RAW+3}], v{V_SCO}, s[{S_Z}:{S_Z+3}], s{S_FBG} offen")
    for i in range(8):
        r = qreg(i, 0)
        e(f"buffer_load_dwordx4 v[{r}:{r+3}], v{V_QOFF+i}, s[{S_Q}:{S_Q+3}], s{S_FBQ} offen")
    e("s_waitcnt vmcnt(0)")
    e(f"s_call_b64 s[{S_RET}:{S_RET+1}], L_dq")
    e("s_branch L_doneL")
    e.label("L_rdyL")
    e(f"s_mul_i32 s27, s{S_G}, {WBUF}")
    e(f"s_add_u32 s27, s27, s{S_IMGB}")
    e(f"s_add_u32 m0, s{S_WM0}, s{S_WO}")
    e("s_nop 0")
    for pce in range(3):
        e(f"buffer_load_dwordx4 v{V_L16}, s[{S_WS}:{S_WS+3}], s27 offen offset:{pce*1024} sc1 lds")
    e("s_mov_b32 exec_hi, 0")
    e(f"buffer_load_dwordx4 v{V_L16}, s[{S_WS}:{S_WS+3}], s27 offen offset:3072 sc1 lds")
    e("s_mov_b32 exec_hi, -1")
    e.label("L_doneL")
    e(f"s_lshl_b32 s29, s{S_G}, 7")
    xdma(29, f"s{S_XO}")
    for a_ in adv: e(a_)
    e(f"s_add_u32 s{S_G}, s{S_G}, 2")
    e(f"s_and_b32 s{S_G}, s{S_G}, 15")
    e(f"s_add_u32 s24, s{S_G}, 3")
    e(f"s_and_b32 s24, s24, 15")
    e(f"s_cmp_eq_u32 s{S_G}, s{S_G0}")
    e(f"s_cselect_b32 s{S_G}, s24, s{S_G}")
    stamp(e)
    e("s_waitcnt vmcnt(12)")
    e(f"s_cmp_lg_u32 s{S_IT}, {SO_AT}")
    e("s_cbranch_scc1 L_noso")
    share_out()
    if XPF:
        for i in range(4):
            e(f"s_mov_b32 s24, {i*512}")
            e(f"buffer_load_dwordx4 v[{V_DUM}:{V_DUM+3}], v{T+15}, s[{S_X}:{S_X+3}], s24 offen")
    e.label("L_noso")
    e(f"s_cmp_lg_u32 s{S_IT}, {SO_AT+1}")
    e("s_cbranch_scc1 L_nofl")
    flag()
    e.label("L_nofl")
    e(f"s_add_u32 s{S_IT}, s{S_IT}, 1")
    e(f"s_cmp_lt_u32 s{S_IT}, 16")
    e("s_barrier")
    e("s_cbranch_scc1 L_ploop")
    stamp(e)
    e("s_waitcnt vmcnt(0)")
    e("s_barrier")
    stamp(e)
    e("v_and_b32 v10, 63, v0")
    e("v_mul_u32_u24 v11, 0x1250, v10")
    e("v_lshrrev_b32 v11, 16, v11")
    e("v_mul_u32_u24 v12, 14, v11")
    e("v_sub_u32 v12, v10, v12")
    e("v_and_b32 v13, 3, v1")
    e("v_lshl_add_u32 v13, v13, 6, v11")
    e(f"s_mov_b32 s27, {ESTRIDE}")
    e("v_mul_lo_u32 v14, v13, s27")
    e("v_lshl_add_u32 v14, v12, 4, v14")
    e(f"v_add_u32 v14, {EBASE}, v14")
    e(f"v_add_u32 v13, s{S_M0}, v13")
    e(f"s_mov_b32 s27, {OROW}")
    e("v_mul_lo_u32 v13, v13, s27")
    e(f"s_lshl_b32 s28, s{S_N0}, 1")
    e("v_lshl_add_u32 v13, v12, 4, v13")
    e("v_add_u32 v13, s28, v13")
    e("v_cmp_gt_u32 vcc, 56, v10")
    e("s_and_b64 exec, exec, vcc")
    for m in range(4):
        e("s_barrier")
        for i in range(4):
            b = 128 + m * 16 + i * 4
            e(f"ds_read_b128 v[{b}:{b+3}], v14 offset:{(m*16+i*4)*ESTRIDE}")
        for i in range(4):
            b = 128 + m * 16 + i * 4
            e(f"s_mov_b32 s24, {(m*16+i*4)*OROW}")
            e(f"s_waitcnt lgkmcnt({3-i})")
            e(f"buffer_store_dwordx4 v[{b}:{b+3}], v13, s[{S_O}:{S_O+3}], s24 offen")
    e("s_mov_b64 exec, -1")
    e("s_branch L_fin")

    e.label("L_dq")
    for c in range(4):
        e(f"v_add_u32 v{T+8+c}, s{S_FBL}, v{V_WR+c}")
    for op in dequant_ops(): e(op)
    e("s_waitcnt lgkmcnt(0)")
    e(f"s_setpc_b64 s[{S_RET}:{S_RET+1}]")

    e.label("L_fin")
    if STAMP:
        stamp(e)
        e("s_waitcnt vmcnt(0)")
        stamp(e); stamp(e, True)
        e("s_mov_b32 s64, s52")
        e("s_and_b32 s65, s53, 0xffff")
        e("s_mov_b32 s66, 0x10000000")
        e("s_mov_b32 s67, 0x00020000")
        e("v_lshlrev_b32 v1, 2, v0")
        e("s_lshl_b32 s24, s2, 11")
        e(f"s_add_u32 s24, s24, {WS_STAMP}")
        e(f"buffer_store_dword v{C_ST}, v1, s[64:67], s24 offen")
    e.label("L_end")
    e("s_endpgm")

    out += e.lines
    out.append('.section .rodata,"a"')
    out.append(".p2align 6")
    out.append(".amdhsa_kernel standalone__w4a16_gemm_dequant__prompt_kernel")
    out.append("  .amdhsa_next_free_vgpr 256")
    out.append("  .amdhsa_next_free_sgpr 102")
    out.append("  .amdhsa_accum_offset 256")
    out.append("  .amdhsa_group_segment_fixed_size 0")
    out.append("  .amdhsa_kernarg_size 56")
    out.append("  .amdhsa_user_sgpr_count 2")
    out.append("  .amdhsa_user_sgpr_kernarg_segment_ptr 1")
    out.append("  .amdhsa_system_sgpr_workgroup_id_x 1")
    out.append("  .amdhsa_float_denorm_mode_32 3")
    out.append("  .amdhsa_float_denorm_mode_16_64 3")
    out.append(".end_amdhsa_kernel")
    return "\n".join(out) + "\n"


if __name__ == "__main__":
    dst = sys.argv[1] if len(sys.argv) > 1 else "standalone__w4a16_gemm_dequant__prompt.s"
    open(dst, "w").write(gen())
    print("wrote", dst)
```

```python
import sys, os
STAMP = bool(os.environ.get('STAMP'))
S2 = bool(os.environ.get('STAMP2'))
PRIO = int(os.environ.get('PRIO', '3'))
SPIN = int(os.environ.get('SPIN', '64'))
FORCEFB = int(os.environ.get('FORCEFB', '0'))
NONON = int(os.environ.get('NONON', '0'))
XPF = int(os.environ.get('XPF', '1'))
CPF = int(os.environ.get('CPF', '6'))
XMAP = int(os.environ.get('XMAP', '2'))
NLE = 0
XPC = int(os.environ.get('XPC', '1'))
XPOS = int(os.environ.get('XPOS', '1'))
XPE = int(os.environ.get('XPE', '0'))
SO_AT = int(os.environ.get('SO_AT', '2'))
PRE2 = int(os.environ.get('PRE2', '1'))
SHNT = ' nt' if int(os.environ.get('SHNT', '1')) else ''

M, N, K = 2048, 3584, 1024
BM, BN, BK = 256, 112, 64
QROW = N * 4
XROW = K * 2
OROW = N * 2
XBUF = BM * BK * 2
WBUF = BN * BK * 2
XR, WR = 3, 4
LDS_W = XR * XBUF
LDS_TOTAL = LDS_W + WR * WBUF
ESTRIDE = 240
EBASE = 32768
WS_FLAG = 8 << 20
WS_BYTES = WS_FLAG + 32 * 16 * 4 * 128
WS_STAMP = 16 << 20

C_RDW = 2
C_RDX = 4
C_ST = 8
C_CUR = 9
ACC = 16
def acc(t, m):
    b = ACC + (t * 4 + m) * 4
    return f"v[{b}:{b+3}]"
def acc1(t, m, r): return ACC + (t * 4 + m) * 4 + r
C_WF = 128
C_XF = 184
C_E = 220
def wf(s, t): b = C_WF + s * 28 + t * 4; return f"v[{b}:{b+3}]"
def xf(s, m): b = C_XF + s * 16 + m * 4; return f"v[{b}:{b+3}]"
V_XOFF = 16
V_QOFF = 24
V_S = 32
V_P = 40
V_WR = 60
V_T = 76
V_SCO = 92
V_RAW = 96
V_Q = 100
V_DUM = 244
V_L16, V_FADDR, V_NONCE, V_FLAG, V_Z, V_NADDR = 236, 237, 238, 239, 240, 241
def qreg(i, c): return V_Q + i * 4 + c

S_X, S_Q, S_O, S_SC, S_Z, S_WS, S_DBG = 4, 8, 12, 16, 20, 64, 84
S_C24, S_M0B = 34, 38
S_M0, S_N0, S_W, S_MT, S_NT, S_W8 = 35, 36, 37, 39, 33, 31
S_READY, S_FBK, S_IMGB, S_WM0, S_FLG = 68, 69, 70, 71, 74
S_RET = 76
S_FBQ, S_FBL, S_FBG = 78, 79, 80
S_CNT, S_NON = 81, 82
S_XO, S_WO, S_IT, S_G, S_G0 = 94, 95, 96, 97, 98


class Emit:
    def __init__(self): self.lines = []
    def __call__(self, s): self.lines.append("    " + s)
    def label(self, s): self.lines.append(s + ":")

def stamp(e, real=False):
    if not STAMP: return
    e("s_memrealtime s[60:61]" if real else "s_memtime s[60:61]")
    e("s_waitcnt lgkmcnt(0)")
    e("s_mov_b32 m0, s58")
    e("s_nop 0")
    e(f"v_writelane_b32 v{C_ST}, s60, m0")
    e("s_add_u32 s58, s58, 1")
def stamp2(e):
    if S2: stamp(e)

def dequant_ops():
    ops = []
    r0 = V_RAW
    ops.append(f"v_lshlrev_b32 v{V_S}, 16, v{r0}")
    ops.append(f"v_and_b32 v{V_S+1}, 0xffff0000, v{r0}")
    ops.append(f"v_lshlrev_b32 v{V_S+2}, 16, v{r0+1}")
    ops.append(f"v_and_b32 v{V_S+3}, 0xffff0000, v{r0+1}")
    ops.append(f"v_lshlrev_b32 v{V_S+4}, 16, v{r0+2}")
    ops.append(f"v_and_b32 v{V_S+5}, 0xffff0000, v{r0+2}")
    ops.append(f"v_lshlrev_b32 v{V_S+6}, 16, v{r0+3}")
    ops.append(f"v_and_b32 v{V_S+7}, 0xffff0000, v{r0+3}")
    for c in range(4):
        for i in range(8):
            r = qreg(i, c)
            ops.append(f"v_fma_mix_f32 v{r}, v{r}, s{S_C24}, -v{V_S+4+c} op_sel_hi:[1,0,0]")
        for j in range(4):
            ops.append(f"v_cvt_pk_bf16_f32 v{V_P+4*c+j}, v{qreg(2*j,c)}, v{qreg(2*j+1,c)}")
        for j in range(4):
            ops.append(f"v_lshlrev_b32 v{qreg(2*j,c)}, 16, v{V_P+4*c+j}")
            ops.append(f"v_and_b32 v{qreg(2*j+1,c)}, 0xffff0000, v{V_P+4*c+j}")
        for i in range(8):
            r = qreg(i, c)
            ops.append(f"v_mul_f32 v{r}, v{r}, v{V_S+c}")
        for j in range(4):
            ops.append(f"v_cvt_pk_bf16_f32 v{V_P+4*c+j}, v{qreg(2*j,c)}, v{qreg(2*j+1,c)}")
        ops.append(f"ds_write_b128 v{V_T+8+c}, v[{V_P+4*c}:{V_P+4*c+3}]")
    return ops


def gen():
    e = Emit()
    hdr = open("standalone__w4a16_gemm_dequant__prompt.s.ref").read().split("\n")
    out = []
    for l in hdr:
        if l.startswith("; @launch"):
            out.append(f"; @launch grid=(256,1,1) block=(512,1,1) lds={LDS_TOTAL}")
            break
        out.append(l)
    out.append('.amdgcn_target "amdgcn-amd-amdhsa--gfx950"')
    out.append(".text")
    out += [
        "; Fused W4A16 dequant + bf16 GEMM.  One 256(M) x 112(N) tile per workgroup, K in 16 steps of 64.",
        "; Waves 0-3: MFMA consumers (64 x 112 each, v_mfma_f32_16x16x32_bf16, A = w^T, B = x).  Waves 4-7: LDS-DMA producers.",
        "; The 8 workgroups that share an N tile split the dequantisation: the workgroup with m-tile g dequantises K steps",
        "; 2g and 2g+1 (w = bf16(bf16(q - z) * s), exactly as the reference), uses them at once and publishes them in d_ws",
        "; (bf16, LDS image layout, write-through stores, then one hand-off word per wave).  Every workgroup walks K in a",
        "; rotated order and fetches the other 14 images by LDS-DMA.  Hand-off words hold a per-launch nonce that the group",
        "; leader posts in d_debug.  All waits are bounded: a missing part is dequantised locally (L_fbL), so neither",
        "; progress nor the result depends on placement, residency or on what d_ws held before.",
    ]
    out.append(".globl standalone__w4a16_gemm_dequant__prompt_kernel")
    out.append(".p2align 8")
    out.append(".type standalone__w4a16_gemm_dequant__prompt_kernel,@function")
    out.append("standalone__w4a16_gemm_dequant__prompt_kernel:")

    def srd(d, lo, nbytes):
        e(f"s_mov_b32 s{d}, s{lo}")
        e(f"s_and_b32 s{d+1}, s{lo+1}, 0xffff")
        e(f"s_mov_b32 s{d+2}, {nbytes}")
        e(f"s_mov_b32 s{d+3}, 0x00020000")
    T = V_T
    def xdma(kreg, slot_off):
        e(f"s_add_u32 s24, s{S_M0B}, {slot_off}")
        for a in range(8):
            if a % 4 == 0:
                e(f"s_add_u32 m0, s24, {(a//4)*4096}")
                e("s_nop 0")
            e(f"buffer_load_dwordx4 v{V_XOFF+a}, s[{S_X}:{S_X+3}], s{kreg} offen offset:{(a%4)*1024} lds")

    e("s_cmp_ge_u32 s2, 256")
    e("s_cbranch_scc1 L_end")
    e("s_load_dwordx8 s[40:47], s[0:1], 0")
    e("s_load_dwordx4 s[48:51], s[0:1], 32")
    e("s_load_dwordx2 s[52:53], s[0:1], 48")
    if CPF:
        e("s_getpc_b64 s[90:91]")
        e("v_lshlrev_b32 v4, 7, v0")
        e("v_mov_b32 v3, s91")
        e("v_add_co_u32 v2, vcc, s90, v4")
        e("s_nop 1")
        e("v_addc_co_u32 v3, vcc, 0, v3, vcc")
        e(f"v_cmp_gt_u32 vcc, {CPF*1024}, v4")
        e("s_and_saveexec_b64 s[92:93], vcc")
        e("s_cbranch_execz L_nocpf")
        e("global_load_dword v255, v[2:3], off")
        e.label("L_nocpf")
        e("s_mov_b64 exec, s[92:93]")
    e("s_memrealtime s[54:55]")
    if STAMP:
        e("s_mov_b32 s58, 0")
        e(f"v_mov_b32 v{C_ST}, 0")
        stamp(e, True); stamp(e)
    e("s_and_b32 s24, s2, 7")
    e("s_lshr_b32 s25, s2, 3")
    e("s_and_b32 s26, s25, 3")
    e("s_lshl_b32 s24, s24, 2")
    e(f"s_add_u32 s{S_NT}, s24, s26")
    e(f"s_lshr_b32 s{S_MT}, s25, 2")
    if XMAP == 1:
        e(f"s_and_b32 s{S_MT}, s2, 7")
        e(f"s_lshr_b32 s{S_NT}, s2, 3")
    if XMAP == 2:
        e(f"s_and_b32 s24, s2, 1")
        e(f"s_lshl_b32 s24, s24, 2")
        e(f"s_bfe_u32 s25, s2, 0x20003")
        e(f"s_add_u32 s{S_MT}, s24, s25")
        e(f"s_bfe_u32 s24, s2, 0x20001")
        e(f"s_lshl_b32 s24, s24, 3")
        e(f"s_lshr_b32 s25, s2, 5")
        e(f"s_add_u32 s{S_NT}, s24, s25")
    if XMAP == 3:
        e(f"s_and_b32 s24, s2, 3")
        e(f"s_lshl_b32 s24, s24, 1")
        e(f"s_bfe_u32 s25, s2, 0x10003")
        e(f"s_add_u32 s{S_MT}, s24, s25")
        e(f"s_bfe_u32 s24, s2, 0x10002")
        e(f"s_lshl_b32 s24, s24, 4")
        e(f"s_lshr_b32 s25, s2, 4")
        e(f"s_add_u32 s{S_NT}, s24, s25")
    e(f"s_mul_i32 s{S_N0}, s{S_NT}, {BN}")
    e(f"s_lshl_b32 s{S_M0}, s{S_MT}, 8")
    e("v_lshrrev_b32 v1, 6, v0")
    e("v_and_b32 v10, 255, v0")
    e(f"v_readfirstlane_b32 s{S_W8}, v1")
    e("v_lshrrev_b32 v11, 5, v10")
    e("v_and_b32 v12, 31, v10")
    e("v_min_u32 v12, 27, v12")
    e(f"s_lshl_b32 s28, s{S_N0}, 2")
    e("v_lshl_add_u32 v14, v12, 4, s28")
    e(f"v_lshrrev_b32 v{V_SCO}, 1, v14")
    e(f"s_mov_b32 s27, {8*QROW}")
    e(f"v_mul_lo_u32 v13, v11, s27")
    e(f"v_add_u32 v{V_QOFF}, v14, v13")
    for i in range(1, 8):
        e(f"v_add_u32 v{V_QOFF+i}, {i*QROW}, v{V_QOFF}")
    e(f"s_mov_b32 s{S_C24}, 0x4b800000")
    e(f"s_and_b32 s{S_W}, s{S_W8}, 3")
    e(f"s_lshr_b32 s26, s{S_W8}, 2")
    e(f"s_lshl_b32 s{S_G}, s{S_MT}, 1")
    e(f"s_add_u32 s25, s{S_G}, s26")
    e(f"s_mul_i32 s{S_FBQ}, s25, {BK*QROW}")
    e(f"s_mul_i32 s{S_FBL}, s26, {WBUF}")
    e(f"s_mul_i32 s{S_FBG}, s{S_MT}, {N*2}")
    e(f"s_lshl_b32 s24, s{S_NT}, 4")
    e(f"s_add_u32 s24, s24, s25")
    e(f"s_mul_i32 s30, s24, {WBUF}")
    e(f"s_lshl_b32 s24, s24, 2")
    e(f"s_add_u32 s24, s24, s{S_W}")
    e(f"s_lshl_b32 s24, s24, 7")
    e(f"s_add_u32 s{S_FLG}, s24, {WS_FLAG}")
    if FORCEFB:
        e(f"s_cmp_eq_u32 s{S_MT}, {FORCEFB-1}")
        e(f"s_cselect_b32 s{S_FLG}, 0x40000000, s{S_FLG}")
    e(f"s_lshl_b32 s24, s{S_NT}, 2")
    e(f"v_mov_b32 v{V_NADDR}, s24")
    e(f"s_or_b32 s25, s{S_W8}, s{S_MT}")
    e(f"s_cmp_eq_u32 s25, 0")
    e("s_cselect_b32 s24, s24, 0x1000")
    if NONON: e("s_mov_b32 s24, 0x1000")
    e(f"v_mov_b32 v{T+6}, s24")
    e("s_waitcnt lgkmcnt(0)")
    stamp2(e)
    srd(S_SC, 44, 8 * N * 2)
    srd(S_Z, 46, 8 * N * 2)
    srd(S_Q, 42, K * N * 4)
    e(f"buffer_load_dwordx2 v[{V_RAW}:{V_RAW+1}], v{V_SCO}, s[{S_SC}:{S_SC+3}], s{S_FBG} offen")
    e(f"buffer_load_dwordx2 v[{V_RAW+2}:{V_RAW+3}], v{V_SCO}, s[{S_Z}:{S_Z+3}], s{S_FBG} offen")
    for i in range(8):
        r = qreg(i, 0)
        e(f"buffer_load_dwordx4 v[{r}:{r+3}], v{V_QOFF+i}, s[{S_Q}:{S_Q+3}], s{S_FBQ} offen{SHNT}")
    srd(S_DBG, 50, 256)
    e("s_or_b32 s54, s54, 1")
    e(f"v_mov_b32 v{T+7}, s54")
    e("s_mov_b64 exec, 1")
    e(f"buffer_store_dword v{T+7}, v{T+6}, s[{S_DBG}:{S_DBG+3}], 0 offen sc1")
    e("s_mov_b64 exec, -1")
    srd(S_X, 40, M * K * 2)
    srd(S_O, 48, M * N * 2)
    srd(S_WS, 52, WS_BYTES)
    e(f"v_and_b32 v{T+1}, 63, v0")
    e(f"v_bfe_u32 v{T+3}, v0, 4, 2")
    e(f"v_and_b32 v{T+2}, 3, v1")
    e(f"v_lshrrev_b32 v{T+8}, 3, v{T+1}")
    e(f"v_lshl_add_u32 v{T+8}, v{T+2}, 6, v{T+8}")
    e(f"v_add_u32 v{T+8}, s{S_M0}, v{T+8}")
    e(f"v_lshlrev_b32 v{T+8}, 11, v{T+8}")
    e(f"v_and_b32 v{T+9}, 7, v{T+1}")
    e(f"v_xor_b32 v{T+9}, v{T+9}, v{T+3}")
    e(f"v_xor_b32 v{T+10}, 4, v{T+9}")
    e(f"v_lshl_add_u32 v{T+9}, v{T+9}, 4, v{T+8}")
    e(f"v_lshl_add_u32 v{T+10}, v{T+10}, 4, v{T+8}")
    for a in range(8):
        e(f"v_add_u32 v{V_XOFF+a}, {a*8*XROW - (a%4)*1024}, v{T+9+(a&1)}")
    e(f"s_lshl_b32 s{S_M0B}, s{S_W}, 13")
    e(f"s_lshr_b32 s26, s{S_W8}, 2")
    e(f"s_add_u32 s29, s{S_G}, s26")
    e(f"s_lshl_b32 s29, s29, 7")
    e(f"s_lshl_b32 s28, s26, 15")
    if XPOS == 0: xdma(29, "s28")
    if XPE:
        e(f"v_lshrrev_b32 v{T+15}, 3, v{T+1}")
        e(f"s_lshl_b32 s24, s{S_NT}, 3")
        e(f"s_add_u32 s24, s24, s{S_M0}")
        e(f"v_add_u32 v{T+15}, s24, v{T+15}")
        e(f"v_lshlrev_b32 v{T+15}, 11, v{T+15}")
        e(f"v_and_b32 v{T+13}, 7, v{T+1}")
        e(f"v_lshl_add_u32 v{T+15}, v{T+13}, 4, v{T+15}")
        e(f"s_add_u32 s24, s{S_G}, s{S_W8}")
        e(f"s_and_b32 s24, s24, 15")
        e(f"s_lshl_b32 s24, s24, 7")
        e(f"buffer_load_dwordx4 v[{V_DUM}:{V_DUM+3}], v{T+15}, s[{S_X}:{S_X+3}], s24 offen")
        e(f"s_xor_b32 s24, s24, 1024")
        e(f"buffer_load_dwordx4 v[{V_DUM}:{V_DUM+3}], v{T+15}, s[{S_X}:{S_X+3}], s24 offen")
    e(f"v_lshrrev_b32 v{T+8}, 2, v12")
    e(f"v_and_b32 v{T+9}, 3, v12")
    e(f"v_and_b32 v{T+10}, 1, v{T+8}")
    e(f"v_lshlrev_b32 v{T+10}, 1, v{T+10}")
    e(f"v_lshrrev_b32 v{T+11}, 1, v{T+9}")
    e(f"v_add_u32 v{T+10}, v{T+10}, v{T+11}")
    e(f"v_lshlrev_b32 v{T+8}, 8, v{T+8}")
    e(f"v_lshl_add_u32 v{T+8}, v{T+9}, 6, v{T+8}")
    e(f"v_mul_u32_u24 v{T+12}, 1792, v11")
    e(f"v_add_u32 v{T+12}, v{T+12}, v{T+8}")
    e(f"v_add_u32 v{T+12}, {LDS_W}, v{T+12}")
    for c in range(4):
        e(f"v_xor_b32 v{T+11}, {c}, v{T+10}")
        e(f"v_lshl_add_u32 v{V_WR+c}, v{T+11}, 4, v{T+12}")
    e(f"v_lshlrev_b32 v{V_L16}, 4, v{T+1}")
    e(f"s_mul_i32 s24, s{S_W}, 3584")
    e(f"s_add_u32 s30, s30, s24")
    e(f"s_mul_i32 s{S_IMGB}, s{S_NT}, {16*WBUF}")
    e(f"s_add_u32 s{S_IMGB}, s{S_IMGB}, s24")
    e(f"s_add_u32 s{S_WM0}, s24, {LDS_W}")
    e(f"s_add_u32 s24, s{S_WM0}, s{S_FBL}")
    e(f"v_add_u32 v{T+14}, s24, v{V_L16}")
    e(f"v_mov_b32 v{V_Z}, 0")
    if NLE: e(f"buffer_load_dword v{V_NONCE}, v{V_NADDR}, s[{S_DBG}:{S_DBG+3}], 0 offen sc1")
    stamp2(e)
    e(f"s_waitcnt vmcnt({(9 if XPOS == 0 else 1) + (2 if XPE else 0) + NLE})")
    stamp2(e)
    e(f"s_call_b64 s[{S_RET}:{S_RET+1}], L_dq")
    stamp2(e)
    def share_out():
        for pc in range(4):
            e(f"ds_read_b128 v[{V_P+4*pc}:{V_P+4*pc+3}], v{T+14} offset:{pc*1024}")
        for pc in range(4):
            e(f"s_waitcnt lgkmcnt({3-pc})")
            if pc == 3: e("s_mov_b32 exec_hi, 0")
            e(f"buffer_store_dwordx4 v[{V_P+4*pc}:{V_P+4*pc+3}], v{V_L16}, s[{S_WS}:{S_WS+3}], s30 offen offset:{pc*1024} sc1")
            if pc == 3: e("s_mov_b32 exec_hi, -1")
    e(f"s_cmp_ge_u32 s{S_W8}, 4")
    e("s_cbranch_scc1 L_prod")
    share_out()
    if not NLE: e(f"buffer_load_dword v{V_NONCE}, v{V_NADDR}, s[{S_DBG}:{S_DBG+3}], 0 offen sc1")
    xdma(29, "s28")
    stamp2(e)

    def publish(tagl, store=True):
        e(f"v_readfirstlane_b32 s{S_NON}, v{V_NONCE}")
        e(f"s_cmp_lg_u32 s{S_NON}, 0")
        e(f"s_cbranch_scc1 L_n_got{tagl}")
        e(f"s_mov_b32 s{S_CNT}, 0")
        e.label(f"L_n_poll{tagl}")
        e(f"buffer_load_dword v{V_NONCE}, v{V_NADDR}, s[{S_DBG}:{S_DBG+3}], 0 offen sc1")
        e("s_waitcnt vmcnt(0)")
        e(f"v_readfirstlane_b32 s{S_NON}, v{V_NONCE}")
        e(f"s_cmp_lg_u32 s{S_NON}, 0")
        e(f"s_cbranch_scc1 L_n_got{tagl}")
        e("s_sleep 2")
        e(f"s_add_u32 s{S_CNT}, s{S_CNT}, 1")
        e(f"s_cmp_lt_u32 s{S_CNT}, {SPIN}")
        e(f"s_cbranch_scc1 L_n_poll{tagl}")
        e.label(f"L_n_got{tagl}")
        if store: flag()
    def flag():
        e("s_mov_b64 exec, 1")
        e(f"buffer_store_dword v{V_NONCE}, v{V_Z}, s[{S_WS}:{S_WS+3}], s{S_FLG} offen sc1")
        e("s_mov_b64 exec, -1")

    e("v_and_b32 v14, 15, v0")
    e("v_bfe_u32 v15, v0, 4, 2")
    e("v_lshrrev_b32 v10, 3, v14")
    e("v_xor_b32 v10, v10, v14")
    e("v_mul_u32_u24 v11, 1792, v15")
    e(f"v_add_u32 v11, {LDS_W}, v11")
    e(f"v_lshl_add_u32 v{C_RDW}, v10, 4, v11")
    e("v_xor_b32 v10, 2, v10")
    e(f"v_lshl_add_u32 v{C_RDW+1}, v10, 4, v11")
    e("v_lshrrev_b32 v10, 1, v14")
    e("v_xor_b32 v10, v10, v15")
    e("v_lshlrev_b32 v11, 13, v1")
    e("v_lshl_add_u32 v11, v14, 7, v11")
    e(f"v_lshl_add_u32 v{C_RDX}, v10, 4, v11")
    e(f"v_xor_b32 v{C_RDX+1}, 64, v{C_RDX}")
    for i in range(0, 112, 2):
        if not (V_P <= ACC + i < V_P + 16): e(f"v_mov_b64 v[{ACC+i}:{ACC+i+1}], 0")
    for i in range(0, 28, 2):
        e(f"v_mov_b64 v[{C_WF+28+i}:{C_WF+28+i+1}], 0")
    for i in range(0, 16, 2):
        e(f"v_mov_b64 v[{C_XF+16+i}:{C_XF+16+i+1}], 0")
    e(f"s_mov_b32 s{S_XO}, 0")
    e(f"s_mov_b32 s{S_WO}, 0")
    e(f"s_mov_b32 s{S_IT}, 0")
    e(f"v_mov_b32 v{C_CUR}, v{C_RDX}")
    e(f"v_mov_b32 v{C_CUR+1}, v{C_RDX+1}")
    e(f"v_mov_b32 v{C_CUR+2}, v{C_RDW}")
    e(f"v_mov_b32 v{C_CUR+3}, v{C_RDW+1}")
    e("s_waitcnt vmcnt(8)")
    for i in range(0, 16, 2):
        e(f"v_mov_b64 v[{V_P+i}:{V_P+i+1}], 0")
    publish("c")
    if XPC:
        e(f"v_bfe_u32 v{V_DUM+4}, v0, 3, 3")
        e(f"s_lshl_b32 s24, s{S_NT}, 3")
        e(f"s_add_u32 s24, s24, s{S_M0}")
        e(f"v_add_u32 v{V_DUM+4}, s24, v{V_DUM+4}")
        e(f"v_lshlrev_b32 v{V_DUM+4}, 11, v{V_DUM+4}")
        e(f"v_and_b32 v{V_DUM+5}, 7, v0")
        e(f"v_lshl_add_u32 v{V_DUM+4}, v{V_DUM+5}, 4, v{V_DUM+4}")
        e(f"v_lshl_add_u32 v{V_DUM+4}, v1, 7, v{V_DUM+4}")
        for i in range(4):
            e(f"s_mov_b32 s24, {i*512}")
            e(f"buffer_load_dwordx4 v[{V_DUM}:{V_DUM+3}], v{V_DUM+4}, s[{S_X}:{S_X+3}], s24 offen")
    e(f"s_setprio {PRIO}")
    e(f"s_waitcnt vmcnt({5 if XPC else 1})")
    stamp(e); stamp(e)
    def wread(s_set, t, s): return f"ds_read_b128 {wf(s_set,t)}, v{C_CUR+2+(t&1)} offset:{s*7168+t*256}"
    def xread(s_set, m, s): return f"ds_read_b128 {xf(s_set,m)}, v{C_CUR+s} offset:{m*2048}"
    def mfmas(s_set, ts):
        return [f"v_mfma_f32_16x16x32_bf16 {acc(t,m)}, {wf(s_set,t)}, {xf(s_set,m)}, {acc(t,m)}" for t in ts for m in range(4)]
    def interleave(mf, fill):
        j = 0
        for m_ in mf:
            e(m_)
            if j < len(fill):
                e(fill[j]); j += 1
        while j < len(fill):
            e(fill[j]); j += 1
    adv = [f"s_add_u32 s{S_XO}, s{S_XO}, {XBUF}", f"s_cmp_eq_u32 s{S_XO}, {XR*XBUF}", f"s_cselect_b32 s{S_XO}, 0, s{S_XO}",
           f"s_add_u32 s{S_WO}, s{S_WO}, {WBUF}", f"s_cmp_eq_u32 s{S_WO}, {WR*WBUF}", f"s_cselect_b32 s{S_WO}, 0, s{S_WO}"]
    e.label("L_cloop")
    e("s_barrier")
    fill = [xread(0, m, 0) for m in range(4)] + [wread(0, t, 0) for t in range(7)]
    for f in fill[:3]: e(f)
    interleave(mfmas(1, [4, 5, 6]), fill[3:])
    e("s_waitcnt lgkmcnt(0)")
    fill = [xread(1, m, 1) for m in range(4)] + [wread(1, t, 1) for t in range(7)]
    interleave(mfmas(0, range(7)), fill)
    e("s_waitcnt lgkmcnt(0)")
    mf = mfmas(1, [0, 1, 2, 3])
    interleave(mf[:-2], adv + [f"v_add_u32 v{C_CUR}, s{S_XO}, v{C_RDX}", f"v_add_u32 v{C_CUR+1}, s{S_XO}, v{C_RDX+1}",
                               f"v_add_u32 v{C_CUR+2}, s{S_WO}, v{C_RDW}", f"v_add_u32 v{C_CUR+3}, s{S_WO}, v{C_RDW+1}",
                               f"s_add_u32 s{S_IT}, s{S_IT}, 1"])
    stamp(e)
    e(f"s_cmp_lt_u32 s{S_IT}, 15")
    for m_ in mf[-2:]: e(m_)
    e("s_cbranch_scc1 L_cloop")
    e("s_barrier")
    fill = [xread(0, m, 0) for m in range(4)] + [wread(0, t, 0) for t in range(7)]
    for f in fill[:3]: e(f)
    interleave(mfmas(1, [4, 5, 6]), fill[3:])
    for f in [xread(1, m, 1) for m in range(4)] + [wread(1, t, 1) for t in range(7)]: e(f)
    e(f"s_mov_b32 s27, {ESTRIDE}")
    e("v_lshl_add_u32 v13, v1, 6, v14")
    e("v_mul_lo_u32 v13, v13, s27")
    e("v_lshl_add_u32 v13, v15, 3, v13")
    e(f"v_add_u32 v13, {EBASE}, v13")
    def mf_m(m):
        return [f"v_mfma_f32_16x16x32_bf16 {acc(t,m)}, {wf(s_,t)}, {xf(s_,m)}, {acc(t,m)}" for s_ in range(2) for t in range(7)]
    def conv(m):
        o = []
        for t in range(7):
            b = C_E + t * 2
            o.append(f"v_cvt_pk_bf16_f32 v{b}, v{acc1(t,m,0)}, v{acc1(t,m,1)}")
            o.append(f"v_cvt_pk_bf16_f32 v{b+1}, v{acc1(t,m,2)}, v{acc1(t,m,3)}")
            o.append(f"ds_write_b64 v13, v[{b}:{b+1}] offset:{m*16*ESTRIDE + t*32}")
        return o
    e("s_waitcnt lgkmcnt(11)")
    mm = mf_m(0)
    for m_ in mm[:7]: e(m_)
    e("s_waitcnt lgkmcnt(0)")
    for m_ in mm[7:]: e(m_)
    for m in range(1, 4):
        mm = mf_m(m); cv = conv(m - 1)
        for m_ in mm[:2]: e(m_)
        j = 0
        for m_ in mm[2:]:
            e(m_)
            for _ in range(2):
                if j < len(cv):
                    e(cv[j]); j += 1
        e("s_waitcnt lgkmcnt(0)")
        e("s_barrier")
    e("s_nop 7")
    for c_ in conv(3): e(c_)
    e("s_waitcnt lgkmcnt(0)")
    e("s_barrier")
    stamp(e)
    e("s_branch L_fin")

    e.label("L_prod")
    if not NLE: e(f"buffer_load_dword v{V_NONCE}, v{V_NADDR}, s[{S_DBG}:{S_DBG+3}], 0 offen sc1")
    xdma(29, "s28")
    stamp2(e)
    e(f"v_min_u32 v{T+8}, 15, v{T+1}")
    e(f"s_lshl_b32 s24, s{S_NT}, 4")
    e(f"v_add_u32 v{T+8}, s24, v{T+8}")
    e(f"v_lshl_add_u32 v{T+8}, v{T+8}, 2, v{T+2}")
    e(f"v_lshlrev_b32 v{T+8}, 7, v{T+8}")
    e(f"v_add_u32 v{V_FADDR}, {WS_FLAG}, v{T+8}")
    e(f"s_mov_b32 s{S_READY}, 0")
    e(f"s_mov_b32 s{S_FBK}, 0")
    if XPF and not XPC:
        e(f"v_lshrrev_b32 v{T+15}, 3, v{T+1}")
        e(f"s_lshl_b32 s24, s{S_NT}, 3")
        e(f"s_add_u32 s24, s24, s{S_M0}")
        e(f"v_add_u32 v{T+15}, s24, v{T+15}")
        e(f"v_lshlrev_b32 v{T+15}, 11, v{T+15}")
        e(f"v_and_b32 v{T+13}, 7, v{T+1}")
        e(f"v_lshl_add_u32 v{T+15}, v{T+13}, 4, v{T+15}")
        e(f"v_lshl_add_u32 v{T+15}, v{T+2}, 7, v{T+15}")
    e("s_waitcnt vmcnt(8)")
    publish("p", store=False)
    e(f"s_mov_b32 s{S_G0}, s{S_G}")
    e(f"s_mov_b32 s{S_IT}, 2")
    e(f"s_add_u32 s{S_G}, s{S_G}, 2")
    e(f"s_and_b32 s{S_G}, s{S_G}, 15")
    e(f"s_mov_b32 s{S_XO}, {2*XBUF}")
    e(f"s_mov_b32 s{S_WO}, {2*WBUF}")
    stamp(e)
    e("s_barrier")
    stamp(e)
    e.label("L_ploop")
    e(f"s_bitcmp1_b32 s{S_READY}, s{S_G}")
    e("s_cbranch_scc1 L_rdyL")
    e(f"s_cmp_eq_u32 s{S_NON}, 0")
    e("s_cbranch_scc1 L_fbL")
    e(f"s_mov_b32 s{S_CNT}, s{S_FBK}")
    e.label("L_pollL")
    e(f"buffer_load_dword v{V_FLAG}, v{V_FADDR}, s[{S_WS}:{S_WS+3}], 0 offen sc1")
    e("s_waitcnt vmcnt(0)")
    e(f"v_cmp_eq_u32 vcc, v{V_FLAG}, v{V_NONCE}")
    e(f"s_mov_b32 s{S_READY}, vcc_lo")
    e(f"s_bitcmp1_b32 s{S_READY}, s{S_G}")
    e("s_cbranch_scc1 L_rdyL")
    e("s_sleep 2")
    e(f"s_add_u32 s{S_CNT}, s{S_CNT}, 1")
    e(f"s_cmp_lt_u32 s{S_CNT}, {SPIN}")
    e("s_cbranch_scc1 L_pollL")
    e.label("L_fbL")
    e(f"s_mov_b32 s{S_FBK}, {SPIN}")
    e(f"s_mul_i32 s{S_FBQ}, s{S_G}, {BK*QROW}")
    e(f"s_mov_b32 s{S_FBL}, s{S_WO}")
    e(f"s_lshr_b32 s24, s{S_G}, 1")
    e(f"s_mul_i32 s{S_FBG}, s24, {N*2}")
    e(f"buffer_load_dwordx2 v[{V_RAW}:{V_RAW+1}], v{V_SCO}, s[{S_SC}:{S_SC+3}], s{S_FBG} offen")
    e(f"buffer_load_dwordx2 v[{V_RAW+2}:{V_RAW+3}], v{V_SCO}, s[{S_Z}:{S_Z+3}], s{S_FBG} offen")
    for i in range(8):
        r = qreg(i, 0)
        e(f"buffer_load_dwordx4 v[{r}:{r+3}], v{V_QOFF+i}, s[{S_Q}:{S_Q+3}], s{S_FBQ} offen")
    e("s_waitcnt vmcnt(0)")
    e(f"s_call_b64 s[{S_RET}:{S_RET+1}], L_dq")
    e("s_branch L_doneL")
    e.label("L_rdyL")
    e(f"s_mul_i32 s27, s{S_G}, {WBUF}")
    e(f"s_add_u32 s27, s27, s{S_IMGB}")
    e(f"s_add_u32 m0, s{S_WM0}, s{S_WO}")
    e("s_nop 0")
    for pce in range(3):
        e(f"buffer_load_dwordx4 v{V_L16}, s[{S_WS}:{S_WS+3}], s27 offen offset:{pce*1024} sc1 lds")
    e("s_mov_b32 exec_hi, 0")
    e(f"buffer_load_dwordx4 v{V_L16}, s[{S_WS}:{S_WS+3}], s27 offen offset:3072 sc1 lds")
    e("s_mov_b32 exec_hi, -1")
    e.label("L_doneL")
    e(f"s_lshl_b32 s29, s{S_G}, 7")
    xdma(29, f"s{S_XO}")
    for a_ in adv: e(a_)
    e(f"s_add_u32 s{S_G}, s{S_G}, 2")
    e(f"s_and_b32 s{S_G}, s{S_G}, 15")
    e(f"s_add_u32 s24, s{S_G}, 3")
    e(f"s_and_b32 s24, s24, 15")
    e(f"s_cmp_eq_u32 s{S_G}, s{S_G0}")
    e(f"s_cselect_b32 s{S_G}, s24, s{S_G}")
    stamp(e)
    e("s_waitcnt vmcnt(12)")
    e(f"s_cmp_lg_u32 s{S_IT}, {SO_AT}")
    e("s_cbranch_scc1 L_noso")
    share_out()
    if XPF and not XPC:
        for i in range(4):
            e(f"s_mov_b32 s24, {i*512}")
            e(f"buffer_load_dwordx4 v[{V_DUM}:{V_DUM+3}], v{T+15}, s[{S_X}:{S_X+3}], s24 offen")
    e.label("L_noso")
    e(f"s_cmp_lg_u32 s{S_IT}, {SO_AT+1}")
    e("s_cbranch_scc1 L_nofl")
    flag()
    e.label("L_nofl")
    e(f"s_add_u32 s{S_IT}, s{S_IT}, 1")
    e(f"s_cmp_lt_u32 s{S_IT}, 16")
    e("s_barrier")
    e("s_cbranch_scc1 L_ploop")
    stamp(e)
    e("s_waitcnt vmcnt(0)")
    e("s_barrier")
    stamp(e)
    e("v_and_b32 v10, 63, v0")
    e("v_mul_u32_u24 v11, 0x1250, v10")
    e("v_lshrrev_b32 v11, 16, v11")
    e("v_mul_u32_u24 v12, 14, v11")
    e("v_sub_u32 v12, v10, v12")
    e("v_and_b32 v13, 3, v1")
    e("v_lshl_add_u32 v13, v13, 6, v11")
    e(f"s_mov_b32 s27, {ESTRIDE}")
    e("v_mul_lo_u32 v14, v13, s27")
    e("v_lshl_add_u32 v14, v12, 4, v14")
    e(f"v_add_u32 v14, {EBASE}, v14")
    e(f"v_add_u32 v13, s{S_M0}, v13")
    e(f"s_mov_b32 s27, {OROW}")
    e("v_mul_lo_u32 v13, v13, s27")
    e(f"s_lshl_b32 s28, s{S_N0}, 1")
    e("v_lshl_add_u32 v13, v12, 4, v13")
    e("v_add_u32 v13, s28, v13")
    e("v_cmp_gt_u32 vcc, 56, v10")
    e("s_and_b64 exec, exec, vcc")
    for m in range(4):
        e("s_barrier")
        for i in range(4):
            b = 128 + m * 16 + i * 4
            e(f"ds_read_b128 v[{b}:{b+3}], v14 offset:{(m*16+i*4)*ESTRIDE}")
        for i in range(4):
            b = 128 + m * 16 + i * 4
            e(f"s_mov_b32 s24, {(m*16+i*4)*OROW}")
            e(f"s_waitcnt lgkmcnt({3-i})")
            e(f"buffer_store_dwordx4 v[{b}:{b+3}], v13, s[{S_O}:{S_O+3}], s24 offen")
    e("s_mov_b64 exec, -1")
    e("s_branch L_fin")

    e.label("L_dq")
    for c in range(4):
        e(f"v_add_u32 v{T+8+c}, s{S_FBL}, v{V_WR+c}")
    for op in dequant_ops(): e(op)
    e("s_waitcnt lgkmcnt(0)")
    e(f"s_setpc_b64 s[{S_RET}:{S_RET+1}]")

    e.label("L_fin")
    if STAMP:
        stamp(e)
        e("s_waitcnt vmcnt(0)")
        stamp(e); stamp(e, True)
        e("s_mov_b32 s64, s52")
        e("s_and_b32 s65, s53, 0xffff")
        e("s_mov_b32 s66, 0x10000000")
        e("s_mov_b32 s67, 0x00020000")
        e("v_lshlrev_b32 v1, 2, v0")
        e("s_lshl_b32 s24, s2, 11")
        e(f"s_add_u32 s24, s24, {WS_STAMP}")
        e(f"buffer_store_dword v{C_ST}, v1, s[64:67], s24 offen")
    e.label("L_end")
    e("s_endpgm")

    out += e.lines
    out.append('.section .rodata,"a"')
    out.append(".p2align 6")
    out.append(".amdhsa_kernel standalone__w4a16_gemm_dequant__prompt_kernel")
    out.append("  .amdhsa_next_free_vgpr 256")
    out.append("  .amdhsa_next_free_sgpr 102")
    out.append("  .amdhsa_accum_offset 256")
    out.append("  .amdhsa_group_segment_fixed_size 0")
    out.append("  .amdhsa_kernarg_size 56")
    out.append("  .amdhsa_user_sgpr_count 2")
    out.append("  .amdhsa_user_sgpr_kernarg_segment_ptr 1")
    out.append("  .amdhsa_system_sgpr_workgroup_id_x 1")
    out.append("  .amdhsa_float_denorm_mode_32 3")
    out.append("  .amdhsa_float_denorm_mode_16_64 3")
    out.append(".end_amdhsa_kernel")
    return "\n".join(out) + "\n"


if __name__ == "__main__":
    dst = sys.argv[1] if len(sys.argv) > 1 else "standalone__w4a16_gemm_dequant__prompt.s"
    open(dst, "w").write(gen())
    print("wrote", dst)
```
